```python
import torch

def _softmax(x, axis=-1):
    return torch.softmax(x, dim=axis)
def _gelu(x):
    return torch.nn.functional.gelu(x, approximate="tanh")
def _silu(x):
    return torch.nn.functional.silu(x)
def _sigmoid(x):
    return torch.sigmoid(x)
def _layernorm(x, axis=-1, eps=1e-5):
    m = x.mean(dim=axis, keepdim=True)
    v = x.var(dim=axis, keepdim=True, unbiased=False)
    return (x - m) / torch.sqrt(v + eps)
def _scatter_add(tgt, idx, src, axis=0):
    return tgt.clone().index_add_(axis, idx, src)
def _segment_sum(src, seg, n):
    out = torch.zeros((n,) + src.shape[1:], dtype=src.dtype)
    return out.index_add_(0, seg, src)
def _pad(x, pw):
    flat = tuple(v for pair in reversed(pw) for v in pair)
    return torch.nn.functional.pad(x, flat)

kernel_name = 'sequential_preLN__mha_block__mixer_token_mlp__prompt'

def setup_inputs():

    _w = (lambda a: (lambda t: t.to(torch.bfloat16) if t.is_floating_point() else t)(torch.as_tensor(a)))
    def _A_setup():
        B, S, D, H = 1, 2048, 640, 32
        return {
            "x": _w((lambda *s: torch.randn(*s, dtype=torch.bfloat16) * 0.05)(B, S, D)),
            "wqkv": _w((lambda *s: torch.randn(*s, dtype=torch.bfloat16) * 0.05)(D, 3 * D)),
            "wo": _w((lambda *s: torch.randn(*s, dtype=torch.bfloat16) * 0.05)(D, D)),
        }
    _A_in = _A_setup()

    def _B_setup():
        B, S, D, F = 1, 2048, 640, 1536
        return {
            "x": _w((lambda *s: torch.randn(*s, dtype=torch.bfloat16) * 0.05)(B, S, D)),
            "w1": _w((lambda *s: torch.randn(*s, dtype=torch.bfloat16) * 1.6)(S, F) * (S ** -0.5)),
            "b1": _w((lambda *s: torch.randn(*s, dtype=torch.bfloat16) * 1.6)(F) * 0.02),
            "w2": _w((lambda *s: torch.randn(*s, dtype=torch.bfloat16) * 0.2)(F, S) * (F ** -0.5)),
            "b2": _w((lambda *s: torch.randn(*s, dtype=torch.bfloat16) * 0.2)(S) * 0.02),
        }
    _B_in = _B_setup()

    return {
        "A_x": _A_in["x"],
        "A_wqkv": _A_in["wqkv"],
        "A_wo": _A_in["wo"],
        "B_x": _B_in["x"],
        "B_w1": _B_in["w1"],
        "B_b1": _B_in["b1"],
        "B_w2": _B_in["w2"],
        "B_b2": _B_in["b2"],
    }

def reference(A_x, A_wqkv, A_wo, B_x, B_w1, B_b1, B_w2, B_b2):
    def _A_ref(x, wqkv, wo):
        B, S, D = x.shape
        H = 32
        Dh = D // H
        qkv = (lambda x, *d: x.permute(*d))((x @ wqkv).reshape(B, S, 3, H, Dh), 2, 0, 3, 1, 4)
        q, k, v = qkv[0], qkv[1], qkv[2]
        scores = torch.einsum("bhqd,bhkd->bhqk", q, k) * (Dh ** -0.5)
        p = _softmax(scores, axis=-1)
        o = torch.einsum("bhqk,bhkd->bhqd", p, v)
        return (lambda x, *d: x.permute(*d))(o, 0, 2, 1, 3).reshape(B, S, D) @ wo

    def _B_ref(x, w1, b1, w2, b2):
        B, S, D = x.shape
        h = _layernorm(x, axis=-1)
        u = torch.einsum("bsd,sf->bdf", h, w1) + b1
        u = _gelu(u)
        y = torch.einsum("bdf,fs->bds", u, w2) + b2
        return (lambda x, *d: x.permute(*d))(y, 0, 2, 1)

    x = A_x
    h = x + _A_ref(_layernorm(x, axis=-1), A_wqkv, A_wo)
    h2 = h + _B_ref(_layernorm(h, axis=-1), B_w1, B_b1, B_w2, B_b2)
    return h2
```

```python
def v(i, n=1):
    return f"v{i}" if n == 1 else f"v[{i}:{i+n-1}]"
def a(i, n=1):
    return f"a{i}" if n == 1 else f"a[{i}:{i+n-1}]"
def s(i, n=1):
    return f"s{i}" if n == 1 else f"s[{i}:{i+n-1}]"

class Alloc:
    def __init__(self, start=0, limit=256):
        self.p = start; self.limit = limit
    def __call__(self, n=1, align=None):
        if align is None:
            align = 1 if n == 1 else (2 if n < 4 else 4)
        self.p = (self.p + align - 1) // align * align
        r = self.p
        self.p += n
        assert self.p <= self.limit, "out of registers"
        return r

class Kernel:
    def __init__(self, name, grid, block, lds):
        self.name = name; self.grid = grid; self.block = block; self.lds = lds
        self.lines = []
        self.nv = 256; self.ns = 96; self.acc = None
    def e(self, *ls):
        for l in ls:
            if isinstance(l, (list, tuple)):
                self.e(*l)
            else:
                for x in l.split("\n"):
                    x = x.strip()
                    if x: self.lines.append(x)
    def L(self, n):
        return f"L_{self.name}_{n}"
    def label(self, n):
        self.lines.append(self.L(n) + ":")
    def text(self):
        body = "\n".join((l if l.endswith(":") else "    " + l) for l in self.lines)
        return f".globl {self.name}\n.p2align 8\n.type {self.name},@function\n{self.name}:\n{body}\n"
    def desc(self):
        nv = self.nv
        acc = self.acc if self.acc is not None else min(256, (nv + 3) // 4 * 4)
        return (f".p2align 6\n.amdhsa_kernel {self.name}\n  .amdhsa_next_free_vgpr {nv}\n  .amdhsa_next_free_sgpr {self.ns}\n"
                f"  .amdhsa_accum_offset {acc}\n  .amdhsa_group_segment_fixed_size 0\n  .amdhsa_kernarg_size 88\n"
                f"  .amdhsa_user_sgpr_count 2\n  .amdhsa_user_sgpr_kernarg_segment_ptr 1\n  .amdhsa_system_sgpr_workgroup_id_x 1\n"
                f".end_amdhsa_kernel\n")

def interleave(main, fill, lead=0):
    out = list(fill[:lead]); fill = fill[lead:]
    n = len(main); m = len(fill); j = 0
    for i, x in enumerate(main):
        out.append(x)
        k = (m * (i + 1) + n - 1) // n
        out.extend(fill[j:k]); j = k
    return out

def srd(d, base, nbytes):
    return [f"s_mov_b32 s{d}, s{base}", f"s_mov_b32 s{d+1}, s{base+1}", f"s_mov_b32 s{d+2}, {hex(nbytes)}", f"s_mov_b32 s{d+3}, 0x00020000"]

HEADER = """; Kernarg layout (88 bytes, ptrs only, base s[0:1]):
"""
def assemble_file(kernels):
    t = HEADER
    for k in kernels:
        t += f"; @launch kernel={k.name} grid=({k.grid},1,1) block=({k.block},1,1) lds={k.lds}\n"
    t += '.amdgcn_target "amdgcn-amd-amdhsa--gfx950"\n.text\n'
    for k in kernels:
        t += k.text()
    t += '.section .rodata,"a"\n'
    for k in kernels:
        t += k.desc()
    return t
```

```python
from dsl import *
import math, struct
S=2048; D=640; F=1536
QK8=0; VT8=QK8+160*2048*16; O8=VT8+256*640*16; HH=O8+80*2048*16; HN8=HH+2048*1280; U8=HN8+256*640*16
WO8=U8+192*640*16; W18=WO8+80*640*16; W28=W18+256*1536*16; WS_END=W28+192*2048*16
WS_BYTES=268435456
def f2u(x): return struct.unpack("<I", struct.pack("<f", x))[0]
QSCALE = math.log2(math.e)/math.sqrt(20.0)
def magic(d): return (2**32 + d - 1)//d

def waveid(k, sdst, vtmp):
    k.e(f"v_lshrrev_b32 v{vtmp}, 6, v0", "s_nop 0", f"v_readfirstlane_b32 s{sdst}, v{vtmp}")

def k0_retile():
    k = Kernel("k0_kernel", 409, 256, 32768); k.nv = 48
    k.e("s_load_dwordx2 s[4:5], s[0:1], 16", "s_load_dwordx2 s[6:7], s[0:1], 32", "s_load_dwordx2 s[16:17], s[0:1], 48", "s_load_dwordx2 s[18:19], s[0:1], 80")
    waveid(k, 20, 1)
    k.e("v_and_b32 v0, 63, v0", "s_lshl_b32 s21, s2, 2", "s_add_u32 s21, s21, s20", "s_cmp_ge_u32 s21, 1636", f"s_cbranch_scc1 {k.L('end')}")
    k.e("s_waitcnt lgkmcnt(0)")
    k.e(srd(12, 18, WS_BYTES))
    k.e("s_cmp_ge_u32 s21, 1536", f"s_cbranch_scc1 {k.L('wo')}", "s_cmp_ge_u32 s21, 768", f"s_cbranch_scc1 {k.L('w2')}")
    def sel(base, nbytes, sub, N, nnb, dst):
        k.e(srd(8, base, nbytes))
        k.e(f"s_sub_u32 s21, s21, {sub}", f"s_mul_hi_u32 s22, s21, {magic(nnb)}", f"s_mul_i32 s23, s22, {nnb}", "s_sub_u32 s23, s21, s23",
            f"s_mov_b32 s24, {N*2}", f"s_mov_b32 s25, {dst}")
    sel(6, 2048*1536*2, 0, 1536, 24, W18); k.e(f"s_branch {k.L('go')}")
    k.label("w2"); sel(16, 2048*1536*2, 768, 2048, 32, W28); k.e(f"s_branch {k.L('go')}")
    k.label("wo"); sel(4, 640*640*2, 1536, 640, 10, WO8)
    k.label("go")
    k.e("v_lshrrev_b32 v1, 3, v0", "v_mul_lo_u32 v1, v1, s24", "v_and_b32 v2, 7, v0", "v_lshl_add_u32 v1, v2, 4, v1")
    k.e("s_lshl_b32 s26, s22, 6", "s_mul_i32 s26, s26, s24", "s_lshl_b32 s27, s23, 7", "s_add_u32 s26, s26, s27", "s_lshl_b32 s28, s24, 3", "s_lshl_b32 s29, s20, 13")
    for u in range(8):
        k.e(f"s_add_u32 m0, s29, {u*1024}", "s_nop 0", "buffer_load_dwordx4 v1, s[8:11], s26 offen lds", "s_add_u32 s26, s26, s28")
    k.e("v_bfe_u32 v2, v0, 2, 2", "v_lshlrev_b32 v2, 7, v2", "v_lshrrev_b32 v3, 4, v0", "v_lshl_add_u32 v2, v3, 5, v2", "v_and_b32 v3, 3, v0", "v_lshl_add_u32 v2, v3, 3, v2", "v_add_u32 v2, s29, v2")
    k.e("v_lshlrev_b32 v3, 4, v0")
    k.e("s_lshl_b32 s30, s22, 3", "s_mul_i32 s30, s30, s28", "s_lshl_b32 s31, s23, 10", "s_add_u32 s30, s30, s31", "s_add_u32 s30, s30, s25")
    k.e("s_waitcnt vmcnt(0)")
    for u in range(8):
        for t in range(2):
            k.e(f"ds_read_b64_tr_b16 {v(8+4*u+2*t,2)}, v2 offset:{u*1024+t*512}")
    k.e("s_waitcnt lgkmcnt(0)")
    for u in range(8):
        k.e(f"buffer_store_dwordx4 {v(8+4*u,4)}, v3, s[12:15], s30 offen", "s_add_u32 s30, s30, s28")
    k.label("end"); k.e("s_endpgm")
    return k

def k1_qkv():
    k = Kernel("k1_kernel", 256, 256, 131072)
    al = Alloc(1)
    tmp = [al() for _ in range(7)]
    acc = [[al(16) for _ in range(2)] for _ in range(2)]
    cs = al(16)
    xf = [[al(4) for _ in range(2)] for _ in range(2)]
    wf = [[al(4) for _ in range(2)] for _ in range(2)]
    ones = al(4)
    xa = [[al() for _ in range(2)] for _ in range(4)]
    wa = [al() for _ in range(2)]
    vx = [al() for _ in range(4)]; vw = [al() for _ in range(4)]
    sA, sB, qA, qB = al(), al(), al(), al()
    t0, t1 = al(), al()
    ep = al(64)
    k.nv = al.p
    k.e("s_load_dwordx4 s[4:7], s[0:1], 0", "s_load_dwordx2 s[8:9], s[0:1], 80")
    k.e("s_cmp_ge_u32 s2, 256", f"s_cbranch_scc1 {k.L('end')}")
    k.e("s_and_b32 s36, s2, 7", "s_lshr_b32 s37, s2, 3",
        "s_lshr_b32 s24, s36, 1", "s_lshl_b32 s24, s24, 2", "s_and_b32 s38, s37, 3", "s_add_u32 s24, s24, s38",
        "s_and_b32 s25, s36, 1", "s_lshl_b32 s25, s25, 3", "s_lshr_b32 s39, s37, 2", "s_add_u32 s25, s25, s39",
        "s_cmp_ge_u32 s25, 15", f"s_cbranch_scc1 {k.L('end')}")
    k.e("s_mul_i32 s29, s38, 3", "s_add_u32 s29, s29, s39", "s_cmp_ge_u32 s29, 10", "s_cselect_b32 s40, 10, 0", "s_sub_u32 s29, s29, s40")
    waveid(k, 26, tmp[0])
    k.e("v_and_b32 v0, 63, v0", "s_lshr_b32 s27, s26, 1", "s_and_b32 s28, s26, 1")
    T = tmp
    k.e(f"v_lshrrev_b32 v{T[0]}, 3, v0", f"v_lshrrev_b32 v{T[1]}, 4, v0", f"v_and_b32 v{T[2]}, 7, v0",
        "s_lshl_b32 s40, s24, 7", "s_lshl_b32 s41, s26, 5", "s_add_u32 s40, s40, s41",
        f"v_add_u32 v{T[0]}, s40, v{T[0]}", f"v_mul_u32_u24 v{T[0]}, 1280, v{T[0]}",
        f"v_xor_b32 v{T[3]}, v{T[2]}, v{T[1]}", f"v_lshl_add_u32 v{vx[0]}, v{T[3]}, 4, v{T[0]}",
        f"v_xor_b32 v{T[3]}, 4, v{T[3]}", f"v_lshl_add_u32 v{vx[1]}, v{T[3]}, 4, v{T[0]}",
        f"v_add_u32 v{vx[2]}, {2*(8*1280-1024)}, v{vx[0]}", f"v_add_u32 v{vx[3]}, {3*(8*1280-1024)}, v{vx[1]}", f"v_add_u32 v{vx[1]}, {8*1280-1024}, v{vx[1]}")
    k.e("s_lshl_b32 s40, s26, 4", f"v_add_u32 v{T[0]}, s40, v{T[1]}", f"v_mul_u32_u24 v{T[0]}, 3840, v{T[0]}",
        f"v_bfe_u32 v{T[2]}, v0, 2, 2", f"v_xor_b32 v{T[2]}, v{T[2]}, v{T[1]}", f"v_lshl_add_u32 v{T[0]}, v{T[2]}, 6, v{T[0]}",
        f"v_and_b32 v{T[2]}, 3, v0", f"v_lshl_add_u32 v{T[0]}, v{T[2]}, 4, v{T[0]}", "s_lshl_b32 s40, s25, 8", f"v_add_u32 v{vw[0]}, s40, v{T[0]}")
    for i in range(1, 4):
        k.e(f"v_add_u32 v{vw[i]}, {i*(4*3840-1024)}, v{vw[0]}")
    k.e("s_waitcnt lgkmcnt(0)")
    k.e(srd(12, 4, 2048*640*2), srd(16, 6, 640*1920*2), srd(20, 8, WS_BYTES))
    k.e("s_lshl_b32 s33, s26, 12", "s_mov_b32 s32, 0")
    def dma():
        r = ["s_lshl_b32 s30, s29, 7", "s_mul_i32 s31, s29, 245760", "s_cmp_ge_u32 s32, 10", "s_cselect_b32 s30, 0x40000000, s30", "s_cselect_b32 s31, 0x40000000, s31",
             "s_mov_b32 m0, s33", "s_add_u32 s32, s32, 1"]
        r += [f"buffer_load_dwordx4 v{vx[i]}, s[12:15], s30 offen offset:{i*1024} lds" for i in range(4)]
        r += ["s_add_u32 m0, s33, 65536", "s_add_u32 s29, s29, 1"]
        r += [f"buffer_load_dwordx4 v{vw[i]}, s[16:19], s31 offen offset:{i*1024} lds" for i in range(4)]
        r += ["s_cmp_eq_u32 s29, 10", "s_cselect_b32 s29, 0, s29", "s_add_u32 s33, s33, 16384", "s_and_b32 s33, s33, 0xffff"]
        return r
    for _ in range(4): k.e(dma())
    k.e(f"v_and_b32 v{T[0]}, 31, v0", f"v_lshrrev_b32 v{T[1]}, 5, v0", f"v_bfe_u32 v{T[2]}, v0, 1, 3", f"v_xor_b32 v{T[2]}, v{T[2]}, v{T[1]}",
        "s_lshl_b32 s40, s27, 6", "s_lshl_b32 s41, s28, 5", "s_add_u32 s40, s40, s41",
        f"v_add_u32 v{T[0]}, s40, v{T[0]}", f"v_lshlrev_b32 v{T[0]}, 7, v{T[0]}", f"v_lshl_add_u32 v{xa[0][0]}, v{T[2]}, 4, v{T[0]}")
    for ks in range(4):
        if ks: k.e(f"v_xor_b32 v{xa[ks][0]}, {ks*32}, v{xa[0][0]}")
        k.e(f"v_xor_b32 v{xa[ks][1]}, {4096+ks*32}, v{xa[0][0]}")
    k.e(f"v_bfe_u32 v{T[2]}, v0, 2, 2", f"v_lshl_add_u32 v{T[0]}, v{T[1]}, 3, v{T[2]}", f"v_lshlrev_b32 v{T[0]}, 8, v{T[0]}",
        "s_lshl_b32 s40, s28, 1", "s_add_u32 s40, s40, s27", f"v_xor_b32 v{T[2]}, s40, v{T[2]}", f"v_lshl_add_u32 v{T[0]}, v{T[2]}, 6, v{T[0]}",
        f"v_bfe_u32 v{T[2]}, v0, 4, 1", f"v_lshl_add_u32 v{T[0]}, v{T[2]}, 5, v{T[0]}", f"v_add_u32 v{T[0]}, 65536, v{T[0]}",
        f"v_and_b32 v{T[2]}, 3, v0",
        f"v_and_b32 v{T[3]}, 1, v0", f"v_lshlrev_b32 v{T[3]}, 1, v{T[3]}", f"v_bfe_u32 v{T[4]}, v0, 1, 1", f"v_or_b32 v{T[3]}, v{T[3]}, v{T[4]}",
        "s_cmp_ge_u32 s25, 10", "s_cselect_b64 vcc, -1, 0", f"v_cndmask_b32 v{T[2]}, v{T[3]}, v{T[2]}, vcc",
        f"v_lshl_add_u32 v{wa[0]}, v{T[2]}, 3, v{T[0]}", f"v_xor_b32 v{wa[1]}, 64, v{wa[0]}")
    for i in range(4): k.e(f"v_mov_b32 v{ones+i}, 0x3f803f80")
    for r in [acc[0][0]+i for i in range(16)]+[acc[0][1]+i for i in range(16)]+[acc[1][0]+i for i in range(16)]+[acc[1][1]+i for i in range(16)]+[cs+i for i in range(16)]+[sA,sB,qA,qB]:
        k.e(f"v_mov_b32 v{r}, 0")
    k.e("s_mov_b32 s42, 0xffff0000", "s_mov_b32 s35, 16384", "s_mov_b32 s34, 10")
    def reads(ks, buf):
        r = [f"ds_read_b128 {v(xf[buf][sl],4)}, v{xa[ks][sl]}" for sl in range(2)]
        for sl in range(2):
            for t in range(2):
                r.append(f"ds_read_b64_tr_b16 {v(wf[buf][sl]+2*t,2)}, v{wa[sl]} offset:{(16*ks+4*t)*256}")
        return r
    def stats(buf):
        r = []
        for d in range(4):
            x = xf[buf][0]+d
            r += [f"v_and_b32 v{t0}, s42, v{x}", f"v_lshlrev_b32 v{t1}, 16, v{x}", f"v_add_f32 v{sA}, v{sA}, v{t0}", f"v_add_f32 v{sB}, v{sB}, v{t1}",
                  f"v_fmac_f32 v{qA}, v{t0}, v{t0}", f"v_fmac_f32 v{qB}, v{t1}, v{t1}"]
        return r
    def mf(buf, isv):
        r = []
        for xs in range(2):
            for ws in range(2):
                A, B = (xf[buf][xs], wf[buf][ws]) if isv else (wf[buf][ws], xf[buf][xs])
                r.append(f"v_mfma_f32_32x32x16_bf16 {v(acc[xs][ws],16)}, {v(A,4)}, {v(B,4)}, {v(acc[xs][ws],16)}")
        r.append(f"v_mfma_f32_32x32x16_bf16 {v(cs,16)}, {v(ones,4)}, {v(wf[buf][0],4)}, {v(cs,16)}")
        return r
    k.e("s_waitcnt vmcnt(24)", "s_barrier")
    k.e(reads(0, 0))
    k.e("s_cmp_ge_u32 s25, 10", f"s_cbranch_scc1 {k.L('loopv')}")
    def loop(isv):
        nm = "loopv" if isv else "loopq"
        k.label(nm)
        for ks in range(3):
            k.e(reads(ks+1, (ks+1) % 2), "s_waitcnt lgkmcnt(6)")
            k.e(interleave(mf(ks % 2, isv), stats(ks % 2)))
        k.e("s_waitcnt vmcnt(16) lgkmcnt(0)", "s_barrier")
        xors = [f"v_xor_b32 v{r}, s35, v{r}" for r in [xa[0][0], xa[0][1], wa[0], wa[1]]]
        xors2 = [f"v_xor_b32 v{xa[ks][sl]}, s35, v{xa[ks][sl]}" for ks in range(1, 4) for sl in range(2)]
        k.e(interleave(mf(1, isv), xors + reads(0, 0) + dma() + xors2 + ["s_xor_b32 s35, s35, 32768"] + stats(1)))
        k.e("s_sub_u32 s34, s34, 1", "s_cmp_lg_u32 s34, 0", f"s_cbranch_scc1 {k.L(nm)}")
        k.e("s_waitcnt vmcnt(0) lgkmcnt(0)", "s_barrier")
        k.e(f"v_add_f32 v{sA}, v{sA}, v{sB}", f"v_add_f32 v{qA}, v{qA}, v{qB}", f"v_mov_b32 v{sB}, v{sA}", f"v_mov_b32 v{qB}, v{qA}", "s_nop 1",
            f"v_permlane32_swap_b32 v{sA}, v{sB}", f"v_permlane32_swap_b32 v{qA}, v{qB}", "s_nop 1",
            f"v_add_f32 v{sA}, v{sA}, v{sB}", f"v_add_f32 v{qA}, v{qA}, v{qB}",
            f"v_mul_f32 v{sA}, {hex(f2u(1.0/640))}, v{sA}", f"v_mul_f32 v{qA}, {hex(f2u(1.0/640))}, v{qA}",
            f"v_fma_f32 v{qA}, -v{sA}, v{sA}, v{qA}", f"v_max_f32 v{qA}, 0, v{qA}", f"v_add_f32 v{qA}, {hex(f2u(1e-5))}, v{qA}", f"v_rsq_f32 v{qA}, v{qA}", "s_nop 0")
        if isv: k.e(f"v_mul_f32 v{sA}, v{sA}, v{qA}")
        k.e(f"v_and_b32 v{T[0]}, 31, v0", "s_lshl_b32 s40, s27, 6", "s_lshl_b32 s41, s28, 5", "s_add_u32 s43, s40, s41",
            "s_lshl_b32 s40, s28, 6", "s_lshl_b32 s41, s27, 5", "s_add_u32 s44, s40, s41",
            f"v_add_lshl_u32 v{T[1]}, v{T[0]}, s43, 2", f"v_add_lshl_u32 v{T[2]}, v{T[0]}, s44, 2",
            f"ds_write_b32 v{T[1]}, v{qA}", f"ds_write_b32 v{T[1]}, v{sA} offset:512", f"ds_write_b32 v{T[2]}, v{cs} offset:1024",
            "s_waitcnt lgkmcnt(0)", "s_barrier")
        hf = T[3]
        k.e(f"v_lshrrev_b32 v{hf}, 5, v0")
        if not isv:
            R = [ep+0, ep+1]; M = [ep+2, ep+3]; C = [ep+4, ep+20]; out = ep+36
            k.e(f"v_xor_b32 v{T[4]}, 128, v{T[1]}",
                f"ds_read_b32 v{R[0]}, v{T[1]}", f"ds_read_b32 v{M[0]}, v{T[1]} offset:512", f"ds_read_b32 v{R[1]}, v{T[4]}", f"ds_read_b32 v{M[1]}, v{T[4]} offset:512")
            k.e(f"v_lshlrev_b32 v{T[5]}, 4, v{hf}", "s_lshl_b32 s40, s44, 2", f"v_add_u32 v{T[5]}, s40, v{T[5]}", f"v_xor_b32 v{T[6]}, 128, v{T[5]}")
            for ws in range(2):
                for q in range(4):
                    k.e(f"ds_read_b128 {v(C[ws]+4*q,4)}, v{T[5+ws]} offset:{1024+q*32}")
            k.e("s_lshl_b32 s40, s25, 4", "s_lshl_b32 s41, s28, 3", "s_add_u32 s40, s40, s41", f"v_add_u32 v{T[2]}, s40, v{hf}", f"v_lshlrev_b32 v{T[2]}, 11, v{T[2]}",
                "s_lshl_b32 s40, s24, 7", "s_lshl_b32 s41, s27, 6", "s_add_u32 s40, s40, s41", f"v_add3_u32 v{T[2]}, v{T[2]}, s40, v{T[0]}", f"v_lshlrev_b32 v{T[2]}, 4, v{T[2]}")
            k.e("s_cmp_lt_u32 s25, 5", f"s_cselect_b32 s45, {hex(f2u(QSCALE))}, 1.0")
            k.e("s_lshl_b32 s46, s28, 9", "s_lshl_b32 s47, s27, 17", "s_add_u32 s46, s46, s47")
            k.e("s_waitcnt lgkmcnt(0)", f"v_mul_f32 v{R[0]}, s45, v{R[0]}", f"v_mul_f32 v{R[1]}, s45, v{R[1]}")
            n = 0
            for xs in range(2):
                for ws in range(2):
                    A = acc[xs][ws]
                    for p in range(2):
                        o = out + 4*(n % 4); n += 1
                        for j in range(8):
                            r = 8*p+j
                            k.e(f"v_fma_f32 v{A+r}, -v{M[xs]}, v{C[ws]+r}, v{A+r}", f"v_mul_f32 v{A+r}, v{R[xs]}, v{A+r}")
                        for j in range(4):
                            k.e(f"v_cvt_pk_bf16_f32 v{o+j}, v{A+8*p+2*j}, v{A+8*p+2*j+1}")
                        k.e(f"s_xor_b32 s47, s46, {xs*512 + ws*131072}", f"s_add_u32 s47, s47, {QK8 + p*65536}",
                            f"buffer_store_dwordx4 {v(o,4)}, v{T[2]}, s[20:23], s47 offen")
        else:
            Cn = [ep+0, ep+1]; R = ep+4; M = ep+20; out = ep+36
            k.e(f"v_xor_b32 v{T[4]}, 128, v{T[2]}", f"ds_read_b32 v{Cn[0]}, v{T[2]} offset:1024", f"ds_read_b32 v{Cn[1]}, v{T[4]} offset:1024")
            k.e(f"v_lshlrev_b32 v{T[5]}, 4, v{hf}", "s_lshl_b32 s40, s43, 2", f"v_add_u32 v{T[5]}, s40, v{T[5]}", f"v_xor_b32 v{T[6]}, 128, v{T[5]}")
            k.e("s_lshl_b32 s40, s24, 4", "s_lshl_b32 s41, s27, 3", "s_add_u32 s40, s40, s41", f"v_add_u32 v{T[1]}, s40, v{hf}", f"v_mul_u32_u24 v{T[1]}, 640, v{T[1]}",
                "s_sub_u32 s40, s25, 10", "s_lshl_b32 s40, s40, 7", "s_lshl_b32 s41, s28, 6", "s_add_u32 s40, s40, s41", f"v_add3_u32 v{T[1]}, v{T[1]}, s40, v{T[0]}", f"v_lshlrev_b32 v{T[1]}, 4, v{T[1]}")
            n = 0
            for xs in range(2):
                for q in range(4):
                    k.e(f"ds_read_b128 {v(R+4*q,4)}, v{T[5+xs]} offset:{q*32}", f"ds_read_b128 {v(M+4*q,4)}, v{T[5+xs]} offset:{512+q*32}")
                k.e(f"s_xor_b32 s46, s28, {xs}", "s_mul_i32 s46, s46, 40960", "s_waitcnt lgkmcnt(0)")
                for ws in range(2):
                    A = acc[xs][ws]
                    k.e(f"s_xor_b32 s48, s27, {ws}", "s_lshl_b32 s48, s48, 9", "s_add_u32 s48, s48, s46")
                    for p in range(2):
                        o = out + 4*(n % 4); n += 1
                        for j in range(8):
                            r = 8*p+j
                            k.e(f"v_mul_f32 v{A+r}, v{R+r}, v{A+r}", f"v_fma_f32 v{A+r}, -v{M+r}, v{Cn[ws]}, v{A+r}")
                        for j in range(4):
                            k.e(f"v_cvt_pk_bf16_f32 v{o+j}, v{A+8*p+2*j}, v{A+8*p+2*j+1}")
                        k.e(f"s_add_u32 s47, s48, {VT8 + p*20480}", f"buffer_store_dwordx4 {v(o,4)}, v{T[1]}, s[20:23], s47 offen")
        k.e("s_endpgm")
    loop(False)
    loop(True)
    k.label("end"); k.e("s_endpgm")
    return k

def k2_attn(NB=4):
    k = Kernel("k2_kernel", 256, 512, 73728+64)
    al = Alloc(1)
    T = [al() for _ in range(7)]
    O = [al(16) for _ in range(4)]
    Sx = [al(16) for _ in range(2)]
    P = al(8)
    Q1 = [al(4) for _ in range(4)]; Q2 = [al(2) for _ in range(4)]
    K1 = [al(4) for _ in range(NB)]; K2 = [al(2) for _ in range(NB)]
    V = [al(8) for _ in range(NB)]
    vK1, vK2, vV, vQ1, vQ2 = al(), al(), al(), al(), al()
    MX = [al() for _ in range(4)]
    k.nv = al.p
    k.e("s_load_dwordx2 s[4:5], s[0:1], 80", "s_cmp_ge_u32 s2, 256", f"s_cbranch_scc1 {k.L('end')}")
    k.e("s_and_b32 s12, s2, 7", "s_lshl_b32 s12, s12, 2", "s_bfe_u32 s13, s2, 0x20003", "s_add_u32 s12, s12, s13", "s_lshr_b32 s13, s2, 5")
    waveid(k, 14, T[0])
    k.e("v_and_b32 v0, 63, v0", "s_and_b32 s15, s14, 1", "s_lshr_b32 s16, s14, 1",
        "s_and_b32 s17, s12, 1", "s_lshr_b32 s18, s12, 1", "s_mul_i32 s18, s18, 5", "s_mul_i32 s19, s17, 3", "s_add_u32 s19, s19, s18")
    l32, hf = T[0], T[1]
    k.e(f"v_and_b32 v{l32}, 31, v0", f"v_lshrrev_b32 v{hf}, 5, v0")
    k.e("s_lshl_b32 s31, s13, 8", "s_lshl_b32 s32, s15, 7", "s_add_u32 s31, s31, s32",
        f"v_add_u32 v{T[2]}, s19, v{hf}", f"v_lshlrev_b32 v{T[2]}, 11, v{T[2]}", f"v_add_u32 v{T[2]}, v{T[2]}, v{l32}",
        f"v_add_lshl_u32 v{vQ1}, v{T[2]}, s31, 4",
        "s_add_u32 s32, s18, 2", "s_lshl_b32 s32, s32, 11", f"v_add_u32 v{T[3]}, s32, v{l32}",
        f"v_add_lshl_u32 v{vQ2}, v{T[3]}, s31, 4", "s_lshl_b32 s33, s17, 3", f"v_add_u32 v{vQ2}, s33, v{vQ2}")
    k.e(f"s_mov_b32 s34, {80*2048}", f"v_add_lshl_u32 v{vK1}, v{T[2]}, s34, 4", f"v_add_lshl_u32 v{vK2}, v{T[3]}, s34, 4", f"v_add_u32 v{vK2}, s33, v{vK2}")
    k.e(f"v_bfe_u32 v{T[2]}, v0, 2, 1", f"v_lshlrev_b32 v{T[2]}, 3, v{T[2]}", f"v_bfe_u32 v{T[3]}, v0, 3, 1", f"v_lshl_add_u32 v{T[2]}, v{T[3]}, 2, v{T[2]}",
        f"v_and_b32 v{T[3]}, 3, v0", "s_lshl_b32 s35, s17, 2", f"v_add3_u32 v{T[2]}, v{T[2]}, v{T[3]}, s35",
        "s_lshl_b32 s35, s17, 4", f"v_subrev_u32 v{T[3]}, s35, v{l32}",
        f"v_cmp_gt_u32 vcc, 16, v{l32}", "s_nop 1", f"v_cndmask_b32 v{T[2]}, v{T[3]}, v{T[2]}, vcc",
        f"v_mul_u32_u24 v{T[3]}, 640, v{hf}", "s_mul_i32 s35, s12, 20", f"v_add3_u32 v{T[2]}, v{T[2]}, v{T[3]}, s35", f"v_lshlrev_b32 v{vV}, 4, v{T[2]}",
        f"v_add_u32 v{vV}, {VT8}, v{vV}")
    k.e("s_mov_b32 s24, 0x000fffff", "s_mov_b32 s25, 0x000fffff", "s_mov_b32 s26, -1", "s_mov_b32 s27, 0", "s_mov_b32 s29, 0")
    for b in range(NB):
        for i in range(8): k.e(f"v_mov_b32 v{V[b]+i}, 0x3f803f80")
        k.e(f"v_mov_b32 v{K2[b]}, 0x3f803f80", f"v_mov_b32 v{K2[b]+1}, 0x00003f80")
    for j in range(4): k.e(f"v_mov_b32 v{Q2[j]}, 0", f"v_mov_b32 v{Q2[j]+1}, 0")
    k.e("s_waitcnt lgkmcnt(0)", srd(8, 4, WS_BYTES))
    for j in range(4):
        k.e(f"s_add_u32 s36, s16, {j}", "s_and_b32 s36, s36, 3", f"s_lshl_b32 s{40+j}, s36, 9", f"buffer_load_dwordx4 {v(Q1[j],4)}, v{vQ1}, s[8:11], s{40+j} offen")
    k.e(f"buffer_load_dwordx4 {v(K1[NB-1],4)}, v{vK1}, s[8:11], 0 offen", "s_mov_b64 exec, s[26:27]")
    for j in range(4):
        k.e(f"buffer_load_dwordx2 {v(Q2[j],2)}, v{vQ2}, s[8:11], s{40+j} offen")
    k.e(f"buffer_load_dwordx2 {v(K2[NB-1],2)}, v{vK2}, s[8:11], 0 offen", "s_mov_b64 exec, -1")
    def burst(b):
        return ["s_and_b32 s20, s20, 15", "s_add_u32 s23, s20, s37", "s_lshl_b32 s21, s23, 9", "s_mul_i32 s22, s23, 40960", "s_add_u32 s23, s22, 20480", "s_add_u32 s20, s20, 1",
                f"buffer_load_dwordx4 {v(K1[b],4)}, v{vK1}, s[8:11], s21 offen", "s_mov_b64 exec, s[26:27]",
                f"buffer_load_dwordx2 {v(K2[b],2)}, v{vK2}, s[8:11], s21 offen", "s_mov_b64 exec, s[24:25]",
                f"buffer_load_dwordx4 {v(V[b],4)}, v{vV}, s[8:11], s22 offen", f"buffer_load_dwordx4 {v(V[b]+4,4)}, v{vV}, s[8:11], s23 offen", "s_mov_b64 exec, -1"]
    qk1 = lambda sb, kb, qt: f"v_mfma_f32_32x32x16_bf16 {v(Sx[sb],16)}, {v(K1[kb],4)}, {v(Q1[qt],4)}, 0"
    qk2 = lambda sb, kb, qt: f"v_mfma_f32_32x32x8_bf16 {v(Sx[sb],16)}, {v(K2[kb],2)}, {v(Q2[qt],2)}, {v(Sx[sb],16)}"
    pv = lambda half, kb, qt: f"v_mfma_f32_32x32x16_bf16 {v(O[qt],16)}, {v(V[kb]+4*half,4)}, {v(P+4*half,4)}, {v(O[qt],16)}"
    def maxtree(sb, dst, first):
        r = []
        s_ = Sx[sb]
        if first:
            r.append(f"v_max3_f32 v{dst}, v{s_}, v{s_+1}, v{s_+2}")
            for i in range(3, 15, 2): r.append(f"v_max3_f32 v{dst}, v{dst}, v{s_+i}, v{s_+i+1}")
            r.append(f"v_max_f32 v{dst}, v{dst}, v{s_+15}")
        else:
            for i in range(0, 16, 2): r.append(f"v_max3_f32 v{dst}, v{dst}, v{s_+i}, v{s_+i+1}")
        return r
    k.e("s_lshl_b32 s37, s16, 4", "s_lshl_b32 s20, s13, 1")
    for b in range(NB-1): k.e(burst(b))
    k.e(f"s_waitcnt vmcnt({4*(NB-1)})")
    for j in range(4):
        k.e(qk1(j % 2, NB-1, j), qk2(j % 2, NB-1, j), "s_nop 15", maxtree(j % 2, MX[j], True))
    k.label("setm")
    k.e("s_mov_b32 s38, 0xffff0000")
    for j in range(4):
        k.e(f"v_mov_b32 v{T[2]}, v{MX[j]}", "s_nop 1", f"v_permlane32_swap_b32 v{MX[j]}, v{T[2]}", "s_nop 1", f"v_max_f32 v{T[2]}, v{MX[j]}, v{T[2]}",
            f"v_sub_f32 v{T[2]}, 0, v{T[2]}", f"v_and_b32 v{T[3]}, s38, v{T[2]}", f"v_sub_f32 v{T[2]}, v{T[2]}, v{T[3]}", f"v_and_b32 v{T[4]}, s38, v{T[2]}",
            f"v_sub_f32 v{T[2]}, v{T[2]}, v{T[4]}", f"v_lshrrev_b32 v{T[3]}, 16, v{T[3]}", f"v_or_b32 v{T[3]}, v{T[3]}, v{T[4]}", f"v_lshrrev_b32 v{T[2]}, 16, v{T[2]}",
            "s_not_b64 exec, s[26:27]", f"v_mov_b32 v{Q2[j]}, v{T[3]}", f"v_mov_b32 v{Q2[j]+1}, v{T[2]}", "s_mov_b64 exec, -1")
    for j in range(4):
        for i in range(16): k.e(f"v_mov_b32 v{O[j]+i}, 0")
    for i in range(4, 8): k.e(f"v_mov_b32 v{P+i}, 0")
    k.e(f"s_waitcnt vmcnt({4*(NB-2)})", qk1(0, 0, 0), qk2(0, 0, 0), f"s_mov_b32 s28, {16//NB}", "s_nop 7")
    k.e(".p2align 6")
    k.label("loop")
    ex = lambda sb, i: f"v_exp_f32 v{Sx[sb]+i}, v{Sx[sb]+i}"
    cv = lambda sb, i: f"v_cvt_pk_bf16_f32 v{P+i}, v{Sx[sb]+2*i}, v{Sx[sb]+2*i+1}"
    NT = 4*NB
    for n in range(NT):
        kt, qt = n//4, n % 4
        n1 = (n+1) % NT; n0 = (n-1) % NT
        sb = n % 2
        if qt == 3: k.e(f"s_waitcnt vmcnt({4*(NB-2)})")
        k.e(qk1(1-sb, n1//4, n1 % 4))
        k.e([ex(sb, i) for i in range(0, 4)])
        k.e(pv(1, n0//4, n0 % 4))
        if qt == 0: k.e(burst((kt-1) % NB))
        k.e(cv(sb, 0), cv(sb, 1))
        k.e([ex(sb, i) for i in range(4, 8)])
        k.e(qk2(1-sb, n1//4, n1 % 4))
        k.e(cv(sb, 2), cv(sb, 3))
        k.e([ex(sb, i) for i in range(8, 12)])
        k.e(pv(0, kt, qt))
        k.e(cv(sb, 4), cv(sb, 5))
        k.e([ex(sb, i) for i in range(12, 16)])
        k.e(cv(sb, 6), cv(sb, 7))
    k.e("s_sub_u32 s28, s28, 1", "s_cmp_lg_u32 s28, 0", f"s_cbranch_scc1 {k.L('loop')}")
    k.e(pv(1, NB-1, 3))
    wa_ = [T[2], T[3], T[4]]
    k.e(f"v_lshlrev_b32 v{T[5]}, 4, v0", "s_lshl_b32 s44, s15, 2")
    for j in range(1, 4):
        k.e(f"s_add_u32 s36, s16, {j}", "s_and_b32 s36, s36, 3", "s_add_u32 s36, s36, s44", "s_mul_i32 s36, s36, 9216", f"s_add_u32 s36, s36, {(j-1)*3072}", f"v_add_u32 v{wa_[j-1]}, s36, v{T[5]}")
    k.e("s_add_u32 s36, s16, s44", "s_mul_i32 s36, s36, 9216", f"v_add_u32 v{T[5]}, s36, v{T[5]}")
    k.e(f"s_mov_b32 s45, {hex(f2u(2.0**64))}", "s_nop 7")
    for j in range(4):
        k.e(f"v_cmp_nge_f32 s[{46+2*j}:{47+2*j}], s45, v{O[j]+12}")
    for j in range(1, 4):
        for q in range(3): k.e(f"ds_write_b128 v{wa_[j-1]}, {v(O[j]+4*q,4)} offset:{q*1024}")
    k.e("s_or_b64 s[46:47], s[46:47], s[48:49]", "s_or_b64 s[50:51], s[50:51], s[52:53]", "s_or_b64 s[46:47], s[46:47], s[50:51]", "s_cselect_b32 s46, 1, 0",
        "s_lshl_b32 s47, s14, 2", "s_add_u32 s47, s47, 73728", f"v_mov_b32 v{T[2]}, s47", f"v_mov_b32 v{T[3]}, s46", f"ds_write_b32 v{T[2]}, v{T[3]}",
        "s_waitcnt vmcnt(0) lgkmcnt(0)", "s_barrier")
    FL = Sx[0]
    k.e(f"v_mov_b32 v{T[2]}, 73728", f"ds_read_b128 {v(FL,4)}, v{T[2]}", f"ds_read_b128 {v(FL+4,4)}, v{T[2]} offset:16")
    for j in range(1, 4):
        for q in range(3): k.e(f"ds_read_b128 {v(O[j]+4*q,4)}, v{T[5]} offset:{(j-1)*3072+q*1024}")
    k.e("s_waitcnt lgkmcnt(9)", f"v_or3_b32 v{FL}, v{FL}, v{FL+1}, v{FL+2}", f"v_or3_b32 v{FL}, v{FL}, v{FL+3}, v{FL+4}", f"v_or3_b32 v{FL}, v{FL}, v{FL+5}, v{FL+6}", f"v_or_b32 v{FL}, v{FL}, v{FL+7}",
        "s_nop 0", f"v_readfirstlane_b32 s46, v{FL}", "s_nop 3", "s_andn2_b32 s46, s46, s29", f"s_cbranch_scc1 {k.L('redo')}")
    k.e("s_waitcnt lgkmcnt(0)")
    for i in range(12):
        k.e(f"v_add_f32 v{O[0]+i}, v{O[0]+i}, v{O[1]+i}", f"v_add_f32 v{O[2]+i}, v{O[2]+i}, v{O[3]+i}")
    for i in range(12):
        k.e(f"v_add_f32 v{O[0]+i}, v{O[0]+i}, v{O[2]+i}")
    k.e(f"v_mov_b32 v{T[2]}, v{O[0]+8}", f"v_mov_b32 v{T[3]}, v{O[0]+8}", "s_nop 1", f"v_permlane32_swap_b32 v{T[2]}, v{T[3]}", "s_nop 1", f"v_rcp_f32 v{T[3]}, v{T[3]}", "s_nop 0")
    for i in range(12): k.e(f"v_mul_f32 v{O[0]+i}, v{O[0]+i}, v{T[3]}")
    for i in range(6): k.e(f"v_cvt_pk_bf16_f32 v{P+i}, v{O[0]+2*i}, v{O[0]+2*i+1}")
    k.e(f"s_add_u32 s40, s40, {O8}", f"buffer_store_dwordx4 {v(P,4)}, v{vQ1}, s[8:11], s40 offen", "s_mov_b64 exec, s[26:27]", f"buffer_store_dwordx2 {v(P+4,2)}, v{vQ2}, s[8:11], s40 offen")
    k.label("end"); k.e("s_endpgm")
    k.label("redo")
    k.e("s_waitcnt lgkmcnt(0)", "s_barrier", "s_mov_b32 s29, 1", "s_not_b64 exec, s[26:27]")
    for j in range(4): k.e(f"v_mov_b32 v{Q2[j]}, 0", f"v_mov_b32 v{Q2[j]+1}, 0")
    k.e("s_mov_b64 exec, -1")
    for j in range(4): k.e(f"v_mov_b32 v{MX[j]}, 0xff800000")
    k.e("s_mov_b32 s21, 0")
    k.label("mx")
    k.e(f"buffer_load_dwordx4 {v(K1[NB-1],4)}, v{vK1}, s[8:11], s21 offen", "s_mov_b64 exec, s[26:27]", f"buffer_load_dwordx2 {v(K2[NB-1],2)}, v{vK2}, s[8:11], s21 offen", "s_mov_b64 exec, -1", "s_waitcnt vmcnt(0)")
    for j in range(4):
        k.e(qk1(j % 2, NB-1, j), qk2(j % 2, NB-1, j), "s_nop 15", maxtree(j % 2, MX[j], False))
    k.e("s_add_u32 s21, s21, 512", f"s_cmp_lt_u32 s21, {64*512}", f"s_cbranch_scc1 {k.L('mx')}")
    k.e("s_lshl_b32 s20, s13, 1")
    for b in range(NB-1): k.e(burst(b))
    k.e(f"s_branch {k.L('setm')}")
    return k

def gemm_direct(name, grid, MA, NBf, nsteps, Aoff, AR, Boff, BR, mapcode, epi, loads, DEPTH=3):
    TM = 16*MA; TN = 16*NBf; TMP = TM+4
    k = Kernel(name, grid, 256, 4*TN*TMP*4)
    al = Alloc(1)
    T = [al() for _ in range(7)]
    acc = [[al(4) for _ in range(NBf)] for _ in range(MA)]
    Af = [[al(4) for _ in range(MA)] for _ in range(DEPTH)]
    Bf = [[al(4) for _ in range(NBf)] for _ in range(DEPTH)]
    vA, vB = al(), al()
    k.nv = al.p
    k.e("s_load_dwordx2 s[4:5], s[0:1], 80", loads, f"s_cmp_ge_u32 s2, {grid}", f"s_cbranch_scc1 {k.L('end')}")
    k.e("s_and_b32 s16, s2, 7", "s_lshr_b32 s17, s2, 3", mapcode)
    waveid(k, 14, T[0])
    k.e(f"v_and_b32 v{T[0]}, 15, v0", f"v_bfe_u32 v{T[1]}, v0, 4, 2",
        f"s_mul_i32 s19, s12, {TM}", f"s_mul_i32 s20, s13, {TN}",
        f"v_mul_u32_u24 v{T[2]}, {AR}, v{T[1]}", f"v_add3_u32 v{T[2]}, v{T[2]}, v{T[0]}, s19", f"v_lshlrev_b32 v{vA}, 4, v{T[2]}", f"v_add_u32 v{vA}, {Aoff}, v{vA}",
        f"v_mul_u32_u24 v{T[2]}, {BR}, v{T[1]}", f"v_add3_u32 v{T[2]}, v{T[2]}, v{T[0]}, s20", f"v_lshlrev_b32 v{vB}, 4, v{T[2]}", f"v_add_u32 v{vB}, {Boff}, v{vB}")
    k.e("s_add_u32 s21, s18, s14")
    k.e("s_waitcnt lgkmcnt(0)", srd(8, 4, WS_BYTES))
    def ld(b):
        r = [f"s_cmp_ge_u32 s21, {nsteps}", f"s_cselect_b32 s22, {nsteps}, 0", "s_sub_u32 s21, s21, s22", f"s_mul_i32 s22, s21, {4*AR*16}", f"s_mul_i32 s23, s21, {4*BR*16}", "s_add_u32 s21, s21, 4"]
        for i in range(max(MA, NBf)):
            if i < NBf: r.append(f"buffer_load_dwordx4 {v(Bf[b][i],4)}, v{vB}, s[8:11], s23 offen offset:{i*256}")
            if i < MA: r.append(f"buffer_load_dwordx4 {v(Af[b][i],4)}, v{vA}, s[8:11], s22 offen offset:{i*256}")
        return r
    n = nsteps//4
    for j in range(min(DEPTH, n)): k.e(ld(j))
    for j in range(n):
        b = j % DEPTH
        out = min(DEPTH-1, n-1-j)*(MA+NBf)
        k.e(f"s_waitcnt vmcnt({out})")
        for i in range(MA):
            for c in range(NBf):
                src = "0" if j == 0 else v(acc[i][c], 4)
                k.e(f"v_mfma_f32_16x16x32_bf16 {v(acc[i][c],4)}, {v(Af[b][i],4)}, {v(Bf[b][c],4)}, {src}")
        if j + DEPTH < n: k.e(ld(b))
    k.e(f"s_mul_i32 s22, s14, {TN*TMP*4}", f"v_mul_u32_u24 v{T[2]}, {TMP*4}, v{T[0]}", f"v_lshl_add_u32 v{T[2]}, v{T[1]}, 4, v{T[2]}", f"v_add_u32 v{T[2]}, s22, v{T[2]}", "s_nop 7")
    for i in range(MA):
        for c in range(NBf):
            k.e(f"ds_write_b128 v{T[2]}, {v(acc[i][c],4)} offset:{c*16*TMP*4 + i*64}")
    k.e("s_waitcnt lgkmcnt(0)", "s_barrier")
    epi(k, T, acc[0][0], TM, TN, TMP)
    k.label("end"); k.e("s_endpgm")
    return k

def read_sum(k, addr, R, TN, TMP):
    W = TN*TMP*4
    assert 3*W + 16 < 65536
    for w in range(4):
        k.e(f"ds_read_b128 {v(R+8*w,4)}, v{addr} offset:{w*W}", f"ds_read_b128 {v(R+8*w+4,4)}, v{addr} offset:{w*W+16}")
def sum4(k, R):
    for i in range(8): k.e(f"v_add_f32 v{R+i}, v{R+i}, v{R+8+i}", f"v_add_f32 v{R+16+i}, v{R+16+i}, v{R+24+i}")
    for i in range(8): k.e(f"v_add_f32 v{R+i}, v{R+i}, v{R+16+i}")

def epi_rowmajor(resid_srd_code, dst_srd_code, resid_off, dst_off, bias):
    def epi(k, T, R0, TM, TN, TMP):
        k.e(resid_srd_code, dst_srd_code)
        k.e(f"s_mov_b32 s34, {magic(10)}", "s_mov_b32 s35, 0xffff0000")
        for r in range(3):
            R = R0 + 40*r; X = R+32; Bv = R+36; G = R+37
            if r == 2:
                k.e("s_cmp_ge_u32 s14, 2", f"s_cbranch_scc1 {k.L('skip2')}")
            k.e(f"v_add_u32 v{T[2]}, {256*r}, v0", f"v_mul_hi_u32 v{T[3]}, v{T[2]}, s34", f"v_mul_u32_u24 v{T[4]}, 10, v{T[3]}", f"v_sub_u32 v{T[4]}, v{T[2]}, v{T[4]}",
                f"v_mul_u32_u24 v{T[5]}, {TMP*4}, v{T[3]}", f"v_lshl_add_u32 v{T[5]}, v{T[4]}, 5, v{T[5]}")
            read_sum(k, T[5], R, TN, TMP)
            k.e(f"v_add_u32 v{T[3]}, s20, v{T[3]}", f"v_mul_u32_u24 v{G}, 1280, v{T[3]}", f"v_lshl_add_u32 v{G}, v{T[4]}, 4, v{G}", "s_lshl_b32 s36, s19, 1", f"v_add_u32 v{G}, s36, v{G}")
            k.e(f"s_mov_b32 s36, {resid_off}", f"buffer_load_dwordx4 {v(X,4)}, v{G}, s[24:27], s36 offen")
            if bias:
                k.e(f"v_lshlrev_b32 v{T[3]}, 1, v{T[3]}", f"buffer_load_ushort v{Bv}, v{T[3]}, s[40:43], 0 offen")
        k.label("skip2")
        for r in range(3):
            R = R0 + 40*r; X = R+32; Bv = R+36; G = R+37
            if r == 2:
                k.e("s_cmp_ge_u32 s14, 2", f"s_cbranch_scc1 {k.L('end')}")
            if r == 0: k.e("s_waitcnt vmcnt(0) lgkmcnt(0)")
            sum4(k, R)
            if bias:
                k.e(f"v_lshlrev_b32 v{Bv}, 16, v{Bv}")
                for i in range(8): k.e(f"v_add_f32 v{R+i}, v{R+i}, v{Bv}")
            for i in range(4):
                k.e(f"v_lshlrev_b32 v{T[2]}, 16, v{X+i}", f"v_and_b32 v{T[3]}, s35, v{X+i}", f"v_add_f32 v{R+2*i}, v{R+2*i}, v{T[2]}", f"v_add_f32 v{R+2*i+1}, v{R+2*i+1}, v{T[3]}")
            for i in range(4): k.e(f"v_cvt_pk_bf16_f32 v{X+i}, v{R+2*i}, v{R+2*i+1}")
            k.e(f"s_mov_b32 s36, {dst_off}", f"buffer_store_dwordx4 {v(X,4)}, v{G}, s[28:31], s36 offen")
    return epi

def k3_oproj():
    mp = ["s_lshr_b32 s12, s17, 2", "s_lshl_b32 s13, s16, 2", "s_and_b32 s18, s17, 3", "s_add_u32 s13, s13, s18",
          "s_add_u32 s18, s18, s12", "s_lshl_b32 s18, s18, 2", "s_cmp_ge_u32 s18, 40", "s_cselect_b32 s22, 40, 0", "s_sub_u32 s18, s18, s22", "s_cmp_ge_u32 s18, 20", "s_cselect_b32 s22, 20, 0", "s_sub_u32 s18, s18, s22"]
    epi = epi_rowmajor(srd(24, 6, 2048*640*2), srd(28, 4, WS_BYTES), 0, HH, False)
    return gemm_direct("k3_kernel", 256, 5, 4, 20, WO8, 640, O8, 2048, mp, epi, ["s_load_dwordx2 s[6:7], s[0:1], 0"])

def k5_mlp2():
    mp = ["s_and_b32 s12, s16, 1", "s_lshl_b32 s12, s12, 2", "s_and_b32 s18, s17, 3", "s_add_u32 s12, s12, s18",
          "s_lshr_b32 s13, s16, 1", "s_lshl_b32 s13, s13, 3", "s_lshr_b32 s22, s17, 2", "s_add_u32 s13, s13, s22",
          "s_mul_i32 s18, s18, 3", "s_add_u32 s18, s18, s22", "s_lshl_b32 s18, s18, 2", "s_cmp_ge_u32 s18, 48", "s_cselect_b32 s22, 48, 0", "s_sub_u32 s18, s18, s22"]
    epi = epi_rowmajor(srd(24, 4, WS_BYTES), srd(28, 38, 2048*640*2) + srd(40, 6, 4096), HH, 0, True)
    return gemm_direct("k5_kernel", 256, 5, 4, 48, U8, 640, W28, 2048, mp, epi, ["s_load_dwordx2 s[6:7], s[0:1], 56", "s_load_dwordx2 s[38:39], s[0:1], 64"])

def k4_mlp1():
    mp = [f"s_mul_hi_u32 s22, s17, {magic(5)}", "s_mul_i32 s18, s22, 5", "s_sub_u32 s18, s17, s18",
          "s_and_b32 s13, s16, 1", "s_mul_i32 s13, s13, 5", "s_add_u32 s13, s13, s18",
          "s_lshr_b32 s12, s16, 1", "s_mul_i32 s12, s12, 6", "s_add_u32 s12, s12, s22",
          "s_mul_i32 s18, s18, 3", "s_lshl_b32 s22, s22, 1", "s_add_u32 s18, s18, s22", "s_lshl_b32 s18, s18, 2", "s_and_b32 s18, s18, 63"]
    def epi(k, T, R0, TM, TN, TMP):
        k.e(srd(24, 6, 3072), "s_mov_b32 s35, 0xffff0000")
        c1 = -2.0*math.sqrt(2.0/math.pi)*math.log2(math.e); c3 = c1*0.044715
        k.e(f"s_mov_b32 s36, {hex(f2u(c1))}", f"s_mov_b32 s37, {hex(f2u(c3))}")
        k.e(f"v_and_b32 v{T[3]}, 63, v0", f"v_mul_u32_u24 v{T[5]}, {TMP*4}, v{T[3]}", "s_lshl_b32 s38, s14, 5", f"v_add_u32 v{T[5]}, s38, v{T[5]}", f"v_add_u32 v{T[6]}, 128, v{T[5]}")
        k.e(f"v_add_lshl_u32 v{T[4]}, v{T[3]}, s20, 4")
        for r in range(2):
            R = R0 + 40*r; X = R+32
            read_sum(k, T[5+r], R, TN, TMP)
            k.e(f"s_add_u32 s38, s14, {4*r}", "s_lshl_b32 s38, s38, 3", "s_add_u32 s38, s38, s19", "s_lshl_b32 s39, s38, 1", f"buffer_load_dwordx4 {v(X,4)}, off, s[24:27], s39",
                "s_lshr_b32 s38, s38, 3", f"s_mul_i32 s{44+r}, s38, 10240", f"s_add_u32 s{44+r}, s{44+r}, {U8}")
        k.e("s_waitcnt vmcnt(0) lgkmcnt(0)")
        for r in range(2):
            R = R0 + 40*r; X = R+32
            sum4(k, R)
            for i in range(4):
                k.e(f"v_lshlrev_b32 v{T[2]}, 16, v{X+i}", f"v_and_b32 v{T[3]}, s35, v{X+i}", f"v_add_f32 v{R+2*i}, v{R+2*i}, v{T[2]}", f"v_add_f32 v{R+2*i+1}, v{R+2*i+1}, v{T[3]}")
            k.e(f"v_mov_b32 v{T[2]}, s36")
            for i in range(8):
                k.e(f"v_mul_f32 v{R+8+i}, v{R+i}, v{R+i}", f"v_fma_f32 v{R+8+i}, v{R+8+i}, s37, v{T[2]}", f"v_mul_f32 v{R+8+i}, v{R+8+i}, v{R+i}")
            for i in range(8): k.e(f"v_exp_f32 v{R+8+i}, v{R+8+i}")
            for i in range(8): k.e(f"v_add_f32 v{R+8+i}, 1.0, v{R+8+i}")
            for i in range(8): k.e(f"v_rcp_f32 v{R+8+i}, v{R+8+i}")
            for i in range(8): k.e(f"v_mul_f32 v{R+i}, v{R+i}, v{R+8+i}")
            for i in range(4): k.e(f"v_cvt_pk_bf16_f32 v{X+i}, v{R+2*i}, v{R+2*i+1}")
            k.e(f"buffer_store_dwordx4 {v(X,4)}, v{T[4]}, s[8:11], s{44+r} offen")
    return gemm_direct("k4_kernel", 240, 4, 4, 64, W18, 1536, HN8, 640, mp, epi, ["s_load_dwordx2 s[6:7], s[0:1], 40"])

def k3b_ln():
    k = Kernel("k3b_kernel", 256, 512, 10240); k.nv = 40
    k.e("s_load_dwordx2 s[4:5], s[0:1], 80", "s_cmp_ge_u32 s2, 256", f"s_cbranch_scc1 {k.L('end')}")
    waveid(k, 14, 1)
    k.e("v_and_b32 v1, 63, v0", "v_lshlrev_b32 v2, 2, v1", "s_lshl_b32 s15, s2, 3", "s_add_u32 s15, s15, s14", "s_mul_i32 s15, s15, 1280", f"s_add_u32 s15, s15, {HH}")
    k.e("s_waitcnt lgkmcnt(0)", srd(8, 4, WS_BYTES), "s_mov_b32 s35, 0xffff0000")
    for i in range(5): k.e(f"buffer_load_dword v{8+i}, v2, s[8:11], s15 offen offset:{i*256}")
    k.e("s_waitcnt vmcnt(0)")
    for i in range(5): k.e(f"v_lshlrev_b32 v{16+2*i}, 16, v{8+i}", f"v_and_b32 v{17+2*i}, s35, v{8+i}")
    def wsum(r):
        for ctl in ("quad_perm:[1,0,3,2]", "quad_perm:[2,3,0,1]", "row_half_mirror", "row_mirror"):
            k.e("s_nop 1", f"v_add_f32_dpp v{r}, v{r}, v{r} {ctl} row_mask:0xf bank_mask:0xf")
        k.e(f"v_mov_b32 v5, v{r}", "s_nop 1", f"v_permlane16_swap_b32 v{r}, v5", "s_nop 1", f"v_add_f32 v{r}, v{r}, v5")
        k.e(f"v_mov_b32 v5, v{r}", "s_nop 1", f"v_permlane32_swap_b32 v{r}, v5", "s_nop 1", f"v_add_f32 v{r}, v{r}, v5")
    k.e("v_add_f32 v3, v16, v17")
    for i in range(2, 10): k.e(f"v_add_f32 v3, v3, v{16+i}")
    wsum(3)
    k.e(f"v_mul_f32 v3, {hex(f2u(1.0/640))}, v3")
    for i in range(10): k.e(f"v_sub_f32 v{16+i}, v{16+i}, v3")
    k.e("v_mul_f32 v4, v16, v16")
    for i in range(1, 10): k.e(f"v_fmac_f32 v4, v{16+i}, v{16+i}")
    wsum(4)
    k.e(f"v_mul_f32 v4, {hex(f2u(1.0/640))}, v4", f"v_add_f32 v6, {hex(f2u(1e-5))}, v4", "v_rsq_f32 v6, v6", "s_nop 0", "v_mul_f32 v4, v4, v6", "v_mul_f32 v4, v4, v6",
        f"v_add_f32 v4, {hex(f2u(1e-5))}, v4", "v_rsq_f32 v4, v4", "s_nop 0", "v_mul_f32 v4, v4, v6")
    for i in range(10): k.e(f"v_mul_f32 v{16+i}, v{16+i}, v4")
    for i in range(5): k.e(f"v_cvt_pk_bf16_f32 v{8+i}, v{16+2*i}, v{17+2*i}")
    k.e("v_lshlrev_b32 v2, 5, v1", "s_lshl_b32 s16, s14, 1", "v_add_u32 v2, s16, v2")
    for i in range(5): k.e(f"ds_write_b16 v2, v{8+i} offset:{i*2048}", f"ds_write_b16_d16_hi v2, v{8+i} offset:{i*2048+16}")
    k.e("s_waitcnt lgkmcnt(0)", "s_barrier", "v_lshlrev_b32 v2, 4, v0", "s_mul_i32 s16, s2, 10240", f"s_add_u32 s16, s16, {HN8}", "ds_read_b128 v[8:11], v2", "s_waitcnt lgkmcnt(0)",
        "buffer_store_dwordx4 v[8:11], v2, s[8:11], s16 offen", "s_cmp_ge_u32 s14, 2", f"s_cbranch_scc1 {k.L('end')}",
        "ds_read_b128 v[12:15], v2 offset:8192", "s_add_u32 s16, s16, 8192", "s_waitcnt lgkmcnt(0)", "buffer_store_dwordx4 v[12:15], v2, s[8:11], s16 offen")
    k.label("end"); k.e("s_endpgm")
    return k

if __name__ == "__main__":
    import sys
    ks = [k0_retile(), k1_qkv(), k2_attn(), k3_oproj(), k3b_ln(), k4_mlp1(), k5_mlp2()]
    out = sys.argv[1] if len(sys.argv) > 1 else "sequential_preLN__mha_block__mixer_token_mlp__prompt.s"
    open(out, "w").write(assemble_file(ks))
    for k in ks: print(k.name, "vgpr", k.nv, "lines", len(k.lines))
```

```python
def v(i, n=1):
    return f"v{i}" if n == 1 else f"v[{i}:{i+n-1}]"
def a(i, n=1):
    return f"a{i}" if n == 1 else f"a[{i}:{i+n-1}]"
def s(i, n=1):
    return f"s{i}" if n == 1 else f"s[{i}:{i+n-1}]"

DIAG_OFF = 200<<20
DIAG_STRIDE = 1<<19
class Alloc:
    def __init__(self, start=0, limit=256):
        self.p = start; self.limit = limit
    def __call__(self, n=1, align=None):
        if align is None:
            align = 1 if n == 1 else (2 if n < 4 else 4)
        self.p = (self.p + align - 1) // align * align
        r = self.p
        self.p += n
        assert self.p <= self.limit, "out of registers"
        return r

class Kernel:
    def __init__(self, name, grid, block, lds):
        self.name = name; self.grid = grid; self.block = block; self.lds = lds
        self.lines = []
        self.nv = 256; self.ns = 96; self.acc = None
    def e(self, *ls):
        for l in ls:
            if isinstance(l, (list, tuple)):
                self.e(*l)
            else:
                for x in l.split("\n"):
                    x = x.strip()
                    if x: self.lines.append(x)
    def L(self, n):
        return f"L_{self.name}_{n}"
    def label(self, n):
        self.lines.append(self.L(n) + ":")
    def text(self, diag=None):
        lines = self.lines
        if diag is not None:
            pre = ["s_memrealtime s[88:89]", "s_memtime s[76:77]", "v_lshrrev_b32 v1, 6, v0", "s_nop 0", "v_readfirstlane_b32 s94, v1", "s_waitcnt lgkmcnt(0)"] + [f"s_mov_b32 s{r}, s88" for r in (80,82,84,86)]
            post = ["s_waitcnt vmcnt(0) lgkmcnt(0)", "s_memrealtime s[90:91]", "s_memtime s[78:79]", "s_load_dwordx2 s[92:93], s[0:1], 80", "s_lshl_b32 s95, s2, 4", "s_add_u32 s95, s95, s94", "s_lshl_b32 s95, s95, 5",
                    f"s_add_u32 s95, s95, {DIAG_OFF + diag*DIAG_STRIDE}", "s_mov_b64 exec, 1", "v_mov_b32 v1, s95", "s_waitcnt lgkmcnt(0)",
                    "v_mov_b32 v4, s88", "v_mov_b32 v5, s90", "v_mov_b32 v6, s80", "v_mov_b32 v7, s82", "v_mov_b32 v8, s84", "v_mov_b32 v9, s86",
                    "global_store_dwordx4 v1, v[4:7], s[92:93]", "s_sub_u32 s78, s78, s76", "v_mov_b32 v10, s78", "v_mov_b32 v11, 0", "global_store_dwordx4 v1, v[8:11], s[92:93] offset:16", "s_endpgm"]
            nl = list(pre)
            for l in lines:
                if l == "s_endpgm": nl += post
                elif l.startswith("STAMP"): nl.append(f"s_memrealtime s[{80+2*int(l[5:])}:{81+2*int(l[5:])}]")
                else: nl.append(l)
            lines = nl
        else:
            lines = [l for l in lines if not l.startswith("STAMP")]
        body = "\n".join((l if l.endswith(":") else "    " + l) for l in lines)
        return f".globl {self.name}\n.p2align 8\n.type {self.name},@function\n{self.name}:\n{body}\n"
    def desc(self):
        nv = self.nv
        acc = self.acc if self.acc is not None else min(256, (nv + 3) // 4 * 4)
        return (f".p2align 6\n.amdhsa_kernel {self.name}\n  .amdhsa_next_free_vgpr {nv}\n  .amdhsa_next_free_sgpr {self.ns}\n"
                f"  .amdhsa_accum_offset {acc}\n  .amdhsa_group_segment_fixed_size 0\n  .amdhsa_kernarg_size 88\n"
                f"  .amdhsa_user_sgpr_count 2\n  .amdhsa_user_sgpr_kernarg_segment_ptr 1\n  .amdhsa_system_sgpr_workgroup_id_x 1\n"
                f".end_amdhsa_kernel\n")

def interleave(main, fill, lead=0):
    out = list(fill[:lead]); fill = fill[lead:]
    n = len(main); m = len(fill); j = 0
    for i, x in enumerate(main):
        out.append(x)
        k = (m * (i + 1) + n - 1) // n
        out.extend(fill[j:k]); j = k
    return out

def srd(d, base, nbytes):
    return [f"s_mov_b32 s{d}, s{base}", f"s_mov_b32 s{d+1}, s{base+1}", f"s_mov_b32 s{d+2}, {hex(nbytes)}", f"s_mov_b32 s{d+3}, 0x00020000"]

HEADER = """; Kernarg layout (88 bytes, ptrs only, base s[0:1]):
"""
def assemble_file(kernels, diag=False):
    t = HEADER
    for k in kernels:
        t += f"; @launch kernel={k.name} grid=({k.grid},1,1) block=({k.block},1,1) lds={k.lds}\n"
    t += '.amdgcn_target "amdgcn-amd-amdhsa--gfx950"\n.text\n'
    for i, k in enumerate(kernels):
        t += k.text(i if diag else None)
    t += '.section .rodata,"a"\n'
    for k in kernels:
        t += k.desc()
    return t
```

```python
from dsl import *
import math, struct
S=2048; D=640; F=1536
VP=648*16
QK8=0; VT8=QK8+161*2048*16; O8=VT8+256*VP; HH=O8+80*2048*16; HN8=HH+2048*1280; U8=HN8+256*640*16
WO8=U8+192*640*16; STATS=WO8+80*640*16; XST=STATS+256*512; WS_END=XST+2048*8
WS_BYTES=268435456
def f2u(x): return struct.unpack("<I", struct.pack("<f", x))[0]
QSCALE = math.log2(math.e)/math.sqrt(20.0)
def magic(d): return (2**32 + d - 1)//d
def waveid(k, sdst, vtmp):
    k.e(f"v_lshrrev_b32 v{vtmp}, 6, v0", "s_nop 0", f"v_readfirstlane_b32 s{sdst}, v{vtmp}")

def k1_qkv(rot=True, sc1=False, LA=2):
    k = Kernel("k1_kernel", 256, 512, 131072+1536)
    EX = 131072
    SC = " sc1" if sc1 else ""
    al = Alloc(1)
    T = [al() for _ in range(7)]
    acc = [[al(16) for _ in range(2)] for _ in range(2)]
    cs = al(16)
    xf = [[al(4) for _ in range(2)] for _ in range(2)]
    wf0 = [al(4) for _ in range(4)]
    wf1 = [al(4) for _ in range(2)]
    ones = al(2)
    xa = [al() for _ in range(4)]
    wa = [al() for _ in range(2)]
    ep = al(56)
    k.nv = al.p
    vx = [acc[0][0]+i for i in range(4)]; vw = [acc[0][0]+4+i for i in range(4)]
    k.e("s_load_dwordx4 s[4:7], s[0:1], 0", "s_load_dwordx4 s[48:51], s[0:1], 72", "s_load_dwordx2 s[10:11], s[0:1], 16")
    k.e("s_cmp_ge_u32 s2, 256", f"s_cbranch_scc1 {k.L('end')}")
    waveid(k, 26, T[0])
    k.e("s_and_b32 s36, s2, 7", "s_lshr_b32 s37, s2, 3",
        "s_lshr_b32 s24, s36, 1", "s_lshl_b32 s24, s24, 2", "s_and_b32 s38, s37, 3", "s_add_u32 s24, s24, s38",
        "s_and_b32 s25, s36, 1", "s_lshl_b32 s25, s25, 3", "s_lshr_b32 s39, s37, 2", "s_add_u32 s25, s25, s39",
        "v_and_b32 v0, 63, v0",
        "s_cmp_ge_u32 s25, 15", f"s_cbranch_scc1 {k.L('side')}",
        "s_cmp_lt_u32 s26, 4", f"s_cbranch_scc1 {k.L('cons')}")
    k.e("s_sub_u32 s26, s26, 4")
    if rot: k.e("s_mul_i32 s29, s38, 3", "s_add_u32 s29, s29, s39", "s_cmp_ge_u32 s29, 10", "s_cselect_b32 s40, 10, 0", "s_sub_u32 s29, s29, s40")
    else: k.e("s_mov_b32 s29, 0")
    k.e(f"v_lshrrev_b32 v{T[0]}, 3, v0", f"v_lshrrev_b32 v{T[1]}, 4, v0", f"v_and_b32 v{T[2]}, 7, v0",
        "s_lshl_b32 s40, s24, 7", "s_lshl_b32 s41, s26, 5", "s_add_u32 s40, s40, s41",
        f"v_add_u32 v{T[0]}, s40, v{T[0]}", f"v_mul_u32_u24 v{T[0]}, 1280, v{T[0]}",
        f"v_xor_b32 v{T[3]}, v{T[2]}, v{T[1]}", f"v_lshl_add_u32 v{vx[0]}, v{T[3]}, 4, v{T[0]}",
        f"v_xor_b32 v{T[3]}, 4, v{T[3]}", f"v_lshl_add_u32 v{vx[1]}, v{T[3]}, 4, v{T[0]}",
        f"v_add_u32 v{vx[2]}, {2*(8*1280-1024)}, v{vx[0]}", f"v_add_u32 v{vx[3]}, {3*(8*1280-1024)}, v{vx[1]}", f"v_add_u32 v{vx[1]}, {8*1280-1024}, v{vx[1]}")
    k.e("s_lshl_b32 s40, s26, 4", f"v_add_u32 v{T[0]}, s40, v{T[1]}", f"v_mul_u32_u24 v{T[0]}, 3840, v{T[0]}",
        f"v_bfe_u32 v{T[2]}, v0, 2, 2", f"v_xor_b32 v{T[2]}, v{T[2]}, v{T[1]}", f"v_lshl_add_u32 v{T[0]}, v{T[2]}, 6, v{T[0]}",
        f"v_and_b32 v{T[2]}, 3, v0", f"v_lshl_add_u32 v{T[0]}, v{T[2]}, 4, v{T[0]}", "s_lshl_b32 s40, s25, 8", f"v_add_u32 v{vw[0]}, s40, v{T[0]}")
    for i in range(1, 4):
        k.e(f"v_add_u32 v{vw[i]}, {i*(4*3840-1024)}, v{vw[0]}")
    k.e("s_lshl_b32 s33, s26, 12", "s_waitcnt lgkmcnt(0)")
    k.e(srd(12, 4, 2048*640*2), srd(16, 6, 640*1920*2))
    def dma():
        r = ["s_lshl_b32 s30, s29, 7", "s_mul_i32 s31, s29, 245760", "s_mov_b32 m0, s33", "s_add_u32 s29, s29, 1"]
        r += [f"buffer_load_dwordx4 v{vx[i]}, s[12:15], s30 offen offset:{i*1024} lds" for i in range(4)]
        r += ["s_add_u32 m0, s33, 65536", "s_cmp_eq_u32 s29, 10"]
        r += [f"buffer_load_dwordx4 v{vw[i]}, s[16:19], s31 offen offset:{i*1024} lds" for i in range(4)]
        r += ["s_cselect_b32 s29, 0, s29", "s_add_u32 s33, s33, 16384", "s_and_b32 s33, s33, 0xffff"]
        return r
    for _ in range(LA-1): k.e(dma())
    k.e(f"s_mov_b32 s34, {10-LA+1}")
    k.label("hloop")
    k.e(dma(), f"s_waitcnt vmcnt({8*(LA-1)})", "s_barrier", "s_sub_u32 s34, s34, 1", "s_cmp_lg_u32 s34, 0", f"s_cbranch_scc1 {k.L('hloop')}")
    for i in range(LA-2, -1, -1): k.e(f"s_waitcnt vmcnt({8*i})", "s_barrier")
    k.e("STAMP2", "s_cmp_ge_u32 s26, 2", f"s_cbranch_scc1 {k.L('hfin')}")
    k.e(srd(20, 50, WS_BYTES), srd(44, 48, 256), "s_lshl_b32 s40, s24, 2", "s_mov_b32 s43, 0x40000")
    k.label("hpoll")
    k.e("s_sub_u32 s43, s43, 1", f"s_cbranch_scc1 {k.L('hgo')}", f"buffer_load_dword v{T[0]}, off, s[44:47], s40 sc1", "s_waitcnt vmcnt(0)", f"v_cmp_eq_u32 vcc, 0, v{T[0]}", f"s_cbranch_vccnz {k.L('hpoll')}")
    k.label("hgo")
    k.e("s_lshl_b32 s41, s26, 6", f"v_add_u32 v{T[0]}, s41, v0", f"v_lshlrev_b32 v{T[1]}, 3, v{T[0]}", "s_lshl_b32 s40, s24, 10", f"s_add_u32 s40, s40, {XST}",
        f"buffer_load_dwordx2 {v(acc[1][0],2)}, v{T[1]}, s[20:23], s40 offen sc1",
        "s_cmp_lt_u32 s25, 5", f"s_cselect_b32 s45, {hex(f2u(QSCALE))}, 1.0", f"v_lshlrev_b32 v{T[0]}, 2, v{T[0]}", f"v_add_u32 v{T[0]}, {EX}, v{T[0]}", "s_waitcnt vmcnt(0)",
        f"v_mul_f32 v{acc[1][0]}, s45, v{acc[1][0]}", f"v_mul_f32 v{acc[1][0]+1}, s45, v{acc[1][0]+1}",
        f"ds_write_b32 v{T[0]}, v{acc[1][0]}", f"ds_write_b32 v{T[0]}, v{acc[1][0]+1} offset:512", "s_waitcnt lgkmcnt(0)")
    k.label("hfin")
    k.e("STAMP3", "s_barrier", "s_endpgm")
    k.label("cons")
    k.e("s_lshr_b32 s27, s26, 1", "s_and_b32 s28, s26, 1")
    k.e(f"v_and_b32 v{T[0]}, 31, v0", f"v_lshrrev_b32 v{T[1]}, 5, v0", f"v_bfe_u32 v{T[2]}, v0, 1, 3", f"v_xor_b32 v{T[2]}, v{T[2]}, v{T[1]}",
        "s_lshl_b32 s40, s27, 6", f"v_add_u32 v{T[0]}, s40, v{T[0]}", f"v_lshlrev_b32 v{T[0]}, 7, v{T[0]}", f"v_lshl_add_u32 v{xa[0]}, v{T[2]}, 4, v{T[0]}")
    for ks in range(1, 4): k.e(f"v_xor_b32 v{xa[ks]}, {ks*32}, v{xa[0]}")
    k.e(f"v_bfe_u32 v{T[2]}, v0, 2, 2", f"v_lshl_add_u32 v{T[0]}, v{T[1]}, 3, v{T[2]}", f"v_lshlrev_b32 v{T[0]}, 8, v{T[0]}",
        "s_lshl_b32 s40, s28, 1", "s_add_u32 s40, s40, s27", f"v_xor_b32 v{T[2]}, s40, v{T[2]}", f"v_lshl_add_u32 v{T[0]}, v{T[2]}, 6, v{T[0]}",
        f"v_bfe_u32 v{T[2]}, v0, 4, 1", f"v_lshl_add_u32 v{T[0]}, v{T[2]}, 5, v{T[0]}", f"v_add_u32 v{T[0]}, 65536, v{T[0]}",
        f"v_and_b32 v{T[2]}, 3, v0",
        f"v_and_b32 v{T[3]}, 1, v0", f"v_lshlrev_b32 v{T[3]}, 1, v{T[3]}", f"v_bfe_u32 v{T[4]}, v0, 1, 1", f"v_or_b32 v{T[3]}, v{T[3]}, v{T[4]}",
        "s_cmp_ge_u32 s25, 10", "s_cselect_b64 vcc, -1, 0", f"v_cndmask_b32 v{T[2]}, v{T[3]}, v{T[2]}, vcc",
        f"v_lshl_add_u32 v{wa[0]}, v{T[2]}, 3, v{T[0]}", f"v_xor_b32 v{wa[1]}, 64, v{wa[0]}")
    for i in range(2): k.e(f"v_mov_b32 v{ones+i}, 0x3f803f80")
    for r in [acc[0][0]+i for i in range(64)]+[cs+i for i in range(16)]:
        k.e(f"v_mov_b32 v{r}, 0")
    k.e("s_mov_b32 s35, 16384", "s_mov_b32 s34, 9", "s_waitcnt lgkmcnt(0)", srd(20, 50, WS_BYTES))
    def reads(ks):
        buf = ks % 2
        r = [f"ds_read_b128 {v(xf[buf][0],4)}, v{xa[ks]}"]
        for t in range(2): r.append(f"ds_read_b64_tr_b16 {v(wf0[ks]+2*t,2)}, v{wa[0]} offset:{(16*ks+4*t)*256}")
        for t in range(2): r.append(f"ds_read_b64_tr_b16 {v(wf1[buf]+2*t,2)}, v{wa[1]} offset:{(16*ks+4*t)*256}")
        r.append(f"ds_read_b128 {v(xf[buf][1],4)}, v{xa[ks]} offset:4096")
        return r
    def mf(ks, isv):
        r = []
        for xs in range(2):
            for ws in range(2):
                W = wf0[ks] if ws == 0 else wf1[ks % 2]
                X = xf[ks % 2][xs]
                A, B = (X, W) if isv else (W, X)
                r.append(f"v_mfma_f32_32x32x16_bf16 {v(acc[xs][ws],16)}, {v(A,4)}, {v(B,4)}, {v(acc[xs][ws],16)}")
        return r
    k.e("STAMP0", "s_barrier", "STAMP1")
    k.e(reads(0))
    k.e("s_cmp_ge_u32 s25, 10", f"s_cbranch_scc1 {k.L('loopv')}")
    def loop(isv):
        nm = "loopv" if isv else "loopq"
        k.label(nm)
        for ks in range(3):
            m = mf(ks, isv)
            k.e("s_waitcnt lgkmcnt(0)", m[0], reads(ks+1), m[1:])
        k.e("s_waitcnt lgkmcnt(0)")
        for ks in range(4):
            for t in range(2):
                c_ = cs + 4*((2*ks+t) % 4)
                k.e(f"v_mfma_f32_4x4x4_16b_bf16 {v(c_,4)}, {v(ones,2)}, {v(wf0[ks]+2*t,2)}, {v(c_,4)}")
        m = mf(3, isv)
        k.e("s_sub_u32 s34, s34, 1", f"s_cbranch_scc1 {k.L(nm+'x')}", "s_barrier")
        xors = [f"v_xor_b32 v{r}, s35, v{r}" for r in [xa[0], wa[0], wa[1]]]
        xors2 = [f"v_xor_b32 v{xa[ks]}, s35, v{xa[ks]}" for ks in range(1, 4)]
        k.e(m[0], xors, reads(0), m[1], xors2, "s_xor_b32 s35, s35, 32768", m[2], m[3], f"s_branch {k.L(nm)}")
        k.label(nm+'x')
        k.e("STAMP2", m[0], m[1])
        k.e(f"v_and_b32 v{T[0]}, 31, v0", "s_lshl_b32 s40, s28, 6", "s_lshl_b32 s41, s27, 5", "s_add_u32 s44, s40, s41", "s_lshl_b32 s43, s27, 6")
        k.e(f"v_add_f32 v{cs}, v{cs}, v{cs+4}", f"v_add_f32 v{cs+8}, v{cs+8}, v{cs+12}", f"v_add_f32 v{cs}, v{cs}, v{cs+8}")
        k.e(f"v_mov_b32 v{T[3]}, v{cs}", m[2], f"v_add_lshl_u32 v{T[2]}, v{T[0]}, s44, 2", f"v_add_u32 v{T[2]}, {EX}, v{T[2]}", f"v_permlane32_swap_b32 v{cs}, v{T[3]}",
            "s_nop 0", f"v_add_f32 v{cs}, v{cs}, v{T[3]}", f"ds_write_b32 v{T[2]}, v{cs} offset:1024", m[3])
        hf = T[3]
        k.e(f"v_lshrrev_b32 v{hf}, 5, v0")
        if not isv:
            RM = [ep+0, ep+2]; C = [ep+4, ep+20]; out = ep+36
            k.e(f"v_add_lshl_u32 v{T[1]}, v{T[0]}, s43, 2", f"v_add_u32 v{T[1]}, {EX}, v{T[1]}", f"v_add_u32 v{T[4]}, 128, v{T[1]}")
            k.e(f"v_lshlrev_b32 v{T[5]}, 4, v{hf}", "s_lshl_b32 s40, s44, 2", f"s_add_u32 s40, s40, {EX}", f"v_add_u32 v{T[5]}, s40, v{T[5]}", f"v_xor_b32 v{T[6]}, 128, v{T[5]}")
            k.e("s_lshl_b32 s40, s25, 4", "s_lshl_b32 s41, s28, 3", "s_add_u32 s40, s40, s41", f"v_add_u32 v{T[2]}, s40, v{hf}", f"v_lshlrev_b32 v{T[2]}, 11, v{T[2]}",
                "s_lshl_b32 s40, s24, 7", "s_add_u32 s40, s40, s43", f"v_add3_u32 v{T[2]}, v{T[2]}, s40, v{T[0]}", f"v_lshlrev_b32 v{T[2]}, 4, v{T[2]}")
            k.e("s_lshl_b32 s46, s27, 17", "s_waitcnt lgkmcnt(0)", "s_barrier", "STAMP3")
            k.e(f"ds_read2st64_b32 {v(RM[0],2)}, v{T[1]} offset0:0 offset1:2", f"ds_read2st64_b32 {v(RM[1],2)}, v{T[4]} offset0:0 offset1:2")
            for ws in range(2):
                for q in range(4):
                    k.e(f"ds_read_b128 {v(C[ws]+4*q,4)}, v{T[5+ws]} offset:{1024+q*32}")
            n = 0
            for ws in range(2):
                k.e(f"s_waitcnt lgkmcnt({4*(1-ws)})")
                for xs in range(2):
                    A = acc[xs][ws]
                    for p in range(2):
                        o = out + 4*(n % 4); n += 1
                        for j in range(0, 8, 2):
                            r = 8*p+j
                            k.e(f"v_pk_mul_f32 {v(A+r,2)}, {v(A+r,2)}, {v(RM[xs],2)} op_sel_hi:[1,0]",
                                f"v_pk_fma_f32 {v(A+r,2)}, {v(C[ws]+r,2)}, {v(RM[xs],2)}, {v(A+r,2)} op_sel:[0,1,0] op_sel_hi:[1,1,1]")
                        for j in range(4):
                            k.e(f"v_cvt_pk_bf16_f32 v{o+j}, v{A+8*p+2*j}, v{A+8*p+2*j+1}")
                        k.e(f"s_xor_b32 s47, s46, {ws*131072}", f"s_add_u32 s47, s47, {QK8 + p*65536}",
                            f"buffer_store_dwordx4 {v(o,4)}, v{T[2]}, s[20:23], s47 offen offset:{xs*512}{SC}")
        else:
            Cn = ep+0; R = ep+4; M = ep+20; out = ep+36
            k.e(f"v_xor_b32 v{T[4]}, 128, v{T[2]}")
            k.e(f"v_lshlrev_b32 v{T[5]}, 4, v{hf}", "s_lshl_b32 s40, s43, 2", f"s_add_u32 s40, s40, {EX}", f"v_add_u32 v{T[5]}, s40, v{T[5]}")
            k.e("s_lshl_b32 s40, s24, 4", "s_lshl_b32 s41, s27, 3", "s_add_u32 s40, s40, s41", f"v_add_u32 v{T[1]}, s40, v{hf}", f"v_mul_u32_u24 v{T[1]}, 648, v{T[1]}",
                "s_sub_u32 s40, s25, 10", "s_lshl_b32 s40, s40, 7", "s_lshl_b32 s41, s28, 6", "s_add_u32 s40, s40, s41", f"v_add3_u32 v{T[1]}, v{T[1]}, s40, v{T[0]}", f"v_lshlrev_b32 v{T[1]}, 4, v{T[1]}")
            k.e("s_waitcnt lgkmcnt(0)", "s_barrier", "STAMP3")
            k.e(f"ds_read_b32 v{Cn}, v{T[2]} offset:1024", f"ds_read_b32 v{Cn+1}, v{T[4]} offset:1024")
            n = 0
            for xs in range(2):
                for q in range(4):
                    k.e(f"ds_read_b128 {v(R+4*q,4)}, v{T[5]} offset:{xs*128+q*32}", f"ds_read_b128 {v(M+4*q,4)}, v{T[5]} offset:{512+xs*128+q*32}")
                k.e("s_waitcnt lgkmcnt(0)")
                for ws in range(2):
                    A = acc[xs][ws]
                    k.e(f"s_xor_b32 s52, s27, {ws}", "s_lshl_b32 s52, s52, 9")
                    for p in range(2):
                        o = out + 4*(n % 4); n += 1
                        for j in range(0, 8, 2):
                            r = 8*p+j
                            k.e(f"v_pk_mul_f32 {v(A+r,2)}, {v(A+r,2)}, {v(R+r,2)}",
                                f"v_pk_fma_f32 {v(A+r,2)}, {v(M+r,2)}, {v(Cn,2)}, {v(A+r,2)} op_sel:[0,{ws},0] op_sel_hi:[1,{ws},1]")
                        for j in range(4):
                            k.e(f"v_cvt_pk_bf16_f32 v{o+j}, v{A+8*p+2*j}, v{A+8*p+2*j+1}")
                        k.e(f"s_add_u32 s47, s52, {VT8 + p*2*VP + xs*4*VP}", f"buffer_store_dwordx4 {v(o,4)}, v{T[1]}, s[20:23], s47 offen{SC}")
        k.e("s_endpgm")
    loop(False)
    loop(True)
    k.label("side")
    XR = 16
    k.e("v_lshrrev_b32 v1, 3, v0", "v_mul_u32_u24 v1, 1280, v1", "v_and_b32 v2, 7, v0", "v_lshl_add_u32 v1, v2, 4, v1", "v_add_u32 v8, 10240, v1",
        "s_lshl_b32 s54, s24, 3", "s_add_u32 s54, s54, s26", f"s_mul_i32 s27, s54, {16*1280}", "s_waitcnt lgkmcnt(0)", srd(12, 4, 2048*640*2))
    for hb in range(2):
        for i in range(10): k.e(f"buffer_load_dwordx4 {v(XR+40*hb+4*i,4)}, v{1 if hb == 0 else 8}, s[12:15], s27 offen offset:{128*i}")
    k.e(srd(20, 50, WS_BYTES), srd(16, 10, 640*640*2), srd(44, 48, 256), "s_mov_b32 s42, 0x3f803f80")
    for r in (4, 5, 6, 7): k.e(f"v_mov_b32 v{r}, 0")
    for hb in range(2):
        for i in range(10):
            k.e(f"s_waitcnt vmcnt({19-10*hb-i})")
            for d in range(4):
                x = XR+40*hb+4*i+d
                k.e(f"v_dot2c_f32_bf16 v{4+2*hb}, s42, v{x}", f"v_dot2c_f32_bf16 v{5+2*hb}, v{x}, v{x}")
    k.e("s_nop 2")
    for ctl in ("quad_perm:[1,0,3,2]", "quad_perm:[2,3,0,1]", "row_half_mirror"):
        for r in (4, 5, 6, 7): k.e(f"v_add_f32_dpp v{r}, v{r}, v{r} {ctl} row_mask:0xf bank_mask:0xf")
    k.e("v_cmp_eq_u32 vcc, 1, v2", "s_nop 1", "v_cndmask_b32 v4, v4, v6, vcc", "v_cndmask_b32 v5, v5, v7, vcc")
    c = hex(f2u(1.0/640)); e = hex(f2u(1e-5))
    k.e(f"v_mul_f32 v4, {c}, v4", f"v_mul_f32 v5, {c}, v5", "v_fma_f32 v5, -v4, v4, v5", "v_max_f32 v5, 0, v5", f"v_add_f32 v5, {e}, v5", "v_rsq_f32 v6, v5", "v_lshrrev_b32 v9, 3, v0",
        "v_mul_f32 v7, v4, v6", "v_sub_f32 v7, 0, v7", "v_lshl_add_u32 v9, v2, 3, v9", "v_lshlrev_b32 v9, 3, v9",
        "s_lshl_b32 s30, s54, 7", f"s_add_u32 s30, s30, {XST}", "s_mov_b32 s40, 0x03030303", "s_mov_b32 s41, 0x03030303", "s_mov_b64 exec, s[40:41]",
        "buffer_store_dwordx2 v[6:7], v9, s[20:23], s30 offen sc1", "s_mov_b64 exec, -1", "s_waitcnt vmcnt(0)", "s_barrier")
    k.e("s_cmp_lg_u32 s26, 0", f"s_cbranch_scc1 {k.L('nf')}", "s_lshl_b32 s40, s24, 2", "v_mov_b32 v4, 1", "s_mov_b64 exec, 1", "buffer_store_dword v4, off, s[44:47], s40 sc1", "s_mov_b64 exec, -1")
    k.label("nf")
    k.e("STAMP0")
    k.e("v_lshlrev_b32 v3, 4, v0", "v_mov_b32 v4, -1", "v_mov_b32 v5, -1", "v_mov_b32 v6, -1", "v_mov_b32 v7, -1",
        "s_lshl_b32 s30, s54, 10", f"s_add_u32 s30, s30, {STATS}", "buffer_store_dwordx4 v[4:7], v3, s[20:23], s30 offen")
    k.e("v_mov_b32 v12, s42", "v_mov_b32 v13, 0", "v_mov_b32 v14, s42", "v_mov_b32 v15, 0", "s_lshl_b32 s30, s54, 8", f"s_add_u32 s30, s30, {QK8+160*2048*16}", "s_mov_b64 exec, 0xffff",
        "buffer_store_dwordx4 v[12:15], v3, s[20:23], s30 offen",
        "v_mov_b32 v16, s42", "v_mov_b32 v17, s42", "v_mov_b32 v18, s42", "v_mov_b32 v19, s42", f"v_mul_u32_u24 v10, {VP}, v0", f"s_mul_i32 s30, s54, {2*VP}", f"s_add_u32 s30, s30, {VT8+640*16}", "s_mov_b64 exec, 3",
        "buffer_store_dwordx4 v[16:19], v10, s[20:23], s30 offen", "s_mov_b64 exec, -1")
    k.e("s_cmp_ge_u32 s54, 100", f"s_cbranch_scc1 {k.L('end')}")
    k.e(f"s_mul_hi_u32 s22, s54, {magic(10)}".replace("s22", "s52"), "s_mul_i32 s53, s52, 10", "s_sub_u32 s53, s54, s53")
    k.e(f"s_mul_i32 s27, s52, {64*1280}", "s_lshl_b32 s28, s53, 7", "s_add_u32 s27, s27, s28", "s_lshl_b32 s29, s26, 13")
    for u in range(8):
        k.e(f"s_add_u32 m0, s29, {u*1024}", "s_nop 0", "buffer_load_dwordx4 v1, s[16:19], s27 offen lds", "s_add_u32 s27, s27, 10240")
    k.e("v_bfe_u32 v2, v0, 2, 2", "v_lshlrev_b32 v2, 7, v2", "v_lshrrev_b32 v9, 4, v0", "v_lshl_add_u32 v2, v9, 5, v2", "v_and_b32 v9, 3, v0", "v_lshl_add_u32 v2, v9, 3, v2", "v_add_u32 v2, s29, v2")
    k.e(f"s_mul_i32 s30, s52, {8*10240}", "s_lshl_b32 s31, s53, 10", "s_add_u32 s30, s30, s31", f"s_add_u32 s30, s30, {WO8}")
    k.e("s_waitcnt vmcnt(0)")
    for u in range(8):
        for t in range(2):
            k.e(f"ds_read_b64_tr_b16 {v(20+4*u+2*t,2)}, v2 offset:{u*1024+t*512}")
    k.e("s_waitcnt lgkmcnt(0)")
    for u in range(8):
        k.e(f"buffer_store_dwordx4 {v(20+4*u,4)}, v3, s[20:23], s30 offen", "s_add_u32 s30, s30, 10240")
    k.label("end"); k.e("s_endpgm")
    return k

def k2_attn(NB=4, prio=1, pf=True, sc1=False, spread=False, k2x4=False):
    k = Kernel("k2_kernel", 256, 512, 73728+64)
    SC = " sc1" if sc1 else ""
    NG = 16//NB
    al = Alloc(1)
    T = [al() for _ in range(7)]
    O = [al(16) for _ in range(4)]
    Sx = [al(16) for _ in range(4)]
    P = al(8)
    Q1 = [al(4) for _ in range(4)]; Q2 = [al(2) for _ in range(4)]
    K1 = [al(4) for _ in range(NB)]; K2 = [al(4 if k2x4 else 2) for _ in range(NB)]
    KW = 4 if k2x4 else 2
    V = [al(8) for _ in range(NB)]
    vK1, vK2, vQ1, vQ2 = al(), al(), al(), al()
    vV = [[al(), al()] for _ in range(NB)]
    MX = [al() for _ in range(4)]
    PF = [al() for _ in range(3)]
    k.nv = al.p
    OOB = 0x40000000
    k.e("s_load_dwordx2 s[4:5], s[0:1], 80", "s_load_dwordx2 s[56:57], s[0:1], 32", "s_load_dwordx2 s[58:59], s[0:1], 48", "s_cmp_ge_u32 s2, 256", f"s_cbranch_scc1 {k.L('end')}")
    waveid(k, 14, T[0])
    k.e("s_and_b32 s12, s2, 7", "s_lshl_b32 s12, s12, 2", "s_bfe_u32 s13, s2, 0x20003", "s_add_u32 s12, s12, s13", "s_lshr_b32 s13, s2, 5")
    if prio:
        k.e("s_cmp_lt_u32 s14, 4", f"s_cbranch_scc1 {k.L('np')}", "s_setprio 1"); k.label("np")
    k.e("v_and_b32 v0, 63, v0", "s_and_b32 s15, s14, 1", "s_lshr_b32 s16, s14, 1",
        "s_and_b32 s17, s12, 1", "s_lshr_b32 s18, s12, 1", "s_mul_i32 s18, s18, 5", "s_mul_i32 s19, s17, 3", "s_add_u32 s19, s19, s18")
    l32, hf = T[0], T[1]
    k.e(f"v_and_b32 v{l32}, 31, v0", f"v_lshrrev_b32 v{hf}, 5, v0", "v_cmp_gt_u32 vcc, 32, v0")
    k.e("s_lshl_b32 s31, s13, 8", "s_lshl_b32 s32, s15, 7", "s_add_u32 s31, s31, s32",
        f"v_add_u32 v{T[2]}, s19, v{hf}", f"v_lshl_add_u32 v{T[2]}, v{T[2]}, 11, v{l32}",
        f"v_add_lshl_u32 v{vQ1}, v{T[2]}, s31, 4", f"s_mov_b32 s34, {80*2048}", f"v_add_lshl_u32 v{vK1}, v{T[2]}, s34, 4",
        "s_add_u32 s32, s18, 2", "s_lshl_b32 s32, s32, 15", "s_lshl_b32 s33, s17, 3", "s_add_u32 s32, s32, s33",
        f"v_lshlrev_b32 v{T[3]}, 4, v{l32}",
        "s_lshl_b32 s33, s31, 4", "s_add_u32 s33, s33, s32", f"v_add_u32 v{T[4]}, s33, v{T[3]}", f"v_mov_b32 v{T[5]}, {OOB}", f"v_cndmask_b32 v{vQ2}, v{T[5]}, v{T[4]}, vcc",
        f"s_add_u32 s32, s32, {80*2048*16}", f"v_mov_b32 v{T[4]}, s32", f"v_mov_b32 v{T[6]}, {160*2048*16}", f"v_cndmask_b32 v{T[4]}, v{T[6]}, v{T[4]}, vcc", f"v_add_u32 v{vK2}, v{T[4]}, v{T[3]}")
    for j in range(4):
        k.e(f"s_add_u32 s36, s16, {j}", "s_and_b32 s36, s36, 3", f"s_lshl_b32 s{40+j}, s36, 9")
    k.e("s_waitcnt lgkmcnt(0)", srd(8, 4, WS_BYTES))
    k.e(f"buffer_load_dwordx4 {v(K1[NB-1],4)}, v{vK1}, s[8:11], 0 offen", f"buffer_load_dwordx2 {v(K2[NB-1],2)}, v{vK2}, s[8:11], 0 offen")
    for j in range(4): k.e(f"buffer_load_dwordx4 {v(Q1[j],4)}, v{vQ1}, s[8:11], s{40+j} offen", f"buffer_load_dwordx2 {v(Q2[j],2)}, v{vQ2}, s[8:11], s{40+j} offen")
    k.e(f"v_bfe_u32 v{T[2]}, v0, 2, 1", f"v_lshlrev_b32 v{T[2]}, 3, v{T[2]}", f"v_bfe_u32 v{T[3]}, v0, 3, 1", f"v_lshl_add_u32 v{T[2]}, v{T[3]}, 2, v{T[2]}",
        f"v_and_b32 v{T[3]}, 3, v0", "s_lshl_b32 s35, s17, 2", f"v_add3_u32 v{T[2]}, v{T[2]}, v{T[3]}, s35",
        "s_lshl_b32 s35, s17, 4", f"v_subrev_u32 v{T[3]}, s35, v{l32}",
        f"v_cmp_gt_u32 vcc, 16, v{l32}", f"v_cmp_eq_u32 s[20:21], 20, v{l32}", f"v_cmp_lt_u32 s[22:23], 20, v{l32}", "s_mul_i32 s35, s12, 20", f"v_cndmask_b32 v{T[2]}, v{T[3]}, v{T[2]}, vcc",
        f"v_add_u32 v{T[2]}, s35, v{T[2]}", f"v_mov_b32 v{T[3]}, 640", f"v_cndmask_b32 v{T[2]}, v{T[2]}, v{T[3]}, s[20:21]",
        f"v_mul_u32_u24 v{T[4]}, 648, v{hf}", f"v_add_lshl_u32 v{T[2]}, v{T[2]}, v{T[4]}, 4", f"v_cndmask_b32 v{T[2]}, v{T[2]}, v{T[5]}, s[22:23]")
    def grp():
        return [f"s_and_b32 s20, s20, {NG-1}", "s_add_u32 s23, s20, s37", f"s_mul_i32 s21, s23, {512*NB}", f"s_mul_i32 s22, s23, {4*VP*NB}", "s_add_u32 s20, s20, 1"]
    def burst(b):
        return [f"buffer_load_dwordx4 {v(K1[b],4)}, v{vK1}, s[8:11], s21 offen offset:{512*b}", f"buffer_load_dwordx{KW} {v(K2[b],KW)}, v{vK2}, s[8:11], s21 offen offset:{512*b}",
                f"buffer_load_dwordx4 {v(V[b],4)}, v{vV[b][0]}, s[8:11], s22 offen", f"buffer_load_dwordx4 {v(V[b]+4,4)}, v{vV[b][1]}, s[8:11], s22 offen"]
    qk1 = lambda sb, kb, qt: f"v_mfma_f32_32x32x16_bf16 {v(Sx[sb],16)}, {v(K1[kb],4)}, {v(Q1[qt],4)}, 0"
    qk2 = lambda sb, kb, qt: f"v_mfma_f32_32x32x8_bf16 {v(Sx[sb],16)}, {v(K2[kb],2)}, {v(Q2[qt],2)}, {v(Sx[sb],16)}"
    pv = lambda half, kb, qt: f"v_mfma_f32_32x32x16_bf16 {v(O[qt],16)}, {v(V[kb]+4*half,4)}, {v(P+4*half,4)}, {v(O[qt],16)}"
    def maxtree(sb, dst, first):
        r = []
        s_ = Sx[sb]
        if first:
            r.append(f"v_max3_f32 v{dst}, v{s_}, v{s_+1}, v{s_+2}")
            for i in range(3, 15, 2): r.append(f"v_max3_f32 v{dst}, v{dst}, v{s_+i}, v{s_+i+1}")
            r.append(f"v_max_f32 v{dst}, v{dst}, v{s_+15}")
        else:
            for i in range(0, 16, 2): r.append(f"v_max3_f32 v{dst}, v{dst}, v{s_+i}, v{s_+i+1}")
        return r
    k.e(f"s_mul_i32 s37, s16, {NG}", "s_mov_b32 s20, s13", grp())
    for b in range(NB):
        k.e(f"v_add_u32 v{vV[b][0]}, {VT8 + 4*b*VP}, v{T[2]}", f"v_add_u32 v{vV[b][1]}, {VT8 + (4*b+2)*VP}, v{T[2]}")
        if b < NB-1: k.e(burst(b))
    def zeroO():
        return [f"v_mov_b32 v{P+i}, 0" for i in range(4, 8)] + [f"v_mov_b32 v{V[NB-1]+i}, 0" for i in range(4, 8)] + \
               [f"v_mfma_f32_32x32x16_bf16 {v(O[j],16)}, {v(P+4,4)}, {v(P+4,4)}, 0" for j in range(4)]
    k.e(zeroO())
    k.e("s_mov_b32 s26, 0", "s_mov_b32 s27, -1", "s_mov_b32 s29, 0", "s_mov_b32 s38, 0xffff0000", "s_mov_b32 s39, 0x07060302")
    k.e("STAMP0", f"s_waitcnt vmcnt({4*(NB-1)})", "STAMP1")
    for j in range(4): k.e(qk1(j, NB-1, j), qk2(j, NB-1, j))
    k.e("s_nop 7")
    for j in range(4): k.e(maxtree(j, MX[j], True))
    k.label("setm")
    k.e("s_mov_b64 exec, s[26:27]")
    for j in range(4):
        k.e(f"v_and_b32 v{T[3]}, s38, v{MX[j]}", f"v_sub_f32 v{T[4]}, v{T[3]}, v{MX[j]}", f"v_xor_b32 v{T[3]}, 0x80000000, v{T[3]}", f"v_perm_b32 v{Q2[j]}, v{T[4]}, v{T[3]}, s39")
    k.e("s_mov_b64 exec, -1")
    k.e(f"s_waitcnt vmcnt({4*(NB-2)})", qk1(0, 0, 0), qk2(0, 0, 0), f"s_mov_b32 s28, {NG}")
    if pf:
        k.e("s_lshr_b32 s60, s2, 3", "s_lshl_b32 s60, s60, 3", "s_add_u32 s60, s60, s14", "s_bfe_u32 s61, s2, 0x20001",
            f"v_min_u32 v{T[5]}, 47, v0",
            f"v_mul_u32_u24 v{T[3]}, 43, v{T[5]}", f"v_lshrrev_b32 v{T[3]}, 8, v{T[3]}", f"v_mul_u32_u24 v{T[4]}, 6, v{T[3]}", f"v_sub_u32 v{T[4]}, v{T[5]}, v{T[4]}",
            f"v_mul_u32_u24 v{T[3]}, 3072, v{T[3]}", f"v_lshl_add_u32 v{PF[0]}, v{T[4]}, 7, v{T[3]}", f"s_mul_i32 s62, s60, {8*3072}", "s_mul_i32 s63, s61, 768", "s_add_u32 s72, s62, s63",
            f"v_lshrrev_b32 v{T[3]}, 3, v{T[5]}", f"v_and_b32 v{T[4]}, 7, v{T[5]}", f"v_lshlrev_b32 v{T[3]}, 12, v{T[3]}", f"v_lshl_add_u32 v{PF[1]}, v{T[4]}, 7, v{T[3]}", f"s_mul_i32 s62, s60, {6*4096}", "s_lshl_b32 s63, s61, 10", "s_add_u32 s73, s62, s63",
            f"s_mul_i32 s62, s60, {25*128}", f"s_add_u32 s74, s62, {WO8}", f"v_min_u32 v{T[5]}, 24, v0", f"v_lshlrev_b32 v{PF[2]}, 7, v{T[5]}")
        k.e(srd(64, 56, 2048*1536*2), srd(68, 58, 2048*1536*2))
        k.e(f"buffer_load_dword v{T[6]}, v{PF[1]}, s[68:71], s73 offen", f"buffer_load_dword v{T[6]}, v{PF[0]}, s[64:67], s72 offen", f"buffer_load_dword v{T[6]}, v{PF[2]}, s[8:11], s74 offen")
    else:
        k.e("s_nop 10")
    k.e("STAMP2", ".p2align 6")
    k.label("loop")
    ex = lambda sb, i: f"v_exp_f32 v{Sx[sb]+i}, v{Sx[sb]+i}"
    cv = lambda sb, i: f"v_cvt_pk_bf16_f32 v{P+i}, v{Sx[sb]+2*i}, v{Sx[sb]+2*i+1}"
    NT = 4*NB
    for n in range(NT):
        kt, qt = n//4, n % 4
        n1 = (n+1) % NT; n0 = (n-1) % NT
        sb = n % 2
        if qt == 3: k.e(f"s_waitcnt vmcnt({4*(NB-2) - (1 if spread else 0)})")
        k.e(qk1(1-sb, n1//4, n1 % 4))
        k.e([ex(sb, i) for i in range(0, 4)])
        k.e(pv(1, n0//4, n0 % 4))
        if spread:
            k.e(burst((kt-1) % NB)[qt])
            if kt == 0 and qt == 3: k.e(grp())
        if qt == 0:
            if not spread:
                k.e(burst((kt-1) % NB))
                if kt == 0: k.e(grp())
            if prio and kt == NB-prio:
                k.e("s_cmp_lg_u32 s28, 1", f"s_cbranch_scc1 {k.L('kp')}", "s_setprio 0"); k.label("kp")
        k.e(cv(sb, 0), cv(sb, 1))
        k.e([ex(sb, i) for i in range(4, 8)])
        k.e(qk2(1-sb, n1//4, n1 % 4))
        k.e(cv(sb, 2), cv(sb, 3))
        k.e([ex(sb, i) for i in range(8, 12)])
        k.e(pv(0, kt, qt))
        k.e(cv(sb, 4), cv(sb, 5))
        k.e([ex(sb, i) for i in range(12, 16)])
        k.e(cv(sb, 6), cv(sb, 7))
    k.e("s_sub_u32 s28, s28, 1", "s_cmp_lg_u32 s28, 0", f"s_cbranch_scc1 {k.L('loop')}")
    k.e(pv(1, NB-1, 3), "STAMP3")
    wa_ = [T[2], T[3], T[4]]
    k.e(f"v_lshlrev_b32 v{T[5]}, 4, v0", "s_lshl_b32 s44, s15, 2")
    for j in range(1, 4):
        k.e(f"s_add_u32 s36, s16, {j}", "s_and_b32 s36, s36, 3", "s_add_u32 s36, s36, s44", "s_mul_i32 s36, s36, 9216", f"s_add_u32 s36, s36, {(j-1)*3072}", f"v_add_u32 v{wa_[j-1]}, s36, v{T[5]}")
        for q in range(3): k.e(f"ds_write_b128 v{wa_[j-1]}, {v(O[j]+4*q,4)} offset:{q*1024}")
    k.e("s_add_u32 s36, s16, s44", "s_mul_i32 s36, s36, 9216", f"v_add_u32 v{T[5]}, s36, v{T[5]}")
    k.e(f"s_mov_b32 s45, {hex(f2u(2.0**64))}")
    for j in range(4):
        k.e(f"v_cmp_nge_f32 s[{46+2*j}:{47+2*j}], s45, v{O[j]+8}")
    k.e("s_lshl_b32 s54, s14, 2", "s_add_u32 s54, s54, 73728", f"v_mov_b32 v{T[2]}, s54",
        "s_or_b32 s47, s47, s49", "s_or_b32 s51, s51, s53", "s_or_b32 s47, s47, s51", "s_cselect_b32 s46, 1, 0",
        f"v_mov_b32 v{T[3]}, s46", f"ds_write_b32 v{T[2]}, v{T[3]}", f"v_mov_b32 v{T[2]}, 73728",
        "s_waitcnt lgkmcnt(0)", "s_barrier")
    FL = Sx[0]
    k.e(f"ds_read_b128 {v(FL,4)}, v{T[2]}", f"ds_read_b128 {v(FL+4,4)}, v{T[2]} offset:16")
    for j in range(1, 4):
        for q in range(3): k.e(f"ds_read_b128 {v(O[j]+4*q,4)}, v{T[5]} offset:{(j-1)*3072+q*1024}")
    k.e("s_waitcnt lgkmcnt(9)", f"v_or3_b32 v{FL}, v{FL}, v{FL+1}, v{FL+2}", f"v_or3_b32 v{FL}, v{FL}, v{FL+3}, v{FL+4}", f"v_or3_b32 v{FL}, v{FL}, v{FL+5}, v{FL+6}", f"v_or_b32 v{FL}, v{FL}, v{FL+7}",
        "s_nop 0", f"v_readfirstlane_b32 s46, v{FL}", "s_nop 3", "s_andn2_b32 s46, s46, s29", f"s_cbranch_scc1 {k.L('redo')}")
    k.e("s_waitcnt lgkmcnt(0)")
    for i in range(0, 12, 2):
        k.e(f"v_pk_add_f32 {v(O[0]+i,2)}, {v(O[0]+i,2)}, {v(O[1]+i,2)}", f"v_pk_add_f32 {v(O[2]+i,2)}, {v(O[2]+i,2)}, {v(O[3]+i,2)}")
    for i in (8, 0, 2, 4, 6, 10):
        k.e(f"v_pk_add_f32 {v(O[0]+i,2)}, {v(O[0]+i,2)}, {v(O[2]+i,2)}")
    k.e(f"v_mov_b32 v{O[1]}, v{O[0]+8}", f"v_mov_b32 v{O[1]+2}, v{O[0]+8}", "s_nop 1", f"v_permlane32_swap_b32 v{O[1]}, v{O[1]+2}", "s_nop 1", f"v_rcp_f32 v{O[1]+2}, v{O[1]+2}", "s_nop 0")
    for i in range(0, 12, 2): k.e(f"v_pk_mul_f32 {v(O[0]+i,2)}, {v(O[0]+i,2)}, {v(O[1]+2,2)} op_sel_hi:[1,0]")
    for i in range(6): k.e(f"v_cvt_pk_bf16_f32 v{P+i}, v{O[0]+2*i}, v{O[0]+2*i+1}")
    k.e(f"s_add_u32 s40, s40, {O8}", f"buffer_store_dwordx4 {v(P,4)}, v{vQ1}, s[8:11], s40 offen{SC}", f"buffer_store_dwordx2 {v(P+4,2)}, v{vQ2}, s[8:11], s40 offen{SC}")
    k.label("end"); k.e("s_endpgm")
    k.label("redo")
    k.e("s_waitcnt vmcnt(0) lgkmcnt(0)", "s_barrier", "s_mov_b32 s29, 1", "s_mov_b64 exec, s[26:27]")
    for j in range(4): k.e(f"v_mov_b32 v{Q2[j]}, 0")
    k.e("s_mov_b64 exec, -1")
    for j in range(4): k.e(f"v_mov_b32 v{MX[j]}, 0xff800000")
    k.e("s_mov_b32 s21, 0")
    k.label("mx")
    k.e(f"buffer_load_dwordx4 {v(K1[NB-1],4)}, v{vK1}, s[8:11], s21 offen", f"buffer_load_dwordx2 {v(K2[NB-1],2)}, v{vK2}, s[8:11], s21 offen", "s_waitcnt vmcnt(0)")
    for j in range(4): k.e(qk1(j, NB-1, j), qk2(j, NB-1, j))
    k.e("s_nop 7")
    for j in range(4): k.e(maxtree(j, MX[j], False))
    k.e("s_add_u32 s21, s21, 512", f"s_cmp_lt_u32 s21, {64*512}", f"s_cbranch_scc1 {k.L('mx')}")
    for j in range(4):
        k.e(f"v_mov_b32 v{T[2]}, v{MX[j]}", "s_nop 1", f"v_permlane32_swap_b32 v{MX[j]}, v{T[2]}", "s_nop 1", f"v_max_f32 v{MX[j]}, v{MX[j]}, v{T[2]}")
    k.e("s_mov_b32 s20, s13", grp())
    for b in range(NB-1): k.e(burst(b))
    k.e(zeroO())
    k.e(f"s_branch {k.L('setm')}")
    return k

def gemm_core(name, grid, MA, NBf, nsteps, Aop, Bop, mapcode, pre, epi, loads, DEPTH=3, rotmode="win", extra_regs=0):
    TM = 16*MA; TN = 16*NBf; TMP = TM+4
    NS = DEPTH+1
    raw = Aop if Aop[0] == "raw" else (Bop if Bop[0] == "raw" else None)
    PART = 4*TN*TMP*4
    RING = PART
    k = Kernel(name, grid, 256, PART + (4*NS*4096 if raw else 0))
    al = Alloc(1)
    T = [al() for _ in range(7)]
    acc = [[al(4) for _ in range(NBf)] for _ in range(MA)]
    def fr(op, n): return [[al(4) for _ in range(n)] for _ in range(NS if op[0] == "x8" else 1)]
    Af = fr(Aop, MA); Bf = fr(Bop, NBf)
    vA, vB = al(), al()
    vW = [al() for _ in range(4)]; vR = [al() for _ in range(4)]
    X = al(extra_regs) if extra_regs else None
    k.nv = max(al.p, acc[0][0] + 128)
    k.e("s_load_dwordx2 s[4:5], s[0:1], 80", loads, f"s_cmp_ge_u32 s2, {grid}", f"s_cbranch_scc1 {k.L('end')}")
    waveid(k, 14, T[0])
    k.e("s_and_b32 s16, s2, 7", "s_lshr_b32 s17, s2, 3", mapcode)
    k.e(f"v_and_b32 v{T[0]}, 15, v0", f"v_bfe_u32 v{T[1]}, v0, 4, 2", f"s_mul_i32 s19, s12, {TM}", f"s_mul_i32 s20, s13, {TN}")
    for op, vv, sb in ((Aop, vA, 19), (Bop, vB, 20)):
        if op[0] == "x8":
            k.e(f"v_mul_u32_u24 v{T[2]}, {op[2]}, v{T[1]}", f"v_add3_u32 v{T[2]}, v{T[2]}, v{T[0]}, s{sb}", f"v_lshlrev_b32 v{vv}, 4, v{T[2]}", f"v_add_u32 v{vv}, {op[1]}, v{vv}")
        else:
            ld = op[2]
            k.e(f"v_bfe_u32 v{T[2]}, v0, 3, 3", f"v_mul_u32_u24 v{T[2]}, {ld}, v{T[2]}", f"s_lshl_b32 s22, s{sb}, 1", f"v_add_u32 v{T[2]}, s22, v{T[2]}",
                f"v_and_b32 v{T[3]}, 7, v0", f"v_bfe_u32 v{T[4]}, v0, 4, 1", f"v_lshlrev_b32 v{T[4]}, 1, v{T[4]}", f"v_xor_b32 v{T[3]}, v{T[3]}, v{T[4]}",
                f"v_lshl_add_u32 v{vW[0]}, v{T[3]}, 4, v{T[2]}", f"v_xor_b32 v{vW[1]}, 64, v{vW[0]}",
                f"v_add_u32 v{vW[2]}, {2*(8*ld-1024)}, v{vW[0]}", f"v_add_u32 v{vW[3]}, {3*(8*ld-1024)}, v{vW[1]}", f"v_add_u32 v{vW[1]}, {8*ld-1024}, v{vW[1]}")
            k.e(f"s_mul_i32 s15, s14, {NS*4096}", f"s_add_u32 s15, s15, {RING}")
    n = nsteps//4
    k.e("s_mov_b32 s21, 0", "s_waitcnt lgkmcnt(0)", srd(8, 4, WS_BYTES))
    if raw: k.e(raw[1])
    def ld(j):
        b = j % NS
        if rotmode == "none": r = [f"s_add_u32 s21, s14, {4*j}"]
        elif rotmode == "full": r = [f"s_add_u32 s21, s18, {j}", f"s_cmp_ge_u32 s21, {n}", f"s_cselect_b32 s22, {n}, 0", "s_sub_u32 s21, s21, s22", "s_lshl_b32 s21, s21, 2", "s_add_u32 s21, s21, s14"]
        else:
            if j >= (n & ~3): r = [f"s_add_u32 s21, s14, {4*j}"]
            else: r = [f"s_add_u32 s21, s18, {j}", "s_and_b32 s21, s21, 3", f"s_add_u32 s21, s21, {j & ~3}", "s_lshl_b32 s21, s21, 2", "s_add_u32 s21, s21, s14"]
        la = []; lb = []
        for op, vv, sr, fs, lst in ((Aop, vA, 22, Af, la), (Bop, vB, 23, Bf, lb)):
            if op[0] == "x8":
                r.append(f"s_mul_i32 s{sr}, s21, {4*op[2]*16}")
                lst += [f"buffer_load_dwordx4 {v(fs[b][i],4)}, v{vv}, s[8:11], s{sr} offen offset:{i*256}" for i in range(len(fs[b]))]
            else:
                r += [f"s_mul_i32 s{sr}, s21, {32*op[2]}", f"s_add_u32 m0, s15, {b*4096}"]
                lst += [f"buffer_load_dwordx4 v{vW[i]}, s[44:47], s{sr} offen offset:{i*1024} lds" for i in range(4)]
        r.append("s_nop 0")
        for i in range(max(len(la), len(lb))):
            if i < len(lb): r.append(lb[i])
            if i < len(la): r.append(la[i])
        return r
    NL = MA + NBf
    k.e(ld(0))
    npre = pre(k, T, X) if pre else 0
    for j in range(1, min(DEPTH, n)): k.e(ld(j))
    if raw:
        k.e(f"v_bfe_u32 v{T[2]}, v0, 2, 2", f"v_lshl_add_u32 v{T[3]}, v{T[1]}, 3, v{T[2]}", f"v_lshlrev_b32 v{T[3]}, 7, v{T[3]}",
            f"v_bfe_u32 v{T[2]}, v0, 3, 1", f"v_bfe_u32 v{T[4]}, v0, 4, 1", f"v_lshl_add_u32 v{T[2]}, v{T[4]}, 1, v{T[2]}", f"v_lshl_add_u32 v{T[3]}, v{T[2]}, 5, v{T[3]}",
            f"v_and_b32 v{T[2]}, 3, v0", f"v_lshl_add_u32 v{T[3]}, v{T[2]}, 3, v{T[3]}")
        for c in range(4): k.e(f"v_xor_b32 v{vR[c]}, {32*c}, v{T[3]}", f"v_add_u32 v{vR[c]}, s15, v{vR[c]}")
    for j in range(n):
        b = j % NS
        out = min(DEPTH-1, n-1-j)*NL + (npre if j == 0 else 0)
        if j == 0: k.e("STAMP0")
        k.e(f"s_waitcnt vmcnt({out})")
        if j == 0: k.e("STAMP1")
        if raw:
            fs = Af if Aop[0] == "raw" else Bf
            for c in range(4):
                for t in range(2): k.e(f"ds_read_b64_tr_b16 {v(fs[0][c]+2*t,2)}, v{vR[c]} offset:{b*4096+t*512}")
        A_ = Af[b if Aop[0] == "x8" else 0]; B_ = Bf[b if Bop[0] == "x8" else 0]
        order = [(i, c) for i in range(MA) for c in range(NBf)] if Aop[0] == "raw" else [(i, c) for c in range(NBf) for i in range(MA)]
        m = []
        for (i, c) in order:
            src = "0" if j == 0 else v(acc[i][c], 4)
            x = f"v_mfma_f32_16x16x32_bf16 {v(acc[i][c],4)}, {v(A_[i],4)}, {v(B_[c],4)}, {src}"
            w = i if Aop[0] == "raw" else c
            o = c if Aop[0] == "raw" else i
            if raw and o == 0: x = [f"s_waitcnt lgkmcnt({2*(3-w)})", x]
            m.append(x)
        f = ld(j+DEPTH) if j + DEPTH < n else []
        nlead = len(f) - NL if f else 0
        k.e(interleave(m, f, lead=nlead))
    k.e("STAMP2")
    k.e(f"s_mul_i32 s22, s14, {TN*TMP*4}", f"v_mul_u32_u24 v{T[2]}, {TMP*4}, v{T[0]}", f"v_lshl_add_u32 v{T[2]}, v{T[1]}, 4, v{T[2]}", f"v_add_u32 v{T[2]}, s22, v{T[2]}", "s_nop 4")
    for (i, c) in order:
        k.e(f"ds_write_b128 v{T[2]}, {v(acc[i][c],4)} offset:{c*16*TMP*4 + i*64}")
    epi(k, T, acc[0][0], TM, TN, TMP, X)
    k.label("end"); k.e("s_endpgm")
    return k

def sum4pk(k, R, n):
    for i in range(0, n, 2): k.e(f"v_pk_add_f32 {v(R+i,2)}, {v(R+i,2)}, {v(R+n+i,2)}", f"v_pk_add_f32 {v(R+2*n+i,2)}, {v(R+2*n+i,2)}, {v(R+3*n+i,2)}")
    for i in range(0, n, 2): k.e(f"v_pk_add_f32 {v(R+i,2)}, {v(R+i,2)}, {v(R+2*n+i,2)}")

def k3_oproj(rotmode="win"):
    mp = ["s_lshr_b32 s12, s17, 2", "s_lshl_b32 s13, s16, 2", "s_and_b32 s18, s17, 3", "s_add_u32 s13, s13, s18", "s_add_u32 s18, s18, s12"]
    if rotmode == "full": mp += ["s_cmp_ge_u32 s18, 10", "s_cselect_b32 s22, 10, 0", "s_sub_u32 s18, s18, s22", "s_cmp_ge_u32 s18, 5", "s_cselect_b32 s22, 5, 0", "s_sub_u32 s18, s18, s22"]
    def pre(k, T, X):
        k.e(srd(24, 6, 2048*640*2))
        k.e(f"v_lshrrev_b32 v{T[2]}, 2, v0", f"v_add_u32 v{T[2]}, s20, v{T[2]}", f"v_mul_u32_u24 v{T[2]}, 1280, v{T[2]}", f"v_and_b32 v{T[3]}, 3, v0", f"v_lshl_add_u32 v{T[2]}, v{T[3]}, 3, v{T[2]}",
            "s_lshl_b32 s22, s19, 1", f"v_add_u32 v{X+10}, s22, v{T[2]}")
        for i in range(5): k.e(f"buffer_load_dwordx2 {v(X+2*i,2)}, v{X+10}, s[24:27], 0 offen offset:{32*i}")
        return 5
    def epi(k, T, R, TM, TN, TMP, X):
        W = TN*TMP*4
        tok, jq = T[3], T[4]
        k.e(f"v_lshrrev_b32 v{tok}, 2, v0", f"v_and_b32 v{jq}, 3, v0", f"v_mul_u32_u24 v{T[5]}, {TMP*4}, v{tok}", f"v_lshl_add_u32 v{T[5]}, v{jq}, 4, v{T[5]}",
            "s_mov_b32 s35, 0xffff0000", "s_waitcnt lgkmcnt(0)", "s_barrier", "STAMP3")
        for w in range(4):
            for i in range(5): k.e(f"ds_read_b128 {v(R+20*w+4*i,4)}, v{T[5]} offset:{w*W+64*i}")
        U = R+80
        for i in range(10): k.e(f"v_lshlrev_b32 v{U+2*i}, 16, v{X+i}", f"v_and_b32 v{U+2*i+1}, s35, v{X+i}")
        k.e("s_lshl_b32 s36, s13, 12", f"s_add_u32 s36, s36, {STATS}", "s_lshl_b32 s37, s12, 9", "s_add_u32 s37, s37, s36",
            f"v_lshlrev_b32 v{T[6]}, 3, v{tok}", f"v_lshl_add_u32 v{T[2]}, v{jq}, 10, v{T[6]}")
        k.e("s_waitcnt lgkmcnt(0)")
        sum4pk(k, R, 20)
        for i in range(0, 20, 2): k.e(f"v_pk_add_f32 {v(R+i,2)}, {v(R+i,2)}, {v(U+i,2)}")
        SS = R+20; QQ = R+22; ST = R+24
        k.e(f"v_pk_add_f32 {v(SS,2)}, {v(R,2)}, {v(R+2,2)}", f"v_pk_mul_f32 {v(QQ,2)}, {v(R,2)}, {v(R,2)}", f"v_pk_fma_f32 {v(QQ,2)}, {v(R+2,2)}, {v(R+2,2)}, {v(QQ,2)}")
        for i in range(4, 20, 2): k.e(f"v_pk_add_f32 {v(SS,2)}, {v(SS,2)}, {v(R+i,2)}", f"v_pk_fma_f32 {v(QQ,2)}, {v(R+i,2)}, {v(R+i,2)}, {v(QQ,2)}")
        k.e(f"v_add_f32 v{ST}, v{SS}, v{SS+1}", f"v_add_f32 v{ST+1}, v{QQ}, v{QQ+1}", "s_nop 0")
        for ctl in ("quad_perm:[1,0,3,2]", "quad_perm:[2,3,0,1]"):
            k.e(f"v_add_f32_dpp v{ST}, v{ST}, v{ST} {ctl} row_mask:0xf bank_mask:0xf", f"v_add_f32_dpp v{ST+1}, v{ST+1}, v{ST+1} {ctl} row_mask:0xf bank_mask:0xf", "s_nop 0")
        k.e(f"v_and_b32 v{ST+1}, 0x7fffffff, v{ST+1}", "s_mov_b32 s38, 0x11111111", "s_mov_b32 s39, 0x11111111", "s_mov_b64 exec, s[38:39]",
            f"buffer_store_dwordx2 {v(ST,2)}, v{T[6]}, s[8:11], s37 offen sc1", "s_mov_b64 exec, -1")
        for i in range(10): k.e(f"v_cvt_pk_bf16_f32 v{X+i}, v{R+2*i}, v{R+2*i+1}")
        k.e(f"s_mov_b32 s40, {HH}")
        G = R+28
        k.e("s_mov_b32 s43, 0x40000")
        k.label("poll")
        k.e("s_sub_u32 s43, s43, 1", f"s_cbranch_scc1 {k.L('pollx')}")
        k.e(f"buffer_load_dwordx2 {v(G,2)}, v{T[2]}, s[8:11], s36 offen sc1", f"buffer_load_dwordx2 {v(G+2,2)}, v{T[2]}, s[8:11], s36 offen offset:512 sc1", "s_waitcnt vmcnt(0)",
            f"v_or_b32 v{G+4}, v{G+1}, v{G+3}", f"v_cmp_gt_i32 vcc, 0, v{G+4}", f"s_cbranch_vccnz {k.L('poll')}")
        k.label("pollx")
        k.e(f"v_pk_add_f32 {v(G,2)}, {v(G,2)}, {v(G+2,2)}", "s_nop 1")
        for ctl in ("quad_perm:[1,0,3,2]", "quad_perm:[2,3,0,1]"):
            k.e(f"v_add_f32_dpp v{G}, v{G}, v{G} {ctl} row_mask:0xf bank_mask:0xf", f"v_add_f32_dpp v{G+1}, v{G+1}, v{G+1} {ctl} row_mask:0xf bank_mask:0xf", "s_nop 0")
        c = hex(f2u(1.0/640)); e = hex(f2u(1e-5))
        k.e(f"v_mul_f32 v{G}, {c}, v{G}", f"v_mul_f32 v{G+1}, {c}, v{G+1}", f"v_fma_f32 v{G+1}, -v{G}, v{G}, v{G+1}", f"v_max_f32 v{G+1}, 0, v{G+1}",
            f"v_add_f32 v{G+2}, {e}, v{G+1}", f"v_rsq_f32 v{G+2}, v{G+2}", "s_nop 0", f"v_mul_f32 v{G+1}, v{G+1}, v{G+2}", f"v_mul_f32 v{G+1}, v{G+1}, v{G+2}",
            f"v_add_f32 v{G+1}, {e}, v{G+1}", f"v_rsq_f32 v{G+1}, v{G+1}", "s_nop 0", f"v_mul_f32 v{G+2}, v{G+1}, v{G+2}", f"v_mul_f32 v{G+3}, v{G}, v{G+2}", f"v_sub_f32 v{G+3}, 0, v{G+3}")
        for i in range(0, 20, 2): k.e(f"v_pk_fma_f32 {v(R+i,2)}, {v(R+i,2)}, {v(G+2,2)}, {v(G+2,2)} op_sel:[0,0,1] op_sel_hi:[1,0,1]")
        for i in range(10): k.e(f"v_cvt_pk_bf16_f32 v{U+i}, v{R+2*i}, v{R+2*i+1}")
        RS = 192
        IMG = 4*W
        k.lds = IMG + 64*RS
        k.e(f"v_mul_u32_u24 v{T[5]}, {RS}, v{tok}", f"v_lshl_add_u32 v{T[5]}, v{jq}, 3, v{T[5]}", f"v_add_u32 v{T[5]}, {IMG}, v{T[5]}")
        for i in range(5): k.e(f"ds_write_b64 v{T[5]}, {v(U+2*i,2)} offset:{32*i}")
        k.e(f"v_bfe_u32 v{T[2]}, v0, 4, 1", f"v_bfe_u32 v{T[6]}, v0, 2, 2", f"v_lshl_add_u32 v{T[6]}, v{T[2]}, 3, v{T[6]}", "s_lshl_b32 s41, s14, 4", f"v_add_u32 v{T[6]}, s41, v{T[6]}", f"v_mul_u32_u24 v{T[6]}, {RS}, v{T[6]}",
            f"v_bfe_u32 v{T[5]}, v0, 5, 1", f"v_lshl_add_u32 v{T[6]}, v{T[5]}, 5, v{T[6]}", f"v_lshl_add_u32 v{T[6]}, v{jq}, 3, v{T[6]}", f"v_add_u32 v{T[6]}, {IMG}, v{T[6]}")
        k.e("s_lshr_b32 s41, s20, 3", "s_lshl_b32 s42, s14, 1", "s_add_u32 s41, s41, s42", "s_mul_i32 s41, s41, 640", "s_add_u32 s41, s41, s19", "s_lshl_b32 s41, s41, 4", f"s_add_u32 s41, s41, {HN8}",
            f"v_mul_u32_u24 v{T[2]}, 640, v{T[2]}", f"v_lshl_add_u32 v{T[2]}, v{T[5]}, 4, v{T[2]}", f"v_add_lshl_u32 v{T[2]}, v{T[2]}, v{T[0]}, 4")
        k.e("s_waitcnt lgkmcnt(0)")
        for r in range(3):
            for t in range(2): k.e(f"ds_read_b64_tr_b16 {v(R+4*r+2*t,2)}, v{T[6]} offset:{64*r+4*t*RS}")
        for i in range(5): k.e(f"buffer_store_dwordx2 {v(X+2*i,2)}, v{X+10}, s[8:11], s40 offen offset:{32*i}")
        k.e("s_waitcnt lgkmcnt(0)")
        for r in range(3):
            if r == 2: k.e("s_mov_b32 exec_hi, 0")
            k.e(f"buffer_store_dwordx4 {v(R+4*r,4)}, v{T[2]}, s[8:11], s41 offen offset:{512*r}")
    return gemm_core("k3_kernel", 256, 5, 4, 20, ("x8", WO8, 640), ("x8", O8, 2048), mp, pre, epi, ["s_load_dwordx2 s[6:7], s[0:1], 0"], DEPTH=3, rotmode=rotmode, extra_regs=12)

def k4_mlp1(rotmode="win"):
    mp = [f"s_mul_hi_u32 s22, s17, {magic(5)}", "s_mul_i32 s18, s22, 5", "s_sub_u32 s18, s17, s18",
          "s_and_b32 s13, s16, 1", "s_mul_i32 s13, s13, 5", "s_add_u32 s13, s13, s18",
          "s_lshr_b32 s12, s16, 1", "s_mul_i32 s12, s12, 6", "s_add_u32 s12, s12, s22"]
    mp += ["s_mul_i32 s18, s18, 3", "s_lshl_b32 s22, s22, 1", "s_add_u32 s18, s18, s22", "s_and_b32 s18, s18, 15"] if rotmode == "full" else ["s_add_u32 s18, s18, s22"]
    def pre(k, T, X):
        k.e(srd(24, 6, 3072))
        for r in range(2):
            k.e(f"s_add_u32 s38, s14, {4*r}", "s_lshl_b32 s38, s38, 3", "s_add_u32 s38, s38, s19", "s_lshl_b32 s39, s38, 1", f"buffer_load_dwordx4 {v(X+4*r,4)}, off, s[24:27], s39",
                "s_lshr_b32 s38, s38, 3", f"s_mul_i32 s{48+r}, s38, 10240", f"s_add_u32 s{48+r}, s{48+r}, {U8}")
        return 2
    def epi(k, T, R0, TM, TN, TMP, X):
        W = TN*TMP*4
        c1 = -2.0*math.sqrt(2.0/math.pi)*math.log2(math.e); c3 = c1*0.044715
        k.e("s_mov_b32 s35, 0xffff0000", f"s_mov_b32 s36, {hex(f2u(c1))}", f"s_mov_b32 s37, {hex(f2u(c3))}")
        k.e(f"v_and_b32 v{T[3]}, 63, v0", f"v_mul_u32_u24 v{T[5]}, {TMP*4}, v{T[3]}", "s_lshl_b32 s38, s14, 5", f"v_add_u32 v{T[5]}, s38, v{T[5]}")
        k.e(f"v_add_lshl_u32 v{T[4]}, v{T[3]}, s20, 4", f"v_mov_b32 v{T[2]}, s36", "s_waitcnt lgkmcnt(0)", "s_barrier", "STAMP3")
        for r in range(2):
            R = R0 + 40*r
            for w in range(4):
                k.e(f"ds_read_b128 {v(R+8*w,4)}, v{T[5]} offset:{w*W+128*r}", f"ds_read_b128 {v(R+8*w+4,4)}, v{T[5]} offset:{w*W+128*r+16}")
        for r in range(2):
            R = R0 + 40*r
            for i in range(4): k.e(f"v_lshlrev_b32 v{R+32+2*i}, 16, v{X+4*r+i}", f"v_and_b32 v{R+33+2*i}, s35, v{X+4*r+i}")
        for r in range(2):
            R = R0 + 40*r
            k.e(f"s_waitcnt lgkmcnt({8*(1-r)})")
            sum4pk(k, R, 8)
            for i in range(0, 8, 2): k.e(f"v_pk_add_f32 {v(R+i,2)}, {v(R+i,2)}, {v(R+32+i,2)}")
            for i in range(0, 8, 2): k.e(f"v_pk_mul_f32 {v(R+8+i,2)}, {v(R+i,2)}, {v(R+i,2)}")
            for i in range(8): k.e(f"v_fma_f32 v{R+8+i}, v{R+8+i}, s37, v{T[2]}")
            for i in range(0, 8, 2): k.e(f"v_pk_mul_f32 {v(R+8+i,2)}, {v(R+8+i,2)}, {v(R+i,2)}")
            for i in range(8): k.e(f"v_exp_f32 v{R+8+i}, v{R+8+i}")
            for i in range(8): k.e(f"v_add_f32 v{R+8+i}, 1.0, v{R+8+i}")
            for i in range(8): k.e(f"v_rcp_f32 v{R+8+i}, v{R+8+i}")
            k.e("s_nop 0")
            for i in range(0, 8, 2): k.e(f"v_pk_mul_f32 {v(R+i,2)}, {v(R+i,2)}, {v(R+8+i,2)}")
            for i in range(4): k.e(f"v_cvt_pk_bf16_f32 v{R+16+i}, v{R+2*i}, v{R+2*i+1}")
            k.e(f"buffer_store_dwordx4 {v(R+16,4)}, v{T[4]}, s[8:11], s{48+r} offen")
    return gemm_core("k4_kernel", 240, 4, 4, 64, ("raw", srd(44, 28, 2048*1536*2), 3072), ("x8", HN8, 640), mp, pre, epi,
                     ["s_load_dwordx2 s[6:7], s[0:1], 40", "s_load_dwordx2 s[28:29], s[0:1], 32"], rotmode=rotmode, extra_regs=8)

def k5_mlp2(rotmode="win"):
    mp = ["s_and_b32 s12, s16, 1", "s_lshl_b32 s12, s12, 2", "s_and_b32 s18, s17, 3", "s_add_u32 s12, s12, s18",
          "s_lshr_b32 s13, s16, 1", "s_lshl_b32 s13, s13, 3", "s_lshr_b32 s22, s17, 2", "s_add_u32 s13, s13, s22"]
    mp += ["s_mul_i32 s18, s18, 3", "s_add_u32 s18, s18, s22", "s_cmp_ge_u32 s18, 12", "s_cselect_b32 s22, 12, 0", "s_sub_u32 s18, s18, s22"] if rotmode == "full" else ["s_add_u32 s18, s18, s22"]
    def pre(k, T, X):
        k.e(srd(24, 6, 4096), f"s_mov_b32 s34, {magic(10)}", f"s_mov_b32 s36, {HH}", "s_lshl_b32 s37, s19, 1")
        for r in range(3):
            Y = X + 8*r
            k.e(f"v_add_u32 v{T[2]}, {256*r}, v0", f"v_mul_hi_u32 v{T[3]}, v{T[2]}, s34", f"v_mul_u32_u24 v{T[4]}, 10, v{T[3]}", f"v_sub_u32 v{T[4]}, v{T[2]}, v{T[4]}")
            if r == 2: k.e(f"v_min_u32 v{T[3]}, 63, v{T[3]}")
            k.e(f"v_mul_u32_u24 v{Y+6}, {84*4}, v{T[3]}", f"v_lshl_add_u32 v{Y+6}, v{T[4]}, 5, v{Y+6}",
                f"v_add_u32 v{T[3]}, s20, v{T[3]}", f"v_mul_u32_u24 v{Y+5}, 1280, v{T[3]}", f"v_lshl_add_u32 v{Y+5}, v{T[4]}, 4, v{Y+5}", f"v_add_u32 v{Y+5}, s37, v{Y+5}",
                f"buffer_load_dwordx4 {v(Y,4)}, v{Y+5}, s[8:11], s36 offen", f"v_lshlrev_b32 v{T[3]}, 1, v{T[3]}", f"buffer_load_ushort v{Y+4}, v{T[3]}, s[24:27], 0 offen")
        return 6
    def epi(k, T, R0, TM, TN, TMP, X):
        W = TN*TMP*4
        k.e(srd(40, 30, 2048*640*2), "s_mov_b32 s35, 0xffff0000", "s_waitcnt lgkmcnt(0)", "s_barrier", "STAMP3")
        for r in range(3):
            R = R0 + 40*r; Y = X + 8*r
            if r == 2: k.e("s_cmp_ge_u32 s14, 2", f"s_cbranch_scc1 {k.L('sk')}")
            for w in range(4):
                k.e(f"ds_read_b128 {v(R+8*w,4)}, v{Y+6} offset:{w*W}", f"ds_read_b128 {v(R+8*w+4,4)}, v{Y+6} offset:{w*W+16}")
        k.label("sk")
        for r in range(3):
            R = R0 + 40*r; Y = X + 8*r
            if r == 2: k.e("s_cmp_ge_u32 s14, 2", f"s_cbranch_scc1 {k.L('end')}")
            k.e(f"v_lshlrev_b32 v{Y+4}, 16, v{Y+4}")
            for i in range(4): k.e(f"v_lshlrev_b32 v{R+32+2*i}, 16, v{Y+i}", f"v_and_b32 v{R+33+2*i}, s35, v{Y+i}")
            for i in range(0, 8, 2): k.e(f"v_pk_add_f32 {v(R+32+i,2)}, {v(R+32+i,2)}, {v(Y+4,2)} op_sel_hi:[1,0]")
            k.e(f"s_waitcnt lgkmcnt({8 if r == 0 else 0})")
            sum4pk(k, R, 8)
            for i in range(0, 8, 2): k.e(f"v_pk_add_f32 {v(R+i,2)}, {v(R+i,2)}, {v(R+32+i,2)}")
            for i in range(4): k.e(f"v_cvt_pk_bf16_f32 v{R+8+i}, v{R+2*i}, v{R+2*i+1}")
            k.e(f"buffer_store_dwordx4 {v(R+8,4)}, v{Y+5}, s[40:43], 0 offen")
    return gemm_core("k5_kernel", 256, 5, 4, 48, ("x8", U8, 640), ("raw", srd(44, 28, 2048*1536*2), 4096), mp, pre, epi,
                     ["s_load_dwordx2 s[6:7], s[0:1], 56", "s_load_dwordx2 s[30:31], s[0:1], 64", "s_load_dwordx2 s[28:29], s[0:1], 48"], rotmode=rotmode, extra_regs=24)

def build(out=None, diag=None, **o):
    ks = [k1_qkv(o.get("rot1", True), o.get("sc1", False), o.get("LA", 2)), k2_attn(prio=o.get("prio", 1), pf=o.get("pf", True), sc1=o.get("sc1", False)), k3_oproj(o.get("r3", "win")), k4_mlp1(o.get("r4", "win")), k5_mlp2(o.get("r5", "win"))]
    if out: open(out, "w").write(assemble_file(ks))
    if diag: open(diag, "w").write(assemble_file(ks, diag=True))
    return ks
if __name__ == "__main__":
    ks = build("v3.s", "diag.s")
    for k in ks: print(k.name, "vgpr", k.nv, "lds", k.lds, "lines", len(k.lines))
```

```python
def v(i, n=1):
    return f"v{i}" if n == 1 else f"v[{i}:{i+n-1}]"
def a(i, n=1):
    return f"a{i}" if n == 1 else f"a[{i}:{i+n-1}]"
def s(i, n=1):
    return f"s{i}" if n == 1 else f"s[{i}:{i+n-1}]"

STAMP_BASE = [0]
DIAG_OFF = 200<<20
DIAG_STRIDE = 1<<19
class Alloc:
    def __init__(self, start=0, limit=256):
        self.p = start; self.limit = limit
    def __call__(self, n=1, align=None):
        if align is None:
            align = 1 if n == 1 else (2 if n < 4 else 4)
        self.p = (self.p + align - 1) // align * align
        r = self.p
        self.p += n
        assert self.p <= self.limit, "out of registers"
        return r

class Kernel:
    def __init__(self, name, grid, block, lds):
        self.name = name; self.grid = grid; self.block = block; self.lds = lds
        self.lines = []
        self.nv = 256; self.ns = 96; self.acc = None
    def e(self, *ls):
        for l in ls:
            if isinstance(l, (list, tuple)):
                self.e(*l)
            else:
                for x in l.split("\n"):
                    x = x.strip()
                    if x: self.lines.append(x)
    def L(self, n):
        return f"L_{self.name}_{n}"
    def label(self, n):
        self.lines.append(self.L(n) + ":")
    def text(self, diag=None):
        lines = self.lines
        if diag is not None:
            pre = ["s_memrealtime s[88:89]", "s_memtime s[76:77]", "v_lshrrev_b32 v1, 6, v0", "s_nop 0", "v_readfirstlane_b32 s94, v1", "s_waitcnt lgkmcnt(0)"] + [f"s_mov_b32 s{r}, s88" for r in (80,82,84,86)]
            post = ["s_waitcnt vmcnt(0) lgkmcnt(0)", "s_memrealtime s[90:91]", "s_memtime s[78:79]", "s_load_dwordx2 s[92:93], s[0:1], 80", "s_lshl_b32 s95, s2, 4", "s_add_u32 s95, s95, s94", "s_lshl_b32 s95, s95, 5",
                    f"s_add_u32 s95, s95, {DIAG_OFF + diag*DIAG_STRIDE}", "s_mov_b64 exec, 1", "v_mov_b32 v1, s95", "s_waitcnt lgkmcnt(0)",
                    "v_mov_b32 v4, s88", "v_mov_b32 v5, s90", "v_mov_b32 v6, s80", "v_mov_b32 v7, s82", "v_mov_b32 v8, s84", "v_mov_b32 v9, s86",
                    "global_store_dwordx4 v1, v[4:7], s[92:93]", "s_sub_u32 s78, s78, s76", "v_mov_b32 v10, s78", "v_mov_b32 v11, 0", "global_store_dwordx4 v1, v[8:11], s[92:93] offset:16", "s_endpgm"]
            nl = list(pre)
            for l in lines:
                if l == "s_endpgm": nl += post
                elif l.startswith("STAMP"):
                    n = int(l[5:]) - STAMP_BASE[0]
                    if 0 <= n < 4: nl.append(f"s_memrealtime s[{80+2*n}:{81+2*n}]")
                else: nl.append(l)
            lines = nl
        else:
            lines = [l for l in lines if not l.startswith("STAMP")]
        body = "\n".join((l if l.endswith(":") else "    " + l) for l in lines)
        return f".globl {self.name}\n.p2align 8\n.type {self.name},@function\n{self.name}:\n{body}\n"
    def desc(self):
        nv = self.nv
        acc = self.acc if self.acc is not None else min(256, (nv + 3) // 4 * 4)
        return (f".p2align 6\n.amdhsa_kernel {self.name}\n  .amdhsa_next_free_vgpr {nv}\n  .amdhsa_next_free_sgpr {self.ns}\n"
                f"  .amdhsa_accum_offset {acc}\n  .amdhsa_group_segment_fixed_size 0\n  .amdhsa_kernarg_size 88\n"
                f"  .amdhsa_user_sgpr_count 2\n  .amdhsa_user_sgpr_kernarg_segment_ptr 1\n  .amdhsa_system_sgpr_workgroup_id_x 1\n"
                f".end_amdhsa_kernel\n")

def interleave(main, fill, lead=0):
    out = list(fill[:lead]); fill = fill[lead:]
    n = len(main); m = len(fill); j = 0
    for i, x in enumerate(main):
        out.append(x)
        k = (m * (i + 1) + n - 1) // n
        out.extend(fill[j:k]); j = k
    return out

def srd(d, base, nbytes):
    return [f"s_mov_b32 s{d}, s{base}", f"s_mov_b32 s{d+1}, s{base+1}", f"s_mov_b32 s{d+2}, {hex(nbytes)}", f"s_mov_b32 s{d+3}, 0x00020000"]

HEADER = """; Kernarg layout (88 bytes, ptrs only, base s[0:1]):
"""
def assemble_file(kernels, diag=False):
    t = HEADER
    for k in kernels:
        t += f"; @launch kernel={k.name} grid=({k.grid},1,1) block=({k.block},1,1) lds={k.lds}\n"
    t += '.amdgcn_target "amdgcn-amd-amdhsa--gfx950"\n.text\n'
    for i, k in enumerate(kernels):
        t += k.text(i if diag else None)
    t += '.section .rodata,"a"\n'
    for k in kernels:
        t += k.desc()
    return t
```

```python
from dsl import *
import math, struct
S=2048; D=640; F=1536
VP=648*16
QK8=0; VT8=QK8+161*2048*16; O8=VT8+256*VP; HH=O8+80*2048*16; HN8=HH+2048*1280; U8=HN8+256*640*16
WO8=U8+192*640*16; STATS=WO8+80*640*16; XST=STATS+256*512; CNT1=XST+2048*8; CNT2=CNT1+8*1024; WS_END=CNT1+32768
WS_BYTES=268435456
def f2u(x): return struct.unpack("<I", struct.pack("<f", x))[0]
QSCALE = math.log2(math.e)/math.sqrt(20.0)
def magic(d): return (2**32 + d - 1)//d
def waveid(k, sdst, vtmp):
    k.e(f"v_lshrrev_b32 v{vtmp}, 6, v0", "s_nop 0", f"v_readfirstlane_b32 s{sdst}, v{vtmp}")

def k1_qkv(rot=True, sc1=False, LA=2):
    k = Kernel("k1_kernel", 256, 512, 131072+1536)
    EX = 131072
    SC = " sc1" if sc1 else ""
    al = Alloc(1)
    T = [al() for _ in range(7)]
    acc = [[al(16) for _ in range(2)] for _ in range(2)]
    cs = al(16)
    xf = [[al(4) for _ in range(2)] for _ in range(2)]
    wf0 = [al(4) for _ in range(4)]
    wf1 = [al(4) for _ in range(2)]
    ones = al(2)
    xa = [al() for _ in range(4)]
    wa = [al() for _ in range(2)]
    ep = al(56)
    k.nv = al.p
    vx = [acc[0][0]+i for i in range(4)]; vw = [acc[0][0]+4+i for i in range(4)]
    k.e("s_load_dwordx4 s[4:7], s[0:1], 0", "s_load_dwordx4 s[48:51], s[0:1], 72", "s_load_dwordx2 s[10:11], s[0:1], 16")
    k.e("s_cmp_ge_u32 s2, 256", f"s_cbranch_scc1 {k.L('end')}")
    waveid(k, 26, T[0])
    k.e("s_and_b32 s36, s2, 7", "s_lshr_b32 s37, s2, 3",
        "s_lshr_b32 s24, s36, 1", "s_lshl_b32 s24, s24, 2", "s_and_b32 s38, s37, 3", "s_add_u32 s24, s24, s38",
        "s_and_b32 s25, s36, 1", "s_lshl_b32 s25, s25, 3", "s_lshr_b32 s39, s37, 2", "s_add_u32 s25, s25, s39",
        "v_and_b32 v0, 63, v0",
        "s_cmp_ge_u32 s25, 15", f"s_cbranch_scc1 {k.L('side')}",
        "s_cmp_lt_u32 s26, 4", f"s_cbranch_scc1 {k.L('cons')}")
    k.e("s_sub_u32 s26, s26, 4")
    if rot == "win":
        k.e("s_add_u32 s29, s38, s39", "s_mul_i32 s55, s38, 3", "s_lshr_b32 s55, s55, 1", "s_add_u32 s55, s55, s39", "s_cmp_ge_u32 s55, 6", "s_cselect_b32 s40, 6, 0", "s_sub_u32 s55, s55, s40",
            "s_add_u32 s55, s55, 4", "s_and_b32 s29, s29, 3", "s_mov_b32 s32, 0", "s_mov_b32 s56, 4", "s_mov_b32 s57, 0")
    elif rot: k.e("s_mul_i32 s29, s38, 3", "s_add_u32 s29, s29, s39", "s_cmp_ge_u32 s29, 10", "s_cselect_b32 s40, 10, 0", "s_sub_u32 s29, s29, s40")
    else: k.e("s_mov_b32 s29, 0")
    k.e(f"v_lshrrev_b32 v{T[0]}, 3, v0", f"v_lshrrev_b32 v{T[1]}, 4, v0", f"v_and_b32 v{T[2]}, 7, v0",
        "s_lshl_b32 s40, s24, 7", "s_lshl_b32 s41, s26, 5", "s_add_u32 s40, s40, s41",
        f"v_add_u32 v{T[0]}, s40, v{T[0]}", f"v_mul_u32_u24 v{T[0]}, 1280, v{T[0]}",
        f"v_xor_b32 v{T[3]}, v{T[2]}, v{T[1]}", f"v_lshl_add_u32 v{vx[0]}, v{T[3]}, 4, v{T[0]}",
        f"v_xor_b32 v{T[3]}, 4, v{T[3]}", f"v_lshl_add_u32 v{vx[1]}, v{T[3]}, 4, v{T[0]}",
        f"v_add_u32 v{vx[2]}, {2*(8*1280-1024)}, v{vx[0]}", f"v_add_u32 v{vx[3]}, {3*(8*1280-1024)}, v{vx[1]}", f"v_add_u32 v{vx[1]}, {8*1280-1024}, v{vx[1]}")
    k.e("s_lshl_b32 s40, s26, 4", f"v_add_u32 v{T[0]}, s40, v{T[1]}", f"v_mul_u32_u24 v{T[0]}, 3840, v{T[0]}",
        f"v_bfe_u32 v{T[2]}, v0, 2, 2", f"v_xor_b32 v{T[2]}, v{T[2]}, v{T[1]}", f"v_lshl_add_u32 v{T[0]}, v{T[2]}, 6, v{T[0]}",
        f"v_and_b32 v{T[2]}, 3, v0", f"v_lshl_add_u32 v{T[0]}, v{T[2]}, 4, v{T[0]}", "s_lshl_b32 s40, s25, 8", f"v_add_u32 v{vw[0]}, s40, v{T[0]}")
    for i in range(1, 4):
        k.e(f"v_add_u32 v{vw[i]}, {i*(4*3840-1024)}, v{vw[0]}")
    k.e("s_lshl_b32 s33, s26, 12", "s_waitcnt lgkmcnt(0)")
    k.e(srd(12, 4, 2048*640*2), srd(16, 6, 640*1920*2))
    def dma():
        r = ["s_lshl_b32 s30, s29, 7", "s_mul_i32 s31, s29, 245760", "s_mov_b32 m0, s33", "s_add_u32 s29, s29, 1"]
        r += [f"buffer_load_dwordx4 v{vx[i]}, s[12:15], s30 offen offset:{i*1024} lds" for i in range(4)]
        r += ["s_add_u32 m0, s33, 65536", "s_cmp_eq_u32 s29, s56" if rot == "win" else "s_cmp_eq_u32 s29, 10"]
        r += [f"buffer_load_dwordx4 v{vw[i]}, s[16:19], s31 offen offset:{i*1024} lds" for i in range(4)]
        r += ["s_cselect_b32 s29, s57, s29" if rot == "win" else "s_cselect_b32 s29, 0, s29", "s_add_u32 s33, s33, 16384", "s_and_b32 s33, s33, 0xffff"]
        if rot == "win": r += ["s_add_u32 s32, s32, 1", "s_cmp_eq_u32 s32, 4", "s_cselect_b32 s29, s55, s29", "s_cselect_b32 s56, 10, s56", "s_cselect_b32 s57, 4, s57"]
        return r
    for _ in range(LA-1): k.e(dma())
    k.e(f"s_mov_b32 s34, {10-LA+1}")
    k.label("hloop")
    k.e(dma(), f"s_waitcnt vmcnt({8*(LA-1)})", "s_barrier", "s_sub_u32 s34, s34, 1", "s_cmp_lg_u32 s34, 0", f"s_cbranch_scc1 {k.L('hloop')}")
    for i in range(LA-2, -1, -1): k.e(f"s_waitcnt vmcnt({8*i})", "s_barrier")
    k.e("STAMP2", "s_cmp_ge_u32 s26, 2", f"s_cbranch_scc1 {k.L('hfin')}")
    k.e(srd(20, 50, WS_BYTES), srd(44, 48, 256), "s_lshl_b32 s40, s24, 2", "s_mov_b32 s43, 0x40000")
    k.label("hpoll")
    k.e("s_sub_u32 s43, s43, 1", f"s_cbranch_scc1 {k.L('hgo')}", f"buffer_load_dword v{T[0]}, off, s[44:47], s40 sc1", "s_waitcnt vmcnt(0)", f"v_cmp_eq_u32 vcc, 0, v{T[0]}", f"s_cbranch_vccnz {k.L('hpoll')}")
    k.label("hgo")
    k.e("s_lshl_b32 s41, s26, 6", f"v_add_u32 v{T[0]}, s41, v0", f"v_lshlrev_b32 v{T[1]}, 3, v{T[0]}", "s_lshl_b32 s40, s24, 10", f"s_add_u32 s40, s40, {XST}",
        f"buffer_load_dwordx2 {v(acc[1][0],2)}, v{T[1]}, s[20:23], s40 offen sc1",
        "s_cmp_lt_u32 s25, 5", f"s_cselect_b32 s45, {hex(f2u(QSCALE))}, 1.0", f"v_lshlrev_b32 v{T[0]}, 2, v{T[0]}", f"v_add_u32 v{T[0]}, {EX}, v{T[0]}", "s_waitcnt vmcnt(0)",
        f"v_mul_f32 v{acc[1][0]}, s45, v{acc[1][0]}", f"v_mul_f32 v{acc[1][0]+1}, s45, v{acc[1][0]+1}",
        f"ds_write_b32 v{T[0]}, v{acc[1][0]}", f"ds_write_b32 v{T[0]}, v{acc[1][0]+1} offset:512", "s_waitcnt lgkmcnt(0)")
    k.label("hfin")
    k.e("STAMP3", "s_barrier", "s_endpgm")
    k.label("cons")
    k.e("s_lshr_b32 s27, s26, 1", "s_and_b32 s28, s26, 1")
    k.e(f"v_and_b32 v{T[0]}, 31, v0", f"v_lshrrev_b32 v{T[1]}, 5, v0", f"v_bfe_u32 v{T[2]}, v0, 1, 3", f"v_xor_b32 v{T[2]}, v{T[2]}, v{T[1]}",
        "s_lshl_b32 s40, s27, 6", f"v_add_u32 v{T[0]}, s40, v{T[0]}", f"v_lshlrev_b32 v{T[0]}, 7, v{T[0]}", f"v_lshl_add_u32 v{xa[0]}, v{T[2]}, 4, v{T[0]}")
    for ks in range(1, 4): k.e(f"v_xor_b32 v{xa[ks]}, {ks*32}, v{xa[0]}")
    k.e(f"v_bfe_u32 v{T[2]}, v0, 2, 2", f"v_lshl_add_u32 v{T[0]}, v{T[1]}, 3, v{T[2]}", f"v_lshlrev_b32 v{T[0]}, 8, v{T[0]}",
        "s_lshl_b32 s40, s28, 1", "s_add_u32 s40, s40, s27", f"v_xor_b32 v{T[2]}, s40, v{T[2]}", f"v_lshl_add_u32 v{T[0]}, v{T[2]}, 6, v{T[0]}",
        f"v_bfe_u32 v{T[2]}, v0, 4, 1", f"v_lshl_add_u32 v{T[0]}, v{T[2]}, 5, v{T[0]}", f"v_add_u32 v{T[0]}, 65536, v{T[0]}",
        f"v_and_b32 v{T[2]}, 3, v0",
        f"v_and_b32 v{T[3]}, 1, v0", f"v_lshlrev_b32 v{T[3]}, 1, v{T[3]}", f"v_bfe_u32 v{T[4]}, v0, 1, 1", f"v_or_b32 v{T[3]}, v{T[3]}, v{T[4]}",
        "s_cmp_ge_u32 s25, 10", "s_cselect_b64 vcc, -1, 0", f"v_cndmask_b32 v{T[2]}, v{T[3]}, v{T[2]}, vcc",
        f"v_lshl_add_u32 v{wa[0]}, v{T[2]}, 3, v{T[0]}", f"v_xor_b32 v{wa[1]}, 64, v{wa[0]}")
    for i in range(2): k.e(f"v_mov_b32 v{ones+i}, 0x3f803f80")
    for r in [acc[0][0]+i for i in range(64)]+[cs+i for i in range(16)]:
        k.e(f"v_mov_b32 v{r}, 0")
    k.e("s_mov_b32 s35, 16384", "s_mov_b32 s34, 9", "s_waitcnt lgkmcnt(0)", srd(20, 50, WS_BYTES))
    def reads(ks):
        buf = ks % 2
        r = [f"ds_read_b128 {v(xf[buf][0],4)}, v{xa[ks]}"]
        for t in range(2): r.append(f"ds_read_b64_tr_b16 {v(wf0[ks]+2*t,2)}, v{wa[0]} offset:{(16*ks+4*t)*256}")
        for t in range(2): r.append(f"ds_read_b64_tr_b16 {v(wf1[buf]+2*t,2)}, v{wa[1]} offset:{(16*ks+4*t)*256}")
        r.append(f"ds_read_b128 {v(xf[buf][1],4)}, v{xa[ks]} offset:4096")
        return r
    def mf(ks, isv):
        r = []
        for xs in range(2):
            for ws in range(2):
                W = wf0[ks] if ws == 0 else wf1[ks % 2]
                X = xf[ks % 2][xs]
                A, B = (X, W) if isv else (W, X)
                r.append(f"v_mfma_f32_32x32x16_bf16 {v(acc[xs][ws],16)}, {v(A,4)}, {v(B,4)}, {v(acc[xs][ws],16)}")
        return r
    k.e("STAMP0", "s_barrier", "STAMP1")
    k.e(reads(0))
    k.e("s_cmp_ge_u32 s25, 10", f"s_cbranch_scc1 {k.L('loopv')}")
    def loop(isv):
        nm = "loopv" if isv else "loopq"
        k.label(nm)
        for ks in range(3):
            m = mf(ks, isv)
            k.e("s_waitcnt lgkmcnt(0)", m[0], reads(ks+1), m[1:])
        k.e("s_waitcnt lgkmcnt(0)")
        for ks in range(4):
            for t in range(2):
                c_ = cs + 4*((2*ks+t) % 4)
                k.e(f"v_mfma_f32_4x4x4_16b_bf16 {v(c_,4)}, {v(ones,2)}, {v(wf0[ks]+2*t,2)}, {v(c_,4)}")
        m = mf(3, isv)
        k.e("s_sub_u32 s34, s34, 1", f"s_cbranch_scc1 {k.L(nm+'x')}", "s_barrier")
        xors = [f"v_xor_b32 v{r}, s35, v{r}" for r in [xa[0], wa[0], wa[1]]]
        xors2 = [f"v_xor_b32 v{xa[ks]}, s35, v{xa[ks]}" for ks in range(1, 4)]
        k.e(m[0], xors, reads(0), m[1], xors2, "s_xor_b32 s35, s35, 32768", m[2], m[3], f"s_branch {k.L(nm)}")
        k.label(nm+'x')
        k.e("STAMP2", m[0], m[1])
        k.e(f"v_and_b32 v{T[0]}, 31, v0", "s_lshl_b32 s40, s28, 6", "s_lshl_b32 s41, s27, 5", "s_add_u32 s44, s40, s41", "s_lshl_b32 s43, s27, 6")
        k.e(f"v_add_f32 v{cs}, v{cs}, v{cs+4}", f"v_add_f32 v{cs+8}, v{cs+8}, v{cs+12}", f"v_add_f32 v{cs}, v{cs}, v{cs+8}")
        k.e(f"v_mov_b32 v{T[3]}, v{cs}", m[2], f"v_add_lshl_u32 v{T[2]}, v{T[0]}, s44, 2", f"v_add_u32 v{T[2]}, {EX}, v{T[2]}", f"v_permlane32_swap_b32 v{cs}, v{T[3]}",
            "s_nop 0", f"v_add_f32 v{cs}, v{cs}, v{T[3]}", f"ds_write_b32 v{T[2]}, v{cs} offset:1024", m[3])
        hf = T[3]
        k.e(f"v_lshrrev_b32 v{hf}, 5, v0")
        if not isv:
            RM = [ep+0, ep+2]; C = [ep+4, ep+20]; out = ep+36
            k.e(f"v_add_lshl_u32 v{T[1]}, v{T[0]}, s43, 2", f"v_add_u32 v{T[1]}, {EX}, v{T[1]}", f"v_add_u32 v{T[4]}, 128, v{T[1]}")
            k.e(f"v_lshlrev_b32 v{T[5]}, 4, v{hf}", "s_lshl_b32 s40, s44, 2", f"s_add_u32 s40, s40, {EX}", f"v_add_u32 v{T[5]}, s40, v{T[5]}", f"v_xor_b32 v{T[6]}, 128, v{T[5]}")
            k.e("s_lshl_b32 s40, s25, 4", "s_lshl_b32 s41, s28, 3", "s_add_u32 s40, s40, s41", f"v_add_u32 v{T[2]}, s40, v{hf}", f"v_lshlrev_b32 v{T[2]}, 11, v{T[2]}",
                "s_lshl_b32 s40, s24, 7", "s_add_u32 s40, s40, s43", f"v_add3_u32 v{T[2]}, v{T[2]}, s40, v{T[0]}", f"v_lshlrev_b32 v{T[2]}, 4, v{T[2]}")
            k.e("s_lshl_b32 s46, s27, 17", "s_waitcnt lgkmcnt(0)", "s_barrier", "STAMP3")
            k.e(f"ds_read2st64_b32 {v(RM[0],2)}, v{T[1]} offset0:0 offset1:2", f"ds_read2st64_b32 {v(RM[1],2)}, v{T[4]} offset0:0 offset1:2")
            for ws in range(2):
                for q in range(4):
                    k.e(f"ds_read_b128 {v(C[ws]+4*q,4)}, v{T[5+ws]} offset:{1024+q*32}")
            n = 0
            for ws in range(2):
                k.e(f"s_waitcnt lgkmcnt({4*(1-ws)})")
                for xs in range(2):
                    A = acc[xs][ws]
                    for p in range(2):
                        o = out + 4*(n % 4); n += 1
                        for j in range(0, 8, 2):
                            r = 8*p+j
                            k.e(f"v_pk_mul_f32 {v(A+r,2)}, {v(A+r,2)}, {v(RM[xs],2)} op_sel_hi:[1,0]",
                                f"v_pk_fma_f32 {v(A+r,2)}, {v(C[ws]+r,2)}, {v(RM[xs],2)}, {v(A+r,2)} op_sel:[0,1,0] op_sel_hi:[1,1,1]")
                        for j in range(4):
                            k.e(f"v_cvt_pk_bf16_f32 v{o+j}, v{A+8*p+2*j}, v{A+8*p+2*j+1}")
                        k.e(f"s_xor_b32 s47, s46, {ws*131072}", f"s_add_u32 s47, s47, {QK8 + p*65536}",
                            f"buffer_store_dwordx4 {v(o,4)}, v{T[2]}, s[20:23], s47 offen offset:{xs*512}{SC}")
        else:
            Cn = ep+0; R = ep+4; M = ep+20; out = ep+36
            k.e(f"v_xor_b32 v{T[4]}, 128, v{T[2]}")
            k.e(f"v_lshlrev_b32 v{T[5]}, 4, v{hf}", "s_lshl_b32 s40, s43, 2", f"s_add_u32 s40, s40, {EX}", f"v_add_u32 v{T[5]}, s40, v{T[5]}")
            k.e("s_lshl_b32 s40, s24, 4", "s_lshl_b32 s41, s27, 3", "s_add_u32 s40, s40, s41", f"v_add_u32 v{T[1]}, s40, v{hf}", f"v_mul_u32_u24 v{T[1]}, 648, v{T[1]}",
                "s_sub_u32 s40, s25, 10", "s_lshl_b32 s40, s40, 7", "s_lshl_b32 s41, s28, 6", "s_add_u32 s40, s40, s41", f"v_add3_u32 v{T[1]}, v{T[1]}, s40, v{T[0]}", f"v_lshlrev_b32 v{T[1]}, 4, v{T[1]}")
            k.e("s_waitcnt lgkmcnt(0)", "s_barrier", "STAMP3")
            k.e(f"ds_read_b32 v{Cn}, v{T[2]} offset:1024", f"ds_read_b32 v{Cn+1}, v{T[4]} offset:1024")
            n = 0
            for xs in range(2):
                for q in range(4):
                    k.e(f"ds_read_b128 {v(R+4*q,4)}, v{T[5]} offset:{xs*128+q*32}", f"ds_read_b128 {v(M+4*q,4)}, v{T[5]} offset:{512+xs*128+q*32}")
                k.e("s_waitcnt lgkmcnt(0)")
                for ws in range(2):
                    A = acc[xs][ws]
                    k.e(f"s_xor_b32 s52, s27, {ws}", "s_lshl_b32 s52, s52, 9")
                    for p in range(2):
                        o = out + 4*(n % 4); n += 1
                        for j in range(0, 8, 2):
                            r = 8*p+j
                            k.e(f"v_pk_mul_f32 {v(A+r,2)}, {v(A+r,2)}, {v(R+r,2)}",
                                f"v_pk_fma_f32 {v(A+r,2)}, {v(M+r,2)}, {v(Cn,2)}, {v(A+r,2)} op_sel:[0,{ws},0] op_sel_hi:[1,{ws},1]")
                        for j in range(4):
                            k.e(f"v_cvt_pk_bf16_f32 v{o+j}, v{A+8*p+2*j}, v{A+8*p+2*j+1}")
                        k.e(f"s_add_u32 s47, s52, {VT8 + p*2*VP + xs*4*VP}", f"buffer_store_dwordx4 {v(o,4)}, v{T[1]}, s[20:23], s47 offen{SC}")
        k.e("s_endpgm")
    loop(False)
    loop(True)
    k.label("side")
    XR = 16
    k.e("v_lshrrev_b32 v1, 3, v0", "v_mul_u32_u24 v1, 1280, v1", "v_and_b32 v2, 7, v0", "v_lshl_add_u32 v1, v2, 4, v1", "v_add_u32 v8, 10240, v1",
        "s_lshl_b32 s54, s24, 3", "s_add_u32 s54, s54, s26", f"s_mul_i32 s27, s54, {16*1280}", "s_waitcnt lgkmcnt(0)", srd(12, 4, 2048*640*2))
    for hb in range(2):
        for i in range(10): k.e(f"buffer_load_dwordx4 {v(XR+40*hb+4*i,4)}, v{1 if hb == 0 else 8}, s[12:15], s27 offen offset:{128*i}")
    k.e(srd(20, 50, WS_BYTES), srd(16, 10, 640*640*2), srd(44, 48, 256), "s_mov_b32 s42, 0x3f803f80")
    for r in range(100, 116): k.e(f"v_mov_b32 v{r}, 0")
    for hb in range(2):
        for i in range(10):
            k.e(f"s_waitcnt vmcnt({19-10*hb-i})")
            for d in range(4):
                x = XR+40*hb+4*i+d
                k.e(f"v_dot2c_f32_bf16 v{100+8*hb+2*d}, s42, v{x}", f"v_dot2c_f32_bf16 v{101+8*hb+2*d}, v{x}, v{x}")
    k.e("s_nop 2")
    for hb in range(2):
        b = 100+8*hb
        k.e(f"v_pk_add_f32 {v(b,2)}, {v(b,2)}, {v(b+2,2)}", f"v_pk_add_f32 {v(b+4,2)}, {v(b+4,2)}, {v(b+6,2)}", f"v_pk_add_f32 {v(4+2*hb,2)}, {v(b,2)}, {v(b+4,2)}")
    k.e("s_nop 1")
    for ctl in ("quad_perm:[1,0,3,2]", "quad_perm:[2,3,0,1]", "row_half_mirror"):
        for r in (4, 5, 6, 7): k.e(f"v_add_f32_dpp v{r}, v{r}, v{r} {ctl} row_mask:0xf bank_mask:0xf")
    k.e("v_cmp_eq_u32 vcc, 1, v2", "s_nop 1", "v_cndmask_b32 v4, v4, v6, vcc", "v_cndmask_b32 v5, v5, v7, vcc")
    c = hex(f2u(1.0/640)); e = hex(f2u(1e-5))
    k.e(f"v_mul_f32 v4, {c}, v4", f"v_mul_f32 v5, {c}, v5", "v_fma_f32 v5, -v4, v4, v5", "v_max_f32 v5, 0, v5", f"v_add_f32 v5, {e}, v5", "v_rsq_f32 v6, v5", "v_lshrrev_b32 v9, 3, v0",
        "v_mul_f32 v7, v4, v6", "v_sub_f32 v7, 0, v7", "v_lshl_add_u32 v9, v2, 3, v9", "v_lshlrev_b32 v9, 3, v9",
        "s_lshl_b32 s30, s54, 7", f"s_add_u32 s30, s30, {XST}", "s_mov_b32 s40, 0x03030303", "s_mov_b32 s41, 0x03030303", "s_mov_b64 exec, s[40:41]",
        "buffer_store_dwordx2 v[6:7], v9, s[20:23], s30 offen sc1", "s_mov_b64 exec, -1", "s_waitcnt vmcnt(0)", "s_barrier")
    k.e("s_cmp_lg_u32 s26, 0", f"s_cbranch_scc1 {k.L('nf')}", "s_lshl_b32 s40, s24, 2", "v_mov_b32 v4, 1", "s_mov_b64 exec, 1", "buffer_store_dword v4, off, s[44:47], s40 sc1", "s_mov_b64 exec, -1")
    k.label("nf")
    k.e("STAMP0")
    k.e("v_lshlrev_b32 v3, 4, v0", "v_mov_b32 v4, -1", "v_mov_b32 v5, -1", "v_mov_b32 v6, -1", "v_mov_b32 v7, -1",
        "s_lshl_b32 s30, s54, 10", f"s_add_u32 s30, s30, {STATS}", "buffer_store_dwordx4 v[4:7], v3, s[20:23], s30 offen")
    k.e("v_mov_b32 v12, 0", "v_mov_b32 v13, 0", "v_mov_b32 v14, 0", "v_mov_b32 v15, 0", "s_lshl_b32 s30, s54, 8", f"s_add_u32 s30, s30, {CNT1}", "s_mov_b64 exec, 0xffff",
        "buffer_store_dwordx4 v[12:15], v3, s[20:23], s30 offen", "s_mov_b64 exec, -1", "s_nop 1")
    k.e("v_mov_b32 v12, s42", "v_mov_b32 v13, 0", "v_mov_b32 v14, s42", "v_mov_b32 v15, 0", "s_lshl_b32 s30, s54, 8", f"s_add_u32 s30, s30, {QK8+160*2048*16}", "s_mov_b64 exec, 0xffff",
        "buffer_store_dwordx4 v[12:15], v3, s[20:23], s30 offen",
        "v_mov_b32 v16, s42", "v_mov_b32 v17, s42", "v_mov_b32 v18, s42", "v_mov_b32 v19, s42", f"v_mul_u32_u24 v10, {VP}, v0", f"s_mul_i32 s30, s54, {2*VP}", f"s_add_u32 s30, s30, {VT8+640*16}", "s_mov_b64 exec, 3",
        "buffer_store_dwordx4 v[16:19], v10, s[20:23], s30 offen", "s_mov_b64 exec, -1")
    k.e("s_cmp_ge_u32 s54, 100", f"s_cbranch_scc1 {k.L('end')}")
    k.e(f"s_mul_hi_u32 s22, s54, {magic(10)}".replace("s22", "s52"), "s_mul_i32 s53, s52, 10", "s_sub_u32 s53, s54, s53")
    k.e(f"s_mul_i32 s27, s52, {64*1280}", "s_lshl_b32 s28, s53, 7", "s_add_u32 s27, s27, s28", "s_lshl_b32 s29, s26, 13")
    for u in range(8):
        k.e(f"s_add_u32 m0, s29, {u*1024}", "s_nop 0", "buffer_load_dwordx4 v1, s[16:19], s27 offen lds", "s_add_u32 s27, s27, 10240")
    k.e("v_bfe_u32 v2, v0, 2, 2", "v_lshlrev_b32 v2, 7, v2", "v_lshrrev_b32 v9, 4, v0", "v_lshl_add_u32 v2, v9, 5, v2", "v_and_b32 v9, 3, v0", "v_lshl_add_u32 v2, v9, 3, v2", "v_add_u32 v2, s29, v2")
    k.e(f"s_mul_i32 s30, s52, {8*10240}", "s_lshl_b32 s31, s53, 10", "s_add_u32 s30, s30, s31", f"s_add_u32 s30, s30, {WO8}")
    k.e("s_waitcnt vmcnt(0)")
    for u in range(8):
        for t in range(2):
            k.e(f"ds_read_b64_tr_b16 {v(20+4*u+2*t,2)}, v2 offset:{u*1024+t*512}")
    k.e("s_waitcnt lgkmcnt(0)")
    for u in range(8):
        k.e(f"buffer_store_dwordx4 {v(20+4*u,4)}, v3, s[20:23], s30 offen", "s_add_u32 s30, s30, 10240")
    k.label("end"); k.e("s_endpgm")
    return k

def k2_attn(NB=4, prio=1, pf=True, sc1=False, spread=False, k2x4=False):
    k = Kernel("k2_kernel", 256, 512, 73728+64)
    SC = " sc1" if sc1 else ""
    NG = 16//NB
    al = Alloc(1)
    T = [al() for _ in range(7)]
    O = [al(16) for _ in range(4)]
    Sx = [al(16) for _ in range(4)]
    P = al(8)
    Q1 = [al(4) for _ in range(4)]; Q2 = [al(2) for _ in range(4)]
    K1 = [al(4) for _ in range(NB)]; K2 = [al(4 if k2x4 else 2) for _ in range(NB)]
    KW = 4 if k2x4 else 2
    V = [al(8) for _ in range(NB)]
    vK1, vK2, vQ1, vQ2 = al(), al(), al(), al()
    vV = [[al(), al()] for _ in range(NB)]
    MX = [al() for _ in range(4)]
    PF = [al()]
    k.nv = al.p
    OOB = 0x40000000
    k.e("s_load_dwordx2 s[4:5], s[0:1], 80", "s_load_dwordx2 s[56:57], s[0:1], 32", "s_load_dwordx2 s[58:59], s[0:1], 48", "s_cmp_ge_u32 s2, 256", f"s_cbranch_scc1 {k.L('end')}")
    waveid(k, 14, T[0])
    k.e("s_and_b32 s12, s2, 7", "s_lshl_b32 s12, s12, 2", "s_bfe_u32 s13, s2, 0x20003", "s_add_u32 s12, s12, s13", "s_lshr_b32 s13, s2, 5")
    if prio:
        k.e("s_cmp_lt_u32 s14, 4", f"s_cbranch_scc1 {k.L('np')}", "s_setprio 1"); k.label("np")
    k.e("v_and_b32 v0, 63, v0", "s_and_b32 s15, s14, 1", "s_lshr_b32 s16, s14, 1",
        "s_and_b32 s17, s12, 1", "s_lshr_b32 s18, s12, 1", "s_mul_i32 s18, s18, 5", "s_mul_i32 s19, s17, 3", "s_add_u32 s19, s19, s18")
    l32, hf = T[0], T[1]
    k.e(f"v_and_b32 v{l32}, 31, v0", f"v_lshrrev_b32 v{hf}, 5, v0", "v_cmp_gt_u32 vcc, 32, v0")
    k.e("s_lshl_b32 s31, s13, 8", "s_lshl_b32 s32, s15, 7", "s_add_u32 s31, s31, s32",
        f"v_add_u32 v{T[2]}, s19, v{hf}", f"v_lshl_add_u32 v{T[2]}, v{T[2]}, 11, v{l32}",
        f"v_add_lshl_u32 v{vQ1}, v{T[2]}, s31, 4", f"s_mov_b32 s34, {80*2048}", f"v_add_lshl_u32 v{vK1}, v{T[2]}, s34, 4",
        "s_add_u32 s32, s18, 2", "s_lshl_b32 s32, s32, 15", "s_lshl_b32 s33, s17, 3", "s_add_u32 s32, s32, s33",
        f"v_lshlrev_b32 v{T[3]}, 4, v{l32}",
        "s_lshl_b32 s33, s31, 4", "s_add_u32 s33, s33, s32", f"v_add_u32 v{T[4]}, s33, v{T[3]}", f"v_mov_b32 v{T[5]}, {OOB}", f"v_cndmask_b32 v{vQ2}, v{T[5]}, v{T[4]}, vcc",
        f"s_add_u32 s32, s32, {80*2048*16}", f"v_mov_b32 v{T[4]}, s32", f"v_mov_b32 v{T[6]}, {160*2048*16}", f"v_cndmask_b32 v{T[4]}, v{T[6]}, v{T[4]}, vcc", f"v_add_u32 v{vK2}, v{T[4]}, v{T[3]}")
    for j in range(4):
        k.e(f"s_add_u32 s36, s16, {j}", "s_and_b32 s36, s36, 3", f"s_lshl_b32 s{40+j}, s36, 9")
    k.e("s_waitcnt lgkmcnt(0)", srd(8, 4, WS_BYTES))
    k.e(f"buffer_load_dwordx4 {v(K1[NB-1],4)}, v{vK1}, s[8:11], 0 offen", f"buffer_load_dwordx2 {v(K2[NB-1],2)}, v{vK2}, s[8:11], 0 offen")
    for j in range(4): k.e(f"buffer_load_dwordx4 {v(Q1[j],4)}, v{vQ1}, s[8:11], s{40+j} offen", f"buffer_load_dwordx2 {v(Q2[j],2)}, v{vQ2}, s[8:11], s{40+j} offen")
    k.e(f"v_bfe_u32 v{T[2]}, v0, 2, 1", f"v_lshlrev_b32 v{T[2]}, 3, v{T[2]}", f"v_bfe_u32 v{T[3]}, v0, 3, 1", f"v_lshl_add_u32 v{T[2]}, v{T[3]}, 2, v{T[2]}",
        f"v_and_b32 v{T[3]}, 3, v0", "s_lshl_b32 s35, s17, 2", f"v_add3_u32 v{T[2]}, v{T[2]}, v{T[3]}, s35",
        "s_lshl_b32 s35, s17, 4", f"v_subrev_u32 v{T[3]}, s35, v{l32}",
        f"v_cmp_gt_u32 vcc, 16, v{l32}", f"v_cmp_eq_u32 s[20:21], 20, v{l32}", f"v_cmp_lt_u32 s[22:23], 20, v{l32}", "s_mul_i32 s35, s12, 20", f"v_cndmask_b32 v{T[2]}, v{T[3]}, v{T[2]}, vcc",
        f"v_add_u32 v{T[2]}, s35, v{T[2]}", f"v_mov_b32 v{T[3]}, 640", f"v_cndmask_b32 v{T[2]}, v{T[2]}, v{T[3]}, s[20:21]",
        f"v_mul_u32_u24 v{T[4]}, 648, v{hf}", f"v_add_lshl_u32 v{T[2]}, v{T[2]}, v{T[4]}, 4", f"v_cndmask_b32 v{T[2]}, v{T[2]}, v{T[5]}, s[22:23]")
    def grp():
        return [f"s_and_b32 s20, s20, {NG-1}", "s_add_u32 s23, s20, s37", f"s_mul_i32 s21, s23, {512*NB}", f"s_mul_i32 s22, s23, {4*VP*NB}", "s_add_u32 s20, s20, 1"]
    def burst(b):
        return [f"buffer_load_dwordx4 {v(K1[b],4)}, v{vK1}, s[8:11], s21 offen offset:{512*b}", f"buffer_load_dwordx{KW} {v(K2[b],KW)}, v{vK2}, s[8:11], s21 offen offset:{512*b}",
                f"buffer_load_dwordx4 {v(V[b],4)}, v{vV[b][0]}, s[8:11], s22 offen", f"buffer_load_dwordx4 {v(V[b]+4,4)}, v{vV[b][1]}, s[8:11], s22 offen"]
    qk1 = lambda sb, kb, qt: f"v_mfma_f32_32x32x16_bf16 {v(Sx[sb],16)}, {v(K1[kb],4)}, {v(Q1[qt],4)}, 0"
    qk2 = lambda sb, kb, qt: f"v_mfma_f32_32x32x8_bf16 {v(Sx[sb],16)}, {v(K2[kb],2)}, {v(Q2[qt],2)}, {v(Sx[sb],16)}"
    pv = lambda half, kb, qt: f"v_mfma_f32_32x32x16_bf16 {v(O[qt],16)}, {v(V[kb]+4*half,4)}, {v(P+4*half,4)}, {v(O[qt],16)}"
    def maxtree(sb, dst, first):
        r = []
        s_ = Sx[sb]
        if first:
            r.append(f"v_max3_f32 v{dst}, v{s_}, v{s_+1}, v{s_+2}")
            for i in range(3, 15, 2): r.append(f"v_max3_f32 v{dst}, v{dst}, v{s_+i}, v{s_+i+1}")
            r.append(f"v_max_f32 v{dst}, v{dst}, v{s_+15}")
        else:
            for i in range(0, 16, 2): r.append(f"v_max3_f32 v{dst}, v{dst}, v{s_+i}, v{s_+i+1}")
        return r
    k.e(f"s_mul_i32 s37, s16, {NG}", "s_mov_b32 s20, s13", grp())
    for b in range(NB):
        k.e(f"v_add_u32 v{vV[b][0]}, {VT8 + 4*b*VP}, v{T[2]}", f"v_add_u32 v{vV[b][1]}, {VT8 + (4*b+2)*VP}, v{T[2]}")
        if b < NB-1: k.e(burst(b))
    def zeroO():
        return [f"v_mov_b32 v{P+i}, 0" for i in range(4, 8)] + [f"v_mov_b32 v{V[NB-1]+i}, 0" for i in range(4, 8)] + \
               [f"v_mfma_f32_32x32x16_bf16 {v(O[j],16)}, {v(P+4,4)}, {v(P+4,4)}, 0" for j in range(4)]
    k.e(zeroO())
    k.e("s_mov_b32 s26, 0", "s_mov_b32 s27, -1", "s_mov_b32 s29, 0", "s_mov_b32 s38, 0xffff0000", "s_mov_b32 s39, 0x07060302")
    k.e("STAMP0", f"s_waitcnt vmcnt({4*(NB-1)})", "STAMP1")
    for j in range(4): k.e(qk1(j, NB-1, j), qk2(j, NB-1, j))
    k.e("s_nop 7")
    for j in range(4): k.e(maxtree(j, MX[j], True))
    k.label("setm")
    k.e("s_mov_b64 exec, s[26:27]")
    for j in range(4):
        k.e(f"v_and_b32 v{T[3]}, s38, v{MX[j]}", f"v_sub_f32 v{T[4]}, v{T[3]}, v{MX[j]}", f"v_xor_b32 v{T[3]}, 0x80000000, v{T[3]}", f"v_perm_b32 v{Q2[j]}, v{T[4]}, v{T[3]}, s39")
    k.e("s_mov_b64 exec, -1")
    k.e(f"s_waitcnt vmcnt({4*(NB-2)})", qk1(0, 0, 0), qk2(0, 0, 0), f"s_mov_b32 s28, {NG}")
    if pf:
        k.e("s_lshl_b32 s60, s2, 2", "s_add_u32 s60, s60, s16", f"s_mul_i32 s72, s60, {48*128}", "s_cmp_eq_u32 s15, 0", "s_cselect_b32 s64, s56, s58", "s_cselect_b32 s65, s57, s59",
            f"s_mov_b32 s66, {hex(2048*1536*2)}", "s_mov_b32 s67, 0x00020000",
            f"v_lshlrev_b32 v{T[3]}, 7, v0", f"v_cmp_gt_u32 vcc, {48//NG}, v0", f"v_mov_b32 v{T[4]}, {OOB}", "s_nop 0", f"v_cndmask_b32 v{PF[0]}, v{T[4]}, v{T[3]}, vcc")
    else:
        k.e("s_nop 10")
    k.e("STAMP2", ".p2align 6")
    k.label("loop")
    ex = lambda sb, i: f"v_exp_f32 v{Sx[sb]+i}, v{Sx[sb]+i}"
    cv = lambda sb, i: f"v_cvt_pk_bf16_f32 v{P+i}, v{Sx[sb]+2*i}, v{Sx[sb]+2*i+1}"
    NT = 4*NB
    for n in range(NT):
        kt, qt = n//4, n % 4
        n1 = (n+1) % NT; n0 = (n-1) % NT
        sb = n % 2
        if qt == 3: k.e(f"s_waitcnt vmcnt({4*(NB-2) - (1 if spread else 0) + (1 if pf and kt < NB-1 else 0)})")
        k.e(qk1(1-sb, n1//4, n1 % 4))
        k.e([ex(sb, i) for i in range(0, 4)])
        k.e(pv(1, n0//4, n0 % 4))
        if spread:
            k.e(burst((kt-1) % NB)[qt])
            if kt == 0 and qt == 3: k.e(grp())
        if qt == 0:
            if not spread:
                k.e(burst((kt-1) % NB))
                if kt == 0:
                    k.e(grp())
                    if pf: k.e(f"buffer_load_dword v{T[6]}, v{PF[0]}, s[64:67], s72 offen", f"s_add_u32 s72, s72, {48//NG*128}")
            if prio and kt == NB-prio:
                k.e("s_cmp_lg_u32 s28, 1", f"s_cbranch_scc1 {k.L('kp')}", "s_setprio 0"); k.label("kp")
        k.e(cv(sb, 0), cv(sb, 1))
        k.e([ex(sb, i) for i in range(4, 8)])
        k.e(qk2(1-sb, n1//4, n1 % 4))
        k.e(cv(sb, 2), cv(sb, 3))
        k.e([ex(sb, i) for i in range(8, 12)])
        k.e(pv(0, kt, qt))
        k.e(cv(sb, 4), cv(sb, 5))
        k.e([ex(sb, i) for i in range(12, 16)])
        k.e(cv(sb, 6), cv(sb, 7))
    k.e("s_sub_u32 s28, s28, 1", "s_cmp_lg_u32 s28, 0", f"s_cbranch_scc1 {k.L('loop')}")
    k.e(pv(1, NB-1, 3), "STAMP3")
    wa_ = [T[2], T[3], T[4]]
    k.e(f"v_lshlrev_b32 v{T[5]}, 4, v0", "s_lshl_b32 s44, s15, 2")
    for j in range(1, 4):
        k.e(f"s_add_u32 s36, s16, {j}", "s_and_b32 s36, s36, 3", "s_add_u32 s36, s36, s44", "s_mul_i32 s36, s36, 9216", f"s_add_u32 s36, s36, {(j-1)*3072}", f"v_add_u32 v{wa_[j-1]}, s36, v{T[5]}")
        for q in range(3): k.e(f"ds_write_b128 v{wa_[j-1]}, {v(O[j]+4*q,4)} offset:{q*1024}")
    k.e("s_add_u32 s36, s16, s44", "s_mul_i32 s36, s36, 9216", f"v_add_u32 v{T[5]}, s36, v{T[5]}")
    k.e(f"s_mov_b32 s45, {hex(f2u(2.0**64))}")
    for j in range(4):
        k.e(f"v_cmp_nge_f32 s[{46+2*j}:{47+2*j}], s45, v{O[j]+8}")
    k.e("s_lshl_b32 s54, s14, 2", "s_add_u32 s54, s54, 73728", f"v_mov_b32 v{T[2]}, s54",
        "s_or_b32 s47, s47, s49", "s_or_b32 s51, s51, s53", "s_or_b32 s47, s47, s51", "s_cselect_b32 s46, 1, 0",
        f"v_mov_b32 v{T[3]}, s46", f"ds_write_b32 v{T[2]}, v{T[3]}", f"v_mov_b32 v{T[2]}, 73728",
        "s_waitcnt lgkmcnt(0)", "s_barrier")
    FL = Sx[0]
    k.e(f"ds_read_b128 {v(FL,4)}, v{T[2]}", f"ds_read_b128 {v(FL+4,4)}, v{T[2]} offset:16")
    for j in range(1, 4):
        for q in range(3): k.e(f"ds_read_b128 {v(O[j]+4*q,4)}, v{T[5]} offset:{(j-1)*3072+q*1024}")
    k.e("s_waitcnt lgkmcnt(9)", f"v_or3_b32 v{FL}, v{FL}, v{FL+1}, v{FL+2}", f"v_or3_b32 v{FL}, v{FL}, v{FL+3}, v{FL+4}", f"v_or3_b32 v{FL}, v{FL}, v{FL+5}, v{FL+6}", f"v_or_b32 v{FL}, v{FL}, v{FL+7}",
        "s_nop 0", f"v_readfirstlane_b32 s46, v{FL}", "s_nop 3", "s_andn2_b32 s46, s46, s29", f"s_cbranch_scc1 {k.L('redo')}")
    k.e("s_waitcnt lgkmcnt(0)")
    for i in range(0, 12, 2):
        k.e(f"v_pk_add_f32 {v(O[0]+i,2)}, {v(O[0]+i,2)}, {v(O[1]+i,2)}", f"v_pk_add_f32 {v(O[2]+i,2)}, {v(O[2]+i,2)}, {v(O[3]+i,2)}")
    for i in (8, 0, 2, 4, 6, 10):
        k.e(f"v_pk_add_f32 {v(O[0]+i,2)}, {v(O[0]+i,2)}, {v(O[2]+i,2)}")
    k.e(f"v_mov_b32 v{O[1]}, v{O[0]+8}", f"v_mov_b32 v{O[1]+2}, v{O[0]+8}", "s_nop 1", f"v_permlane32_swap_b32 v{O[1]}, v{O[1]+2}", "s_nop 1", f"v_rcp_f32 v{O[1]+2}, v{O[1]+2}", "s_nop 0")
    for i in range(0, 12, 2): k.e(f"v_pk_mul_f32 {v(O[0]+i,2)}, {v(O[0]+i,2)}, {v(O[1]+2,2)} op_sel_hi:[1,0]")
    for i in range(6): k.e(f"v_cvt_pk_bf16_f32 v{P+i}, v{O[0]+2*i}, v{O[0]+2*i+1}")
    k.e(f"s_add_u32 s40, s40, {O8}", f"buffer_store_dwordx4 {v(P,4)}, v{vQ1}, s[8:11], s40 offen{SC}", f"buffer_store_dwordx2 {v(P+4,2)}, v{vQ2}, s[8:11], s40 offen{SC}")
    k.label("end"); k.e("s_endpgm")
    k.label("redo")
    k.e("s_waitcnt vmcnt(0) lgkmcnt(0)", "s_barrier", "s_mov_b32 s29, 1", "s_mov_b64 exec, s[26:27]")
    for j in range(4): k.e(f"v_mov_b32 v{Q2[j]}, 0")
    k.e("s_mov_b64 exec, -1")
    for j in range(4): k.e(f"v_mov_b32 v{MX[j]}, 0xff800000")
    k.e("s_mov_b32 s21, 0")
    k.label("mx")
    k.e(f"buffer_load_dwordx4 {v(K1[NB-1],4)}, v{vK1}, s[8:11], s21 offen", f"buffer_load_dwordx2 {v(K2[NB-1],2)}, v{vK2}, s[8:11], s21 offen", "s_waitcnt vmcnt(0)")
    for j in range(4): k.e(qk1(j, NB-1, j), qk2(j, NB-1, j))
    k.e("s_nop 7")
    for j in range(4): k.e(maxtree(j, MX[j], False))
    k.e("s_add_u32 s21, s21, 512", f"s_cmp_lt_u32 s21, {64*512}", f"s_cbranch_scc1 {k.L('mx')}")
    for j in range(4):
        k.e(f"v_mov_b32 v{T[2]}, v{MX[j]}", "s_nop 1", f"v_permlane32_swap_b32 v{MX[j]}, v{T[2]}", "s_nop 1", f"v_max_f32 v{MX[j]}, v{MX[j]}, v{T[2]}")
    k.e("s_mov_b32 s20, s13", grp())
    for b in range(NB-1): k.e(burst(b))
    k.e(zeroO())
    k.e(f"s_branch {k.L('setm')}")
    return k

class VM:
    def __init__(self, k): self.k = k; self.q = []
    def note(self, lines, tag):
        for l in lines:
            if l.startswith("buffer_"): self.q.append(tag)
        return lines
    def emit(self, lines, tag): self.k.e(self.note(lines, tag))
    def need(self, tag):
        idx = [i for i, t in enumerate(self.q) if t == tag]
        if not idx: return []
        n = len(self.q) - 1 - idx[-1]
        self.q = self.q[idx[-1]+1:]
        assert n <= 63
        return [f"s_waitcnt vmcnt({n})"]
    def wait(self, tag): self.k.e(self.need(tag))

def kt_tail(DC=3, DD=4, DE=4, rot=True, NSL=5, sch1=(2,2,3,4), sch2=(3,4)):
    PART = 0
    RING = 61440
    IMG = RING + 4*NSL*4096
    k = Kernel("kt_kernel", 256, 256, IMG + 12288)
    vm = VM(k)
    al = Alloc(1)
    T = [al() for _ in range(7)]
    ACC = al(80)
    BUF = al(36*(DC+1))
    vA = al(); vB = [al() for _ in range(4)]
    vW = [al() for _ in range(4)]; vR = [al() for _ in range(4)]
    vPW = [al() for _ in range(3)]; vPR = al(); vI = al()
    HK = BUF + 120
    XB = BUF + 132
    assert XB + 8 <= BUF + 36*(DC+1)
    k.nv = 512; k.acc = 256
    l16, g4 = T[0], T[1]
    acc = lambda i, c: ACC + 4*(5*c+i)
    k.e("s_load_dwordx2 s[4:5], s[0:1], 80", "s_load_dwordx2 s[6:7], s[0:1], 0", "s_load_dwordx8 s[28:35], s[0:1], 32", "s_load_dwordx2 s[36:37], s[0:1], 64",
        "s_cmp_ge_u32 s2, 256", f"s_cbranch_scc1 {k.L('end')}")
    waveid(k, 14, T[0])
    k.e("s_and_b32 s16, s2, 7", "s_lshr_b32 s17, s2, 3", "v_and_b32 v0, 63, v0")
    k.e("s_lshr_b32 s12, s17, 2", "s_lshl_b32 s13, s16, 2", "s_and_b32 s18, s17, 3", "s_add_u32 s13, s13, s18", "s_add_u32 s18, s18, s12")
    k.e("s_mul_i32 s19, s12, 80", "s_lshl_b32 s20, s13, 6")
    k.e(f"v_and_b32 v{l16}, 15, v0", f"v_lshrrev_b32 v{g4}, 4, v0")
    for c in range(4): k.e(f"s_add_u32 s{38+c}, s14, {c}", f"s_and_b32 s{38+c}, s{38+c}, 3")
    def x8addr(vv, R, sb, off):
        return [f"v_mul_u32_u24 v{T[2]}, {R}, v{g4}", f"v_add3_u32 v{T[2]}, v{T[2]}, v{l16}, s{sb}", f"v_lshlrev_b32 v{vv}, 4, v{T[2]}", f"v_add_u32 v{vv}, {off}, v{vv}"]
    def baddr(R, sb, off):
        r = x8addr(T[3], R, sb, off)
        for c in range(4): r += [f"s_lshl_b32 s22, s{38+c}, 8", f"v_add_u32 v{vB[c]}, s22, v{T[3]}"]
        return r
    def stepcode(j, n, srot):
        if not rot or j >= (n & ~3): return [f"s_add_u32 s21, s14, {4*j}"]
        return [f"s_add_u32 s21, s{srot}, {j}", "s_and_b32 s21, s21, 3", "s_lshl_b32 s21, s21, 2", "s_add_u32 s21, s21, s14", f"s_add_u32 s21, s21, {4*(j & ~3)}"]
    def waddr(ld, sb, perm):
        r = [f"v_lshrrev_b32 v{T[2]}, 3, v0", f"v_mul_u32_u24 v{T[2]}, {ld}, v{T[2]}", f"s_lshl_b32 s22, s{sb}, 1", f"v_add_u32 v{T[2]}, s22, v{T[2]}", f"v_and_b32 v{T[3]}, 7, v0"]
        if perm:
            r += [f"v_lshlrev_b32 v{T[4]}, 1, v{g4}", f"v_xor_b32 v{T[3]}, v{T[3]}, v{T[4]}", f"v_lshl_add_u32 v{vW[0]}, v{T[3]}, 4, v{T[2]}"]
            r += [f"v_add_u32 v{vW[i]}, {i*(8*ld-1024)}, v{vW[0]}" for i in range(1, 4)]
        else:
            r += [f"v_bfe_u32 v{T[4]}, v0, 4, 1", f"v_lshlrev_b32 v{T[4]}, 1, v{T[4]}", f"v_xor_b32 v{T[3]}, v{T[3]}, v{T[4]}",
                  f"v_lshl_add_u32 v{vW[0]}, v{T[3]}, 4, v{T[2]}", f"v_xor_b32 v{vW[1]}, 64, v{vW[0]}",
                  f"v_add_u32 v{vW[2]}, {2*(8*ld-1024)}, v{vW[0]}", f"v_add_u32 v{vW[3]}, {3*(8*ld-1024)}, v{vW[1]}", f"v_add_u32 v{vW[1]}, {8*ld-1024}, v{vW[1]}"]
        return r
    def raddr(perm):
        if perm:
            r = [f"v_lshrrev_b32 v{T[2]}, 2, v0", f"v_lshlrev_b32 v{T[3]}, 7, v{T[2]}", f"v_bfe_u32 v{T[2]}, v0, 3, 2", f"v_lshl_add_u32 v{T[3]}, v{T[2]}, 5, v{T[3]}"]
        else:
            r = [f"v_bfe_u32 v{T[2]}, v0, 2, 2", f"v_lshl_add_u32 v{T[3]}, v{g4}, 3, v{T[2]}", f"v_lshlrev_b32 v{T[3]}, 7, v{T[3]}",
                 f"v_bfe_u32 v{T[2]}, v0, 3, 2", f"v_lshl_add_u32 v{T[3]}, v{T[2]}, 5, v{T[3]}"]
        r += [f"v_and_b32 v{T[2]}, 3, v0", f"v_lshl_add_u32 v{T[3]}, v{T[2]}, 3, v{T[3]}"]
        for c in range(4):
            if perm: r += [f"s_lshl_b32 s22, s{38+c}, 5", f"v_xor_b32 v{vR[c]}, s22, v{T[3]}", f"v_add_u32 v{vR[c]}, s15, v{vR[c]}"]
            else: r += [f"v_xor_b32 v{vR[c]}, {32*c}, v{T[3]}", f"v_add_u32 v{vR[c]}, s15, v{vR[c]}"]
        return r
    class WS:
        def __init__(s, name, n, srot, ld, tstep): s.name = name; s.n = n; s.srot = srot; s.ld = ld; s.tstep = tstep; s.ni = 0; s.nd = 0
        def issue_lines(s):
            j = s.ni; s.ni += 1
            return vm.note(stepcode(j, s.n, s.srot) + [f"s_mul_i32 s22, s21, {32*s.ld}", f"s_add_u32 m0, s15, {(j % NSL)*4096}", "s_nop 0"] +
                           [f"buffer_load_dwordx4 v{vW[i]}, s[44:47], s22 offen offset:{i*1024} lds" for i in range(4)], (s.name, j))
        def drain_lines(s):
            j = s.nd; s.nd += 1
            r = vm.need((s.name, j))
            for c in range(4):
                for t in range(2): r.append(f"ds_read_b64_tr_b16 {a(16*j+4*c+2*t,2)}, v{vR[c]} offset:{(j % NSL)*4096+t*s.tstep}")
            return r
        def handle(s, cnt):
            for _ in range(cnt):
                if s.nd >= s.n: return
                k.e(s.drain_lines())
                if s.ni < s.n: k.e("s_waitcnt lgkmcnt(0)", s.issue_lines())
    def scatter(MA):
        k.e("s_nop 3")
        for c in range(1, 4):
            for i in range(MA): k.e(f"ds_write_b128 v{vPW[c-1]}, {v(acc(i,c),4)} offset:{i*1024}")
        k.e("s_waitcnt lgkmcnt(0)", "s_barrier")
        for c in range(1, 4):
            for i in range(MA): k.e(f"ds_read_b128 {v(acc(i,c),4)}, v{vPR} offset:{(c-1)*5120+i*1024}")
    def gather(MA, grouped=True):
        n = 4*MA
        k.e(f"s_waitcnt lgkmcnt({min(15, 2*MA)})")
        for i in range(0, n, 2): k.e(f"v_pk_add_f32 {v(ACC+i,2)}, {v(ACC+i,2)}, {v(ACC+20+i,2)}")
        k.e("s_waitcnt lgkmcnt(0)")
        for i in range(0, n, 2): k.e(f"v_pk_add_f32 {v(ACC+40+i,2)}, {v(ACC+40+i,2)}, {v(ACC+60+i,2)}")
        for i in range(0, n, 2): k.e(f"v_pk_add_f32 {v(ACC+i,2)}, {v(ACC+i,2)}, {v(ACC+40+i,2)}")
    def allred(A):
        k.e("s_nop 1", f"v_permlane32_swap_b32 v{A}, v{A+1}", "s_nop 0", f"v_add_f32 v{A}, v{A}, v{A+1}", f"v_mov_b32 v{A+1}, v{A}", "s_nop 1", f"v_permlane16_swap_b32 v{A}, v{A+1}", "s_nop 0",
            f"v_add_f32 v{A}, v{A}, v{A+1}", f"v_mov_b32 v{A+1}, v{A}", "s_nop 1", f"v_permlane32_swap_b32 v{A}, v{A+1}", "s_nop 0")
    def signal(off, pitch, stile, sidx, name, sr):
        k.e("s_barrier", "s_cmp_lg_u32 s14, 0", f"s_cbranch_scc1 {k.L(name)}")
        k.e(f"s_lshl_b32 s22, s{stile}, 7", f"s_lshl_b32 s23, s{sidx}, 2", "s_add_u32 s22, s22, s23", f"s_add_u32 s22, s22, {off}", f"v_mul_u32_u24 v{T[2]}, {pitch}, v0", f"v_mov_b32 v{T[3]}, 1", "s_mov_b64 exec, 0xff",
            f"buffer_store_dword v{T[3]}, v{T[2]}, s[{sr}:{sr+3}], s22 offen sc1", "s_mov_b64 exec, -1")
        k.label(name)
    def polladdr(off, pitch, slo, shi, nprod):
        k.e(f"v_mov_b32 v{T[2]}, s{slo}", f"v_mov_b32 v{T[3]}, s{shi}", "v_cmp_gt_u32 vcc, 32, v0", f"s_mul_i32 s43, s16, {pitch}", f"s_add_u32 s43, s43, {off}",
            f"v_cndmask_b32 v{T[2]}, v{T[3]}, v{T[2]}, vcc", f"v_and_b32 v{T[3]}, 31, v0", f"v_min_u32 v{T[3]}, {nprod-1}, v{T[3]}", f"v_lshlrev_b32 v{T[3]}, 2, v{T[3]}", f"v_lshl_add_u32 v{T[5]}, v{T[2]}, 7, v{T[3]}")
    def pollcheck(name, ld, bad):
        vm.wait("poll")
        k.e("s_mov_b32 s23, 0x40000")
        k.label(name)
        k.e(bad, f"s_cbranch_vccz {k.L(name+'x')}", "s_sub_u32 s23, s23, 1", f"s_cbranch_scc1 {k.L(name+'x')}", ld, "s_waitcnt vmcnt(0)", f"s_branch {k.L(name)}")
        k.label(name+'x')

    k.e(x8addr(vA, 640, 19, WO8), baddr(2048, 20, O8))
    k.e("s_waitcnt lgkmcnt(0)", srd(8, 4, WS_BYTES))
    NSC = DC+1
    Af = [[BUF + 36*b + 4*i for i in range(5)] for b in range(NSC)]
    Bf = [[BUF + 36*b + 20 + 4*i for i in range(4)] for b in range(NSC)]
    def ldC(j):
        b = j % NSC
        r = stepcode(j, 5, 18) + [f"s_mul_i32 s22, s21, {4*640*16}", f"s_mul_i32 s23, s21, {4*2048*16}"]
        for i in range(5):
            if i < 4: r.append(f"buffer_load_dwordx4 {v(Bf[b][(i+1)%4],4)}, v{vB[(i+1)%4]}, s[8:11], s23 offen")
            r.append(f"buffer_load_dwordx4 {v(Af[b][i],4)}, v{vA}, s[8:11], s22 offen offset:{i*256}")
        return vm.note(r, ("C", j))
    for j in range(DC): k.e(ldC(j))
    k.e(f"s_mul_hi_u32 s52, s17, {magic(5)}", "s_mul_i32 s53, s52, 5", "s_sub_u32 s53, s17, s53",
        "s_and_b32 s54, s16, 1", "s_lshr_b32 s55, s16, 1",
        "s_mul_i32 s70, s54, 5", "s_add_u32 s70, s70, s53", "s_lshl_b32 s65, s70, 6",
        "s_mul_i32 s71, s55, 6", "s_add_u32 s71, s71, s52", "s_lshl_b32 s64, s71, 6", "s_add_u32 s66, s52, s53",
        f"s_mul_hi_u32 s72, s65, {magic(80)}", "s_add_u32 s73, s65, 63", f"s_mul_hi_u32 s73, s73, {magic(80)}",
        "s_lshr_b32 s74, s19, 6", "s_add_u32 s75, s74, 1",
        f"s_mul_i32 s15, s14, {NSL*4096}", f"s_add_u32 s15, s15, {RING}", "s_mul_i32 s42, s14, 3072", f"s_add_u32 s42, s42, {IMG}", "s_mov_b32 s56, 0xffff0000")
    k.e(srd(44, 28, 2048*1536*2), srd(48, 4, WS_BYTES), "s_cmp_ge_u32 s17, 30", "s_cselect_b32 s46, 0, s46", "s_cselect_b32 s50, 0, s50", srd(24, 6, 2048*640*2))
    k.e(waddr(3072, 64, False), raddr(False))
    k.e(f"v_lshlrev_b32 v{T[2]}, 4, v0")
    for c in range(1, 4): k.e(f"s_mul_i32 s22, s{38+c}, 15360", f"s_add_u32 s22, s22, {PART+(c-1)*5120}", f"v_add_u32 v{vPW[c-1]}, s22, v{T[2]}")
    k.e("s_mul_i32 s22, s14, 15360", f"v_add_u32 v{vPR}, s22, v{T[2]}",
        f"v_mul_u32_u24 v{T[2]}, 160, v{l16}", f"v_lshl_add_u32 v{T[2]}, v{g4}, 3, v{T[2]}", f"v_add_u32 v{vI}, s42, v{T[2]}")
    GO = [T[4], T[5], T[6]]
    def growaddr(dst):
        r = [f"s_lshl_b32 s22, s14, 4", "s_add_u32 s22, s22, s20", "s_mul_i32 s22, s22, 1280", "s_lshl_b32 s23, s19, 1", "s_add_u32 s57, s22, s23"]
        for rr in range(3):
            r += [f"v_add_u32 v{T[2]}, {64*rr}, v0", f"v_mul_u32_u24 v{T[3]}, 205, v{T[2]}", f"v_lshrrev_b32 v{T[3]}, 11, v{T[3]}", f"v_mul_u32_u24 v{T[3]}, {1280-160}, v{T[3]}", f"v_lshl_add_u32 v{dst[rr]}, v{T[2]}, 4, v{T[3]}"]
        return r
    k.e(growaddr(GO))
    xl = ["s_mov_b32 m0, s42", "s_nop 0", f"buffer_load_dwordx4 v{GO[0]}, s[24:27], s57 offen lds", "s_add_u32 m0, s42, 1024", "s_nop 0", f"buffer_load_dwordx4 v{GO[1]}, s[24:27], s57 offen lds",
          "s_add_u32 m0, s42, 2048", "s_mov_b32 exec_hi, 0", f"buffer_load_dwordx4 v{GO[2]}, s[24:27], s57 offen lds", "s_mov_b64 exec, -1"]
    W1 = WS("w1", 16, 66, 3072, 512)
    order5 = [(i, c) for c in (1, 2, 3, 0) for i in range(5)]
    order4 = [(i, c) for c in (1, 2, 3, 0) for i in range(4)]
    nx = NSL
    for j in range(5):
        b = j % NSC
        if j == 0: k.e("STAMP0")
        vm.wait(("C", j))
        m = [f"v_mfma_f32_16x16x32_bf16 {v(acc(i,c),4)}, {v(Af[b][i],4)}, {v(Bf[b][c],4)}, " + ("0" if j == 0 else v(acc(i,c), 4)) for (i, c) in order5]
        if j + DC < 5: f = ldC(j+DC)
        elif j + DC == 5:
            k.e(vm.note(xl, "x")); f = W1.issue_lines()
        else:
            f = []
            for _ in range(2):
                if W1.ni < NSL: f += W1.issue_lines()
        k.e(interleave(m, f))
    k.e("STAMP1")
    scatter(5)
    k.e("STAMP2")
    R = ACC; U = BUF; XR = BUF+20
    vm.wait("x")
    for i in range(5): k.e(f"ds_read_b64 {v(XR+2*i,2)}, v{vI} offset:{32*i}")
    k.e("s_lshl_b32 s58, s13, 12", f"s_add_u32 s58, s58, {STATS}", "s_lshl_b32 s59, s14, 7", "s_add_u32 s58, s58, s59", "s_lshl_b32 s59, s12, 9", "s_add_u32 s59, s59, s58",
        f"v_lshlrev_b32 v{T[6]}, 3, v{l16}", f"v_lshl_add_u32 v{T[5]}, v{g4}, 10, v{T[6]}")
    gather(5)
    for i in range(10): k.e(f"v_lshlrev_b32 v{U+2*i}, 16, v{XR+i}", f"v_and_b32 v{U+2*i+1}, s56, v{XR+i}")
    for i in range(0, 20, 2): k.e(f"v_pk_add_f32 {v(R+i,2)}, {v(R+i,2)}, {v(U+i,2)}")
    SS = R+20; QQ = R+22; ST = R+24; G = R+28
    k.e(f"v_pk_add_f32 {v(SS,2)}, {v(R,2)}, {v(R+2,2)}", f"v_pk_mul_f32 {v(QQ,2)}, {v(R,2)}, {v(R,2)}", f"v_pk_fma_f32 {v(QQ,2)}, {v(R+2,2)}, {v(R+2,2)}, {v(QQ,2)}")
    for i in range(4, 20, 2): k.e(f"v_pk_add_f32 {v(SS,2)}, {v(SS,2)}, {v(R+i,2)}", f"v_pk_fma_f32 {v(QQ,2)}, {v(R+i,2)}, {v(R+i,2)}, {v(QQ,2)}")
    k.e(f"v_add_f32 v{ST}, v{SS}, v{SS+1}", f"v_add_f32 v{ST+1}, v{QQ}, v{QQ+1}")
    allred(ST)
    vm.emit([f"v_and_b32 v{ST+1}, 0x7fffffff, v{ST+1}", "s_mov_b64 exec, 0xffff", f"buffer_store_dwordx2 {v(ST,2)}, v{T[6]}, s[8:11], s59 offen sc1", "s_mov_b64 exec, -1"], "st")
    k.e("STAMP3")
    for i in range(10): k.e(f"v_cvt_pk_bf16_f32 v{HK+i}, v{R+2*i}, v{R+2*i+1}")
    W1.handle(sch1[0])
    pl = [f"buffer_load_dwordx2 {v(G,2)}, v{T[5]}, s[8:11], s58 offen sc1", f"buffer_load_dwordx2 {v(G+2,2)}, v{T[5]}, s[8:11], s58 offen offset:512 sc1"]
    vm.emit(pl, "poll")
    k.e("STAMP4")
    W1.handle(sch1[1])
    pollcheck("sp", pl, [f"v_or_b32 v{G+4}, v{G+1}, v{G+3}", f"v_cmp_gt_i32 vcc, 0, v{G+4}"])
    k.e("STAMP5")
    k.e(f"v_pk_add_f32 {v(G,2)}, {v(G,2)}, {v(G+2,2)}")
    allred(G)
    c = hex(f2u(1.0/640)); e = hex(f2u(1e-5))
    k.e(f"v_mul_f32 v{G}, {c}, v{G}", f"v_mul_f32 v{G+1}, {c}, v{G+1}", f"v_fma_f32 v{G+1}, -v{G}, v{G}, v{G+1}", f"v_max_f32 v{G+1}, 0, v{G+1}",
        f"v_add_f32 v{G+2}, {e}, v{G+1}", f"v_rsq_f32 v{G+2}, v{G+2}", "s_nop 0", f"v_mul_f32 v{G+1}, v{G+1}, v{G+2}", f"v_mul_f32 v{G+1}, v{G+1}, v{G+2}",
        f"v_add_f32 v{G+1}, {e}, v{G+1}", f"v_rsq_f32 v{G+1}, v{G+1}", "s_nop 0", f"v_mul_f32 v{G+2}, v{G+1}, v{G+2}", f"v_mul_f32 v{G+3}, v{G}, v{G+2}", f"v_sub_f32 v{G+3}, 0, v{G+3}")
    for i in range(5):
        for h_ in range(2): k.e(f"v_pk_fma_f32 {v(R+4*i+2*h_,2)}, {v(R+4*i+2*h_,2)}, {v(G+2,2)}, {v(G+2,2)} op_sel:[0,0,1] op_sel_hi:[1,0,1]")
        k.e(f"v_cvt_pk_bf16_f32 v{U+2*i}, v{R+4*i}, v{R+4*i+1}", f"v_cvt_pk_bf16_f32 v{U+2*i+1}, v{R+4*i+2}, v{R+4*i+3}", f"ds_write_b64 v{vI}, {v(U+2*i,2)} offset:{32*i}")
    k.e(f"v_bfe_u32 v{T[2]}, v0, 4, 1", f"v_bfe_u32 v{T[6]}, v0, 2, 2", f"v_lshl_add_u32 v{T[6]}, v{T[2]}, 3, v{T[6]}", f"v_mul_u32_u24 v{T[6]}, 160, v{T[6]}",
        f"v_lshrrev_b32 v{T[5]}, 5, v0", f"v_lshl_add_u32 v{T[6]}, v{T[5]}, 5, v{T[6]}", f"v_and_b32 v{T[3]}, 3, v0", f"v_lshl_add_u32 v{T[6]}, v{T[3]}, 3, v{T[6]}", f"v_add_u32 v{T[6]}, s42, v{T[6]}")
    k.e("s_lshr_b32 s60, s20, 3", "s_lshl_b32 s61, s14, 1", "s_add_u32 s60, s60, s61", "s_mul_i32 s60, s60, 640", "s_add_u32 s60, s60, s19", "s_lshl_b32 s60, s60, 4", f"s_add_u32 s60, s60, {HN8}",
        f"v_mul_u32_u24 v{T[2]}, 640, v{T[2]}", f"v_lshl_add_u32 v{T[2]}, v{T[5]}, 4, v{T[2]}", f"v_add_lshl_u32 v{T[2]}, v{T[2]}, v{l16}, 4")
    k.e("s_waitcnt lgkmcnt(0)")
    for r in range(3):
        for t in range(2): k.e(f"ds_read_b64_tr_b16 {v(R+4*r+2*t,2)}, v{T[6]} offset:{64*r+4*t*160}")
    for r in range(3):
        k.e(f"s_waitcnt lgkmcnt({4-2*r})")
        if r == 2: k.e("s_mov_b32 exec_hi, 0")
        vm.emit([f"buffer_store_dwordx4 {v(R+4*r,4)}, v{T[2]}, s[8:11], s60 offen offset:{512*r} sc1"], "hn")
    k.e("s_mov_b64 exec, -1", "STAMP6")
    W1.handle(sch1[2])
    vm.wait("hn")
    signal(CNT1, 1024, 12, 13, "sg1", 8)
    k.e("STAMP7")
    k.e(srd(24, 30, 3072), baddr(640, 65, HN8))
    polladdr(CNT1, 1024, 72, 73, 32)
    k.e(f"v_lshlrev_b32 v{T[2]}, 3, v{g4}", "s_lshl_b32 s61, s64, 1")
    vm.emit([f"buffer_load_dwordx2 {v(XB+2*i,2)}, v{T[2]}, s[24:27], s61 offen offset:{32*i}" for i in range(4)], "b1")
    W1.handle(sch1[3])
    while W1.ni < W1.n: W1.handle(1)
    pl = [f"buffer_load_dword v{T[6]}, v{T[5]}, s[8:11], s43 offen sc1"]
    k.e("STAMP8")
    vm.emit(pl, "poll")
    W1.handle(2)
    k.e("s_cmp_ge_u32 s17, 30", f"s_cbranch_scc1 {k.L('p1x')}")
    q_save = list(vm.q)
    pollcheck("p1", pl, [f"v_cmp_eq_u32 vcc, 0, v{T[6]}"])
    vm.q = q_save
    k.e("STAMP9")
    NSD = DD+1
    Df = [[BUF + 16*b + 4*i for i in range(4)] for b in range(NSD)]
    assert 16*NSD <= 120
    def ldD(j):
        b = j % NSD
        return vm.note(stepcode(j, 16, 66) + [f"s_mul_i32 s23, s21, {4*640*16}"] + [f"buffer_load_dwordx4 {v(Df[b][c],4)}, v{vB[c]}, s[48:51], s23 offen sc1" for c in (1, 2, 3, 0)], ("D", j))
    for j in range(DD): k.e(ldD(j))
    W1.handle(16)
    k.e("s_waitcnt lgkmcnt(0)", srd(44, 32, 2048*1536*2), waddr(4096, 20, True), raddr(True))
    W2 = WS("w2", 12, 18, 4096, 2048)
    for j in range(16):
        b = j % NSD
        vm.wait(("D", j))
        m = [f"v_mfma_f32_16x16x32_bf16 {v(acc(i,c),4)}, {a(16*j+4*i,4)}, {v(Df[b][c],4)}, " + ("0" if j == 0 else v(acc(i,c), 4)) for (i, c) in order4]
        if j + DD < 16: f = ldD(j+DD)
        else:
            f = W2.issue_lines() if W2.ni < NSL else []
            if j == 15:
                while W2.ni < NSL: f += W2.issue_lines()
        k.e(interleave(m, f))
    k.e("STAMP10")
    scatter(4)
    c1 = -2.0*math.sqrt(2.0/math.pi)*math.log2(math.e); c3 = c1*0.044715
    U = BUF
    k.e(f"s_mov_b32 s58, {hex(f2u(c3))}", f"v_mov_b32 v{T[6]}, {hex(f2u(c1))}")
    for i in range(8): k.e(f"v_lshlrev_b32 v{U+2*i}, 16, v{XB+i}", f"v_and_b32 v{U+2*i+1}, s56, v{XB+i}")
    k.e(f"v_mul_u32_u24 v{T[4]}, 640, v{g4}", f"v_add_lshl_u32 v{T[4]}, v{T[4]}, v{l16}, 4", "s_lshr_b32 s60, s64, 3", "s_mul_i32 s60, s60, 640", "s_add_u32 s60, s60, s65", "s_lshl_b32 s61, s14, 4", "s_add_u32 s60, s60, s61",
        "s_lshl_b32 s60, s60, 4", f"s_add_u32 s60, s60, {U8}", f"s_add_u32 s61, s60, {4*640*16}")
    gather(4)
    for p in range(2):
        R = ACC + 8*p; Z = ACC + 20 + 8*p
        for i in range(0, 8, 2): k.e(f"v_pk_add_f32 {v(R+i,2)}, {v(R+i,2)}, {v(U+8*p+i,2)}")
        for i in range(0, 8, 2): k.e(f"v_pk_mul_f32 {v(Z+i,2)}, {v(R+i,2)}, {v(R+i,2)}")
        for i in range(8): k.e(f"v_fma_f32 v{Z+i}, v{Z+i}, s58, v{T[6]}")
        for i in range(0, 8, 2): k.e(f"v_pk_mul_f32 {v(Z+i,2)}, {v(Z+i,2)}, {v(R+i,2)}")
        for i in range(8): k.e(f"v_exp_f32 v{Z+i}, v{Z+i}")
        for i in range(8): k.e(f"v_add_f32 v{Z+i}, 1.0, v{Z+i}")
        for i in range(8): k.e(f"v_rcp_f32 v{Z+i}, v{Z+i}")
        k.e("s_nop 0")
        for i in range(0, 8, 2): k.e(f"v_pk_mul_f32 {v(R+i,2)}, {v(R+i,2)}, {v(Z+i,2)}")
        for i in range(4): k.e(f"v_cvt_pk_bf16_f32 v{ACC+40+4*p+i}, v{R+2*i}, v{R+2*i+1}")
        vm.emit([f"buffer_store_dwordx4 {v(ACC+40+4*p,4)}, v{T[4]}, s[48:51], s{60+p} offen sc1"], "u")
    k.e("STAMP11")
    W2.handle(sch2[0])
    vm.wait("u")
    signal(CNT2, 1280, 70, 71, "sg2", 48)
    k.e("STAMP12")
    k.e(srd(24, 34, 4096), x8addr(vA, 640, 19, U8))
    polladdr(CNT2, 1280, 74, 75, 24)
    k.e("s_lshl_b32 s60, s14, 4", "s_add_u32 s60, s60, s20", "s_lshl_b32 s60, s60, 1", f"v_lshlrev_b32 v{T[2]}, 1, v{l16}")
    vm.emit([f"buffer_load_ushort v{XB}, v{T[2]}, s[24:27], s60 offen"], "b2")
    W2.handle(sch2[1])
    while W2.ni < W2.n: W2.handle(1)
    k.e("STAMP13")
    vm.emit(pl, "poll")
    W2.handle(2)
    pollcheck("p2", pl, [f"v_cmp_eq_u32 vcc, 0, v{T[6]}"])
    k.e("STAMP14")
    NSE = DE+1
    Ef = [[BUF + 20*b + 4*i for i in range(5)] for b in range(NSE)]
    assert 20*NSE <= 120
    def ldE(j):
        b = j % NSE
        return vm.note(stepcode(j, 12, 18) + [f"s_mul_i32 s23, s21, {4*640*16}"] + [f"buffer_load_dwordx4 {v(Ef[b][i],4)}, v{vA}, s[8:11], s23 offen offset:{i*256} sc1" for i in range(5)], ("E", j))
    for j in range(DE): k.e(ldE(j))
    W2.handle(16)
    k.e(srd(24, 36, 2048*640*2), growaddr(GO), "s_waitcnt lgkmcnt(0)")
    for j in range(12):
        b = j % NSE
        vm.wait(("E", j))
        oe = order5 if j == 11 else [(i, c) for i in range(5) for c in (1, 2, 3, 0)]
        m = [f"v_mfma_f32_16x16x32_bf16 {v(acc(i,c),4)}, {v(Ef[b][i],4)}, {a(16*j+4*c,4)}, " + ("0" if j == 0 else v(acc(i,c), 4)) for (i, c) in oe]
        f = ldE(j+DE) if j + DE < 12 else []
        k.e(interleave(m, f))
    k.e("STAMP15")
    scatter(5)
    U = BUF; R = ACC
    k.e(f"v_lshlrev_b32 v{XB}, 16, v{XB}")
    for i in range(10): k.e(f"v_lshlrev_b32 v{U+2*i}, 16, v{HK+i}", f"v_and_b32 v{U+2*i+1}, s56, v{HK+i}")
    for i in range(0, 20, 2): k.e(f"v_pk_add_f32 {v(U+i,2)}, {v(U+i,2)}, {v(XB,2)} op_sel_hi:[1,0]")
    k.e(f"v_lshlrev_b32 v{T[2]}, 4, v0", f"v_add_u32 v{T[2]}, s42, v{T[2]}")
    gather(5)
    for i in range(5):
        for h_ in range(2): k.e(f"v_pk_add_f32 {v(R+4*i+2*h_,2)}, {v(R+4*i+2*h_,2)}, {v(U+4*i+2*h_,2)}")
        k.e(f"v_cvt_pk_bf16_f32 v{R+20+2*i}, v{R+4*i}, v{R+4*i+1}", f"v_cvt_pk_bf16_f32 v{R+21+2*i}, v{R+4*i+2}, v{R+4*i+3}", f"ds_write_b64 v{vI}, {v(R+20+2*i,2)} offset:{32*i}")
    k.e("s_waitcnt lgkmcnt(0)")
    for r in range(3): k.e(f"ds_read_b128 {v(R+40+4*r,4)}, v{T[2]} offset:{1024*r}")
    for r in range(3):
        k.e(f"s_waitcnt lgkmcnt({2-r})")
        if r == 2: k.e("s_mov_b32 exec_hi, 0")
        k.e(f"buffer_store_dwordx4 {v(R+40+4*r,4)}, v{GO[r]}, s[24:27], s57 offen")
    k.label("end"); k.e("s_endpgm")
    return k

def build(out=None, diag=None, **o):
    ks = [k1_qkv(o.get("rot1", True), o.get("sc1", False), o.get("LA", 2)), k2_attn(**o.get("k2", {})), kt_tail(**o.get("kt", {}))]
    if out: open(out, "w").write(assemble_file(ks))
    if diag:
        for b in range(4):
            STAMP_BASE[0] = 4*b
            open(diag if b == 0 else diag.replace(".s", f"_{b}.s"), "w").write(assemble_file(ks, diag=True))
        STAMP_BASE[0] = 0
    return ks
if __name__ == "__main__":
    ks = build("v5.s", "diag.s")
    for k in ks: print(k.name, "vgpr", k.nv, "lds", k.lds, "lines", len(k.lines))
```

```python
from k_v5 import *
ks = build()
for k in ks:
    k.lines = ["s_and_b32 s90, s2, 7", "s_lshl_b32 s90, s90, 3", "s_bfe_u32 s91, s2, 0x30003", "s_or_b32 s90, s90, s91", "s_andn2_b32 s2, s2, 63", "s_or_b32 s2, s2, s90"] + k.lines
open("v5_scr.s","w").write(assemble_file(ks))
```

```python
from dsl import *
import math, struct
S=2048; D=640; F=1536
VP=648*16
QK8=0; VT8=QK8+161*2048*16; O8=VT8+256*VP; HH=O8+80*2048*16; HN8=HH+2048*1280; U8=HN8+256*640*16
WO8=U8+192*640*16; STATS=WO8+80*640*16; XST=STATS+256*512; CNT1=XST+2048*8; CNT2=CNT1+8*1024; TK2=CNT1+20480; TK3=CNT1+24576; WS_END=CNT1+32768
WS_BYTES=268435456
def f2u(x): return struct.unpack("<I", struct.pack("<f", x))[0]
QSCALE = math.log2(math.e)/math.sqrt(20.0)
def magic(d): return (2**32 + d - 1)//d
def waveid(k, sdst, vtmp):
    k.e(f"v_lshrrev_b32 v{vtmp}, 6, v0", "s_nop 0", f"v_readfirstlane_b32 s{sdst}, v{vtmp}")


def ticket(k, sbase, off, stride_log2, swave, lds_addr, vt):
    k.e(f"s_cmp_lg_u32 s{swave}, 0", f"s_cbranch_scc1 {k.L('tkw')}",
        "s_getreg_b32 s90, hwreg(HW_REG_XCC_ID)", "s_and_b32 s90, s90, 7", "s_lshl_b32 s90, s90, 2", "s_lshr_b32 s91, s2, 6", "s_add_u32 s90, s90, s91",
        "s_mov_b64 exec, 1", f"v_mov_b32 v{vt[1]}, 1", "s_mov_b32 s92, 32")
    k.label("tkl")
    k.e(f"s_lshl_b32 s91, s90, {stride_log2}", f"s_add_u32 s91, s91, {off}", f"v_mov_b32 v{vt[0]}, s91",
        f"global_atomic_add v{vt[2]}, v{vt[0]}, v{vt[1]}, s[{sbase}:{sbase+1}] sc0 sc1", "s_waitcnt vmcnt(0)", f"v_readfirstlane_b32 s91, v{vt[2]}", "s_nop 3",
        "s_cmp_lt_u32 s91, 8", f"s_cbranch_scc1 {k.L('tkd')}", "s_add_u32 s90, s90, 1", "s_and_b32 s90, s90, 31", "s_sub_u32 s92, s92, 1", "s_cmp_lg_u32 s92, 0", f"s_cbranch_scc1 {k.L('tkl')}")
    k.label("tkd")
    k.e("s_and_b32 s91, s91, 7", "s_lshl_b32 s91, s91, 3", "s_and_b32 s92, s90, 3", "s_lshl_b32 s92, s92, 6", "s_or_b32 s91, s91, s92", "s_lshr_b32 s90, s90, 2", "s_or_b32 s91, s91, s90",
        f"v_mov_b32 v{vt[0]}, {lds_addr}", f"v_mov_b32 v{vt[1]}, s91", f"ds_write_b32 v{vt[0]}, v{vt[1]}", "s_mov_b64 exec, -1", "s_waitcnt lgkmcnt(0)")
    k.label("tkw")
    k.e("s_barrier", f"v_mov_b32 v{vt[0]}, {lds_addr}", f"ds_read_b32 v{vt[1]}, v{vt[0]}", "s_waitcnt lgkmcnt(0)", f"v_readfirstlane_b32 s2, v{vt[1]}", "s_nop 3")

def k1_qkv(rot=True, sc1=False, LA=2):
    k = Kernel("k1_kernel", 256, 512, 131072+1536)
    EX = 131072
    SC = " sc1" if sc1 else ""
    al = Alloc(1)
    T = [al() for _ in range(7)]
    acc = [[al(16) for _ in range(2)] for _ in range(2)]
    cs = al(16)
    xf = [[al(4) for _ in range(2)] for _ in range(2)]
    wf0 = [al(4) for _ in range(4)]
    wf1 = [al(4) for _ in range(2)]
    ones = al(2)
    xa = [al() for _ in range(4)]
    wa = [al() for _ in range(2)]
    ep = al(56)
    k.nv = al.p
    vx = [acc[0][0]+i for i in range(4)]; vw = [acc[0][0]+4+i for i in range(4)]
    k.e("s_load_dwordx4 s[4:7], s[0:1], 0", "s_load_dwordx4 s[48:51], s[0:1], 72", "s_load_dwordx2 s[10:11], s[0:1], 16")
    k.e("s_cmp_ge_u32 s2, 256", f"s_cbranch_scc1 {k.L('end')}")
    waveid(k, 26, T[0])
    k.e("s_and_b32 s36, s2, 7", "s_lshr_b32 s37, s2, 3",
        "s_lshr_b32 s24, s36, 1", "s_lshl_b32 s24, s24, 2", "s_and_b32 s38, s37, 3", "s_add_u32 s24, s24, s38",
        "s_and_b32 s25, s36, 1", "s_lshl_b32 s25, s25, 3", "s_lshr_b32 s39, s37, 2", "s_add_u32 s25, s25, s39",
        "v_and_b32 v0, 63, v0",
        "s_cmp_ge_u32 s25, 15", f"s_cbranch_scc1 {k.L('side')}",
        "s_cmp_lt_u32 s26, 4", f"s_cbranch_scc1 {k.L('cons')}")
    k.e("s_sub_u32 s26, s26, 4")
    if rot == "win":
        k.e("s_add_u32 s29, s38, s39", "s_mul_i32 s55, s38, 3", "s_lshr_b32 s55, s55, 1", "s_add_u32 s55, s55, s39", "s_cmp_ge_u32 s55, 6", "s_cselect_b32 s40, 6, 0", "s_sub_u32 s55, s55, s40",
            "s_add_u32 s55, s55, 4", "s_and_b32 s29, s29, 3", "s_mov_b32 s32, 0", "s_mov_b32 s56, 4", "s_mov_b32 s57, 0")
    elif rot: k.e("s_mul_i32 s29, s38, 3", "s_add_u32 s29, s29, s39", "s_cmp_ge_u32 s29, 10", "s_cselect_b32 s40, 10, 0", "s_sub_u32 s29, s29, s40")
    else: k.e("s_mov_b32 s29, 0")
    k.e(f"v_lshrrev_b32 v{T[0]}, 3, v0", f"v_lshrrev_b32 v{T[1]}, 4, v0", f"v_and_b32 v{T[2]}, 7, v0",
        "s_lshl_b32 s40, s24, 7", "s_lshl_b32 s41, s26, 5", "s_add_u32 s40, s40, s41",
        f"v_add_u32 v{T[0]}, s40, v{T[0]}", f"v_mul_u32_u24 v{T[0]}, 1280, v{T[0]}",
        f"v_xor_b32 v{T[3]}, v{T[2]}, v{T[1]}", f"v_lshl_add_u32 v{vx[0]}, v{T[3]}, 4, v{T[0]}",
        f"v_xor_b32 v{T[3]}, 4, v{T[3]}", f"v_lshl_add_u32 v{vx[1]}, v{T[3]}, 4, v{T[0]}",
        f"v_add_u32 v{vx[2]}, {2*(8*1280-1024)}, v{vx[0]}", f"v_add_u32 v{vx[3]}, {3*(8*1280-1024)}, v{vx[1]}", f"v_add_u32 v{vx[1]}, {8*1280-1024}, v{vx[1]}")
    k.e("s_lshl_b32 s40, s26, 4", f"v_add_u32 v{T[0]}, s40, v{T[1]}", f"v_mul_u32_u24 v{T[0]}, 3840, v{T[0]}",
        f"v_bfe_u32 v{T[2]}, v0, 2, 2", f"v_xor_b32 v{T[2]}, v{T[2]}, v{T[1]}", f"v_lshl_add_u32 v{T[0]}, v{T[2]}, 6, v{T[0]}",
        f"v_and_b32 v{T[2]}, 3, v0", f"v_lshl_add_u32 v{T[0]}, v{T[2]}, 4, v{T[0]}", "s_lshl_b32 s40, s25, 8", f"v_add_u32 v{vw[0]}, s40, v{T[0]}")
    for i in range(1, 4):
        k.e(f"v_add_u32 v{vw[i]}, {i*(4*3840-1024)}, v{vw[0]}")
    k.e("s_lshl_b32 s33, s26, 12", "s_waitcnt lgkmcnt(0)")
    k.e(srd(12, 4, 2048*640*2), srd(16, 6, 640*1920*2))
    def dma():
        r = ["s_lshl_b32 s30, s29, 7", "s_mul_i32 s31, s29, 245760", "s_mov_b32 m0, s33", "s_add_u32 s29, s29, 1"]
        r += [f"buffer_load_dwordx4 v{vx[i]}, s[12:15], s30 offen offset:{i*1024} lds" for i in range(4)]
        r += ["s_add_u32 m0, s33, 65536", "s_cmp_eq_u32 s29, s56" if rot == "win" else "s_cmp_eq_u32 s29, 10"]
        r += [f"buffer_load_dwordx4 v{vw[i]}, s[16:19], s31 offen offset:{i*1024} lds" for i in range(4)]
        r += ["s_cselect_b32 s29, s57, s29" if rot == "win" else "s_cselect_b32 s29, 0, s29", "s_add_u32 s33, s33, 16384", "s_and_b32 s33, s33, 0xffff"]
        if rot == "win": r += ["s_add_u32 s32, s32, 1", "s_cmp_eq_u32 s32, 4", "s_cselect_b32 s29, s55, s29", "s_cselect_b32 s56, 10, s56", "s_cselect_b32 s57, 4, s57"]
        return r
    for _ in range(LA-1): k.e(dma())
    k.e(f"s_mov_b32 s34, {10-LA+1}")
    k.label("hloop")
    k.e(dma(), f"s_waitcnt vmcnt({8*(LA-1)})", "s_barrier", "s_sub_u32 s34, s34, 1", "s_cmp_lg_u32 s34, 0", f"s_cbranch_scc1 {k.L('hloop')}")
    for i in range(LA-2, -1, -1): k.e(f"s_waitcnt vmcnt({8*i})", "s_barrier")
    k.e("STAMP2", "s_cmp_ge_u32 s26, 2", f"s_cbranch_scc1 {k.L('hfin')}")
    k.e(srd(20, 50, WS_BYTES), srd(44, 48, 256), "s_lshl_b32 s40, s24, 2", "s_mov_b32 s43, 0x40000")
    k.label("hpoll")
    k.e("s_sub_u32 s43, s43, 1", f"s_cbranch_scc1 {k.L('hgo')}", f"buffer_load_dword v{T[0]}, off, s[44:47], s40 sc1", "s_waitcnt vmcnt(0)", f"v_cmp_eq_u32 vcc, 0, v{T[0]}", f"s_cbranch_vccnz {k.L('hpoll')}")
    k.label("hgo")
    k.e("s_lshl_b32 s41, s26, 6", f"v_add_u32 v{T[0]}, s41, v0", f"v_lshlrev_b32 v{T[1]}, 3, v{T[0]}", "s_lshl_b32 s40, s24, 10", f"s_add_u32 s40, s40, {XST}",
        f"buffer_load_dwordx2 {v(acc[1][0],2)}, v{T[1]}, s[20:23], s40 offen sc1",
        "s_cmp_lt_u32 s25, 5", f"s_cselect_b32 s45, {hex(f2u(QSCALE))}, 1.0", f"v_lshlrev_b32 v{T[0]}, 2, v{T[0]}", f"v_add_u32 v{T[0]}, {EX}, v{T[0]}", "s_waitcnt vmcnt(0)",
        f"v_mul_f32 v{acc[1][0]}, s45, v{acc[1][0]}", f"v_mul_f32 v{acc[1][0]+1}, s45, v{acc[1][0]+1}",
        f"ds_write_b32 v{T[0]}, v{acc[1][0]}", f"ds_write_b32 v{T[0]}, v{acc[1][0]+1} offset:512", "s_waitcnt lgkmcnt(0)")
    k.label("hfin")
    k.e("STAMP3", "s_barrier", "s_endpgm")
    k.label("cons")
    k.e("s_lshr_b32 s27, s26, 1", "s_and_b32 s28, s26, 1")
    k.e(f"v_and_b32 v{T[0]}, 31, v0", f"v_lshrrev_b32 v{T[1]}, 5, v0", f"v_bfe_u32 v{T[2]}, v0, 1, 3", f"v_xor_b32 v{T[2]}, v{T[2]}, v{T[1]}",
        "s_lshl_b32 s40, s27, 6", f"v_add_u32 v{T[0]}, s40, v{T[0]}", f"v_lshlrev_b32 v{T[0]}, 7, v{T[0]}", f"v_lshl_add_u32 v{xa[0]}, v{T[2]}, 4, v{T[0]}")
    for ks in range(1, 4): k.e(f"v_xor_b32 v{xa[ks]}, {ks*32}, v{xa[0]}")
    k.e(f"v_bfe_u32 v{T[2]}, v0, 2, 2", f"v_lshl_add_u32 v{T[0]}, v{T[1]}, 3, v{T[2]}", f"v_lshlrev_b32 v{T[0]}, 8, v{T[0]}",
        "s_lshl_b32 s40, s28, 1", "s_add_u32 s40, s40, s27", f"v_xor_b32 v{T[2]}, s40, v{T[2]}", f"v_lshl_add_u32 v{T[0]}, v{T[2]}, 6, v{T[0]}",
        f"v_bfe_u32 v{T[2]}, v0, 4, 1", f"v_lshl_add_u32 v{T[0]}, v{T[2]}, 5, v{T[0]}", f"v_add_u32 v{T[0]}, 65536, v{T[0]}",
        f"v_and_b32 v{T[2]}, 3, v0",
        f"v_and_b32 v{T[3]}, 1, v0", f"v_lshlrev_b32 v{T[3]}, 1, v{T[3]}", f"v_bfe_u32 v{T[4]}, v0, 1, 1", f"v_or_b32 v{T[3]}, v{T[3]}, v{T[4]}",
        "s_cmp_ge_u32 s25, 10", "s_cselect_b64 vcc, -1, 0", f"v_cndmask_b32 v{T[2]}, v{T[3]}, v{T[2]}, vcc",
        f"v_lshl_add_u32 v{wa[0]}, v{T[2]}, 3, v{T[0]}", f"v_xor_b32 v{wa[1]}, 64, v{wa[0]}")
    for i in range(2): k.e(f"v_mov_b32 v{ones+i}, 0x3f803f80")
    for r in [acc[0][0]+i for i in range(64)]+[cs+i for i in range(16)]:
        k.e(f"v_mov_b32 v{r}, 0")
    k.e("s_mov_b32 s35, 16384", "s_mov_b32 s34, 9", "s_waitcnt lgkmcnt(0)", srd(20, 50, WS_BYTES))
    def reads(ks):
        buf = ks % 2
        r = [f"ds_read_b128 {v(xf[buf][0],4)}, v{xa[ks]}"]
        for t in range(2): r.append(f"ds_read_b64_tr_b16 {v(wf0[ks]+2*t,2)}, v{wa[0]} offset:{(16*ks+4*t)*256}")
        for t in range(2): r.append(f"ds_read_b64_tr_b16 {v(wf1[buf]+2*t,2)}, v{wa[1]} offset:{(16*ks+4*t)*256}")
        r.append(f"ds_read_b128 {v(xf[buf][1],4)}, v{xa[ks]} offset:4096")
        return r
    def mf(ks, isv):
        r = []
        for xs in range(2):
            for ws in range(2):
                W = wf0[ks] if ws == 0 else wf1[ks % 2]
                X = xf[ks % 2][xs]
                A, B = (X, W) if isv else (W, X)
                r.append(f"v_mfma_f32_32x32x16_bf16 {v(acc[xs][ws],16)}, {v(A,4)}, {v(B,4)}, {v(acc[xs][ws],16)}")
        return r
    k.e("STAMP0", "s_barrier", "STAMP1")
    k.e(reads(0))
    k.e("s_cmp_ge_u32 s25, 10", f"s_cbranch_scc1 {k.L('loopv')}")
    def loop(isv):
        nm = "loopv" if isv else "loopq"
        k.label(nm)
        for ks in range(3):
            m = mf(ks, isv)
            k.e("s_waitcnt lgkmcnt(0)", m[0], reads(ks+1), m[1:])
        k.e("s_waitcnt lgkmcnt(0)")
        for ks in range(4):
            for t in range(2):
                c_ = cs + 4*((2*ks+t) % 4)
                k.e(f"v_mfma_f32_4x4x4_16b_bf16 {v(c_,4)}, {v(ones,2)}, {v(wf0[ks]+2*t,2)}, {v(c_,4)}")
        m = mf(3, isv)
        k.e("s_sub_u32 s34, s34, 1", f"s_cbranch_scc1 {k.L(nm+'x')}", "s_barrier")
        xors = [f"v_xor_b32 v{r}, s35, v{r}" for r in [xa[0], wa[0], wa[1]]]
        xors2 = [f"v_xor_b32 v{xa[ks]}, s35, v{xa[ks]}" for ks in range(1, 4)]
        k.e(m[0], xors, reads(0), m[1], xors2, "s_xor_b32 s35, s35, 32768", m[2], m[3], f"s_branch {k.L(nm)}")
        k.label(nm+'x')
        k.e("STAMP2", m[0], m[1])
        k.e(f"v_and_b32 v{T[0]}, 31, v0", "s_lshl_b32 s40, s28, 6", "s_lshl_b32 s41, s27, 5", "s_add_u32 s44, s40, s41", "s_lshl_b32 s43, s27, 6")
        k.e(f"v_add_f32 v{cs}, v{cs}, v{cs+4}", f"v_add_f32 v{cs+8}, v{cs+8}, v{cs+12}", f"v_add_f32 v{cs}, v{cs}, v{cs+8}")
        k.e(f"v_mov_b32 v{T[3]}, v{cs}", m[2], f"v_add_lshl_u32 v{T[2]}, v{T[0]}, s44, 2", f"v_add_u32 v{T[2]}, {EX}, v{T[2]}", f"v_permlane32_swap_b32 v{cs}, v{T[3]}",
            "s_nop 0", f"v_add_f32 v{cs}, v{cs}, v{T[3]}", f"ds_write_b32 v{T[2]}, v{cs} offset:1024", m[3])
        hf = T[3]
        k.e(f"v_lshrrev_b32 v{hf}, 5, v0")
        if not isv:
            RM = [ep+0, ep+2]; C = [ep+4, ep+20]; out = ep+36
            k.e(f"v_add_lshl_u32 v{T[1]}, v{T[0]}, s43, 2", f"v_add_u32 v{T[1]}, {EX}, v{T[1]}", f"v_add_u32 v{T[4]}, 128, v{T[1]}")
            k.e(f"v_lshlrev_b32 v{T[5]}, 4, v{hf}", "s_lshl_b32 s40, s44, 2", f"s_add_u32 s40, s40, {EX}", f"v_add_u32 v{T[5]}, s40, v{T[5]}", f"v_xor_b32 v{T[6]}, 128, v{T[5]}")
            k.e("s_lshl_b32 s40, s25, 4", "s_lshl_b32 s41, s28, 3", "s_add_u32 s40, s40, s41", f"v_add_u32 v{T[2]}, s40, v{hf}", f"v_lshlrev_b32 v{T[2]}, 11, v{T[2]}",
                "s_lshl_b32 s40, s24, 7", "s_add_u32 s40, s40, s43", f"v_add3_u32 v{T[2]}, v{T[2]}, s40, v{T[0]}", f"v_lshlrev_b32 v{T[2]}, 4, v{T[2]}")
            k.e("s_lshl_b32 s46, s27, 17", "s_waitcnt lgkmcnt(0)", "s_barrier", "STAMP3")
            k.e(f"ds_read2st64_b32 {v(RM[0],2)}, v{T[1]} offset0:0 offset1:2", f"ds_read2st64_b32 {v(RM[1],2)}, v{T[4]} offset0:0 offset1:2")
            for ws in range(2):
                for q in range(4):
                    k.e(f"ds_read_b128 {v(C[ws]+4*q,4)}, v{T[5+ws]} offset:{1024+q*32}")
            n = 0
            for ws in range(2):
                k.e(f"s_waitcnt lgkmcnt({4*(1-ws)})")
                for xs in range(2):
                    A = acc[xs][ws]
                    for p in range(2):
                        o = out + 4*(n % 4); n += 1
                        for j in range(0, 8, 2):
                            r = 8*p+j
                            k.e(f"v_pk_mul_f32 {v(A+r,2)}, {v(A+r,2)}, {v(RM[xs],2)} op_sel_hi:[1,0]",
                                f"v_pk_fma_f32 {v(A+r,2)}, {v(C[ws]+r,2)}, {v(RM[xs],2)}, {v(A+r,2)} op_sel:[0,1,0] op_sel_hi:[1,1,1]")
                        for j in range(4):
                            k.e(f"v_cvt_pk_bf16_f32 v{o+j}, v{A+8*p+2*j}, v{A+8*p+2*j+1}")
                        k.e(f"s_xor_b32 s47, s46, {ws*131072}", f"s_add_u32 s47, s47, {QK8 + p*65536}",
                            f"buffer_store_dwordx4 {v(o,4)}, v{T[2]}, s[20:23], s47 offen offset:{xs*512}{SC}")
        else:
            Cn = ep+0; R = ep+4; M = ep+20; out = ep+36
            k.e(f"v_xor_b32 v{T[4]}, 128, v{T[2]}")
            k.e(f"v_lshlrev_b32 v{T[5]}, 4, v{hf}", "s_lshl_b32 s40, s43, 2", f"s_add_u32 s40, s40, {EX}", f"v_add_u32 v{T[5]}, s40, v{T[5]}")
            k.e("s_lshl_b32 s40, s24, 4", "s_lshl_b32 s41, s27, 3", "s_add_u32 s40, s40, s41", f"v_add_u32 v{T[1]}, s40, v{hf}", f"v_mul_u32_u24 v{T[1]}, 648, v{T[1]}",
                "s_sub_u32 s40, s25, 10", "s_lshl_b32 s40, s40, 7", "s_lshl_b32 s41, s28, 6", "s_add_u32 s40, s40, s41", f"v_add3_u32 v{T[1]}, v{T[1]}, s40, v{T[0]}", f"v_lshlrev_b32 v{T[1]}, 4, v{T[1]}")
            k.e("s_waitcnt lgkmcnt(0)", "s_barrier", "STAMP3")
            k.e(f"ds_read_b32 v{Cn}, v{T[2]} offset:1024", f"ds_read_b32 v{Cn+1}, v{T[4]} offset:1024")
            n = 0
            for xs in range(2):
                for q in range(4):
                    k.e(f"ds_read_b128 {v(R+4*q,4)}, v{T[5]} offset:{xs*128+q*32}", f"ds_read_b128 {v(M+4*q,4)}, v{T[5]} offset:{512+xs*128+q*32}")
                k.e("s_waitcnt lgkmcnt(0)")
                for ws in range(2):
                    A = acc[xs][ws]
                    k.e(f"s_xor_b32 s52, s27, {ws}", "s_lshl_b32 s52, s52, 9")
                    for p in range(2):
                        o = out + 4*(n % 4); n += 1
                        for j in range(0, 8, 2):
                            r = 8*p+j
                            k.e(f"v_pk_mul_f32 {v(A+r,2)}, {v(A+r,2)}, {v(R+r,2)}",
                                f"v_pk_fma_f32 {v(A+r,2)}, {v(M+r,2)}, {v(Cn,2)}, {v(A+r,2)} op_sel:[0,{ws},0] op_sel_hi:[1,{ws},1]")
                        for j in range(4):
                            k.e(f"v_cvt_pk_bf16_f32 v{o+j}, v{A+8*p+2*j}, v{A+8*p+2*j+1}")
                        k.e(f"s_add_u32 s47, s52, {VT8 + p*2*VP + xs*4*VP}", f"buffer_store_dwordx4 {v(o,4)}, v{T[1]}, s[20:23], s47 offen{SC}")
        k.e("s_endpgm")
    loop(False)
    loop(True)
    k.label("side")
    XR = 16
    k.e("v_lshrrev_b32 v1, 3, v0", "v_mul_u32_u24 v1, 1280, v1", "v_and_b32 v2, 7, v0", "v_lshl_add_u32 v1, v2, 4, v1", "v_add_u32 v8, 10240, v1",
        "s_lshl_b32 s54, s24, 3", "s_add_u32 s54, s54, s26", f"s_mul_i32 s27, s54, {16*1280}", "s_waitcnt lgkmcnt(0)", srd(12, 4, 2048*640*2))
    for hb in range(2):
        for i in range(10): k.e(f"buffer_load_dwordx4 {v(XR+40*hb+4*i,4)}, v{1 if hb == 0 else 8}, s[12:15], s27 offen offset:{128*i}")
    k.e(srd(20, 50, WS_BYTES), srd(16, 10, 640*640*2), srd(44, 48, 256), "s_mov_b32 s42, 0x3f803f80")
    for r in range(100, 116): k.e(f"v_mov_b32 v{r}, 0")
    for hb in range(2):
        for i in range(10):
            k.e(f"s_waitcnt vmcnt({19-10*hb-i})")
            for d in range(4):
                x = XR+40*hb+4*i+d
                k.e(f"v_dot2c_f32_bf16 v{100+8*hb+2*d}, s42, v{x}", f"v_dot2c_f32_bf16 v{101+8*hb+2*d}, v{x}, v{x}")
    k.e("s_nop 2")
    for hb in range(2):
        b = 100+8*hb
        k.e(f"v_pk_add_f32 {v(b,2)}, {v(b,2)}, {v(b+2,2)}", f"v_pk_add_f32 {v(b+4,2)}, {v(b+4,2)}, {v(b+6,2)}", f"v_pk_add_f32 {v(4+2*hb,2)}, {v(b,2)}, {v(b+4,2)}")
    k.e("s_nop 1")
    for ctl in ("quad_perm:[1,0,3,2]", "quad_perm:[2,3,0,1]", "row_half_mirror"):
        for r in (4, 5, 6, 7): k.e(f"v_add_f32_dpp v{r}, v{r}, v{r} {ctl} row_mask:0xf bank_mask:0xf")
    k.e("v_cmp_eq_u32 vcc, 1, v2", "s_nop 1", "v_cndmask_b32 v4, v4, v6, vcc", "v_cndmask_b32 v5, v5, v7, vcc")
    c = hex(f2u(1.0/640)); e = hex(f2u(1e-5))
    k.e(f"v_mul_f32 v4, {c}, v4", f"v_mul_f32 v5, {c}, v5", "v_fma_f32 v5, -v4, v4, v5", "v_max_f32 v5, 0, v5", f"v_add_f32 v5, {e}, v5", "v_rsq_f32 v6, v5", "v_lshrrev_b32 v9, 3, v0",
        "v_mul_f32 v7, v4, v6", "v_sub_f32 v7, 0, v7", "v_lshl_add_u32 v9, v2, 3, v9", "v_lshlrev_b32 v9, 3, v9",
        "s_lshl_b32 s30, s54, 7", f"s_add_u32 s30, s30, {XST}", "s_mov_b32 s40, 0x03030303", "s_mov_b32 s41, 0x03030303", "s_mov_b64 exec, s[40:41]",
        "buffer_store_dwordx2 v[6:7], v9, s[20:23], s30 offen sc1", "s_mov_b64 exec, -1", "s_waitcnt vmcnt(0)", "s_barrier")
    k.e("s_cmp_lg_u32 s26, 0", f"s_cbranch_scc1 {k.L('nf')}", "s_lshl_b32 s40, s24, 2", "v_mov_b32 v4, 1", "s_mov_b64 exec, 1", "buffer_store_dword v4, off, s[44:47], s40 sc1", "s_mov_b64 exec, -1")
    k.label("nf")
    k.e("STAMP0")
    k.e("v_lshlrev_b32 v3, 4, v0", "v_mov_b32 v4, -1", "v_mov_b32 v5, -1", "v_mov_b32 v6, -1", "v_mov_b32 v7, -1",
        "s_lshl_b32 s30, s54, 10", f"s_add_u32 s30, s30, {STATS}", "buffer_store_dwordx4 v[4:7], v3, s[20:23], s30 offen")
    k.e("v_mov_b32 v12, 0", "v_mov_b32 v13, 0", "v_mov_b32 v14, 0", "v_mov_b32 v15, 0", "s_lshl_b32 s30, s54, 8", f"s_add_u32 s30, s30, {CNT1}", "s_mov_b64 exec, 0xffff",
        "buffer_store_dwordx4 v[12:15], v3, s[20:23], s30 offen", "s_mov_b64 exec, -1", "s_nop 1")
    k.e("v_mov_b32 v12, s42", "v_mov_b32 v13, 0", "v_mov_b32 v14, s42", "v_mov_b32 v15, 0", "s_lshl_b32 s30, s54, 8", f"s_add_u32 s30, s30, {QK8+160*2048*16}", "s_mov_b64 exec, 0xffff",
        "buffer_store_dwordx4 v[12:15], v3, s[20:23], s30 offen",
        "v_mov_b32 v16, s42", "v_mov_b32 v17, s42", "v_mov_b32 v18, s42", "v_mov_b32 v19, s42", f"v_mul_u32_u24 v10, {VP}, v0", f"s_mul_i32 s30, s54, {2*VP}", f"s_add_u32 s30, s30, {VT8+640*16}", "s_mov_b64 exec, 3",
        "buffer_store_dwordx4 v[16:19], v10, s[20:23], s30 offen", "s_mov_b64 exec, -1")
    k.e("s_cmp_ge_u32 s54, 100", f"s_cbranch_scc1 {k.L('end')}")
    k.e(f"s_mul_hi_u32 s22, s54, {magic(10)}".replace("s22", "s52"), "s_mul_i32 s53, s52, 10", "s_sub_u32 s53, s54, s53")
    k.e(f"s_mul_i32 s27, s52, {64*1280}", "s_lshl_b32 s28, s53, 7", "s_add_u32 s27, s27, s28", "s_lshl_b32 s29, s26, 13")
    for u in range(8):
        k.e(f"s_add_u32 m0, s29, {u*1024}", "s_nop 0", "buffer_load_dwordx4 v1, s[16:19], s27 offen lds", "s_add_u32 s27, s27, 10240")
    k.e("v_bfe_u32 v2, v0, 2, 2", "v_lshlrev_b32 v2, 7, v2", "v_lshrrev_b32 v9, 4, v0", "v_lshl_add_u32 v2, v9, 5, v2", "v_and_b32 v9, 3, v0", "v_lshl_add_u32 v2, v9, 3, v2", "v_add_u32 v2, s29, v2")
    k.e(f"s_mul_i32 s30, s52, {8*10240}", "s_lshl_b32 s31, s53, 10", "s_add_u32 s30, s30, s31", f"s_add_u32 s30, s30, {WO8}")
    k.e("s_waitcnt vmcnt(0)")
    for u in range(8):
        for t in range(2):
            k.e(f"ds_read_b64_tr_b16 {v(20+4*u+2*t,2)}, v2 offset:{u*1024+t*512}")
    k.e("s_waitcnt lgkmcnt(0)")
    for u in range(8):
        k.e(f"buffer_store_dwordx4 {v(20+4*u,4)}, v3, s[20:23], s30 offen", "s_add_u32 s30, s30, 10240")
    k.label("end"); k.e("s_endpgm")
    return k

def k2_attn(NB=4, prio=1, pf=True, sc1=False, spread=False, k2x4=False):
    k = Kernel("k2_kernel", 256, 512, 73728+64)
    SC = " sc1" if sc1 else ""
    NG = 16//NB
    al = Alloc(1)
    T = [al() for _ in range(7)]
    O = [al(16) for _ in range(4)]
    Sx = [al(16) for _ in range(4)]
    P = al(8)
    Q1 = [al(4) for _ in range(4)]; Q2 = [al(2) for _ in range(4)]
    K1 = [al(4) for _ in range(NB)]; K2 = [al(4 if k2x4 else 2) for _ in range(NB)]
    KW = 4 if k2x4 else 2
    V = [al(8) for _ in range(NB)]
    vK1, vK2, vQ1, vQ2 = al(), al(), al(), al()
    vV = [[al(), al()] for _ in range(NB)]
    MX = [al() for _ in range(4)]
    PF = [al()]
    k.nv = al.p
    OOB = 0x40000000
    k.e("s_load_dwordx2 s[4:5], s[0:1], 80", "s_load_dwordx2 s[56:57], s[0:1], 32", "s_load_dwordx2 s[58:59], s[0:1], 48", "s_cmp_ge_u32 s2, 256", f"s_cbranch_scc1 {k.L('end')}")
    waveid(k, 14, T[0])
    k.e("s_and_b32 s12, s2, 7", "s_lshl_b32 s12, s12, 2", "s_bfe_u32 s13, s2, 0x20003", "s_add_u32 s12, s12, s13", "s_lshr_b32 s13, s2, 5")
    if prio:
        k.e("s_cmp_lt_u32 s14, 4", f"s_cbranch_scc1 {k.L('np')}", "s_setprio 1"); k.label("np")
    k.e("v_and_b32 v0, 63, v0", "s_and_b32 s15, s14, 1", "s_lshr_b32 s16, s14, 1",
        "s_and_b32 s17, s12, 1", "s_lshr_b32 s18, s12, 1", "s_mul_i32 s18, s18, 5", "s_mul_i32 s19, s17, 3", "s_add_u32 s19, s19, s18")
    l32, hf = T[0], T[1]
    k.e(f"v_and_b32 v{l32}, 31, v0", f"v_lshrrev_b32 v{hf}, 5, v0", "v_cmp_gt_u32 vcc, 32, v0")
    k.e("s_lshl_b32 s31, s13, 8", "s_lshl_b32 s32, s15, 7", "s_add_u32 s31, s31, s32",
        f"v_add_u32 v{T[2]}, s19, v{hf}", f"v_lshl_add_u32 v{T[2]}, v{T[2]}, 11, v{l32}",
        f"v_add_lshl_u32 v{vQ1}, v{T[2]}, s31, 4", f"s_mov_b32 s34, {80*2048}", f"v_add_lshl_u32 v{vK1}, v{T[2]}, s34, 4",
        "s_add_u32 s32, s18, 2", "s_lshl_b32 s32, s32, 15", "s_lshl_b32 s33, s17, 3", "s_add_u32 s32, s32, s33",
        f"v_lshlrev_b32 v{T[3]}, 4, v{l32}",
        "s_lshl_b32 s33, s31, 4", "s_add_u32 s33, s33, s32", f"v_add_u32 v{T[4]}, s33, v{T[3]}", f"v_mov_b32 v{T[5]}, {OOB}", f"v_cndmask_b32 v{vQ2}, v{T[5]}, v{T[4]}, vcc",
        f"s_add_u32 s32, s32, {80*2048*16}", f"v_mov_b32 v{T[4]}, s32", f"v_mov_b32 v{T[6]}, {160*2048*16}", f"v_cndmask_b32 v{T[4]}, v{T[6]}, v{T[4]}, vcc", f"v_add_u32 v{vK2}, v{T[4]}, v{T[3]}")
    for j in range(4):
        k.e(f"s_add_u32 s36, s16, {j}", "s_and_b32 s36, s36, 3", f"s_lshl_b32 s{40+j}, s36, 9")
    k.e("s_waitcnt lgkmcnt(0)", srd(8, 4, WS_BYTES))
    k.e(f"buffer_load_dwordx4 {v(K1[NB-1],4)}, v{vK1}, s[8:11], 0 offen", f"buffer_load_dwordx2 {v(K2[NB-1],2)}, v{vK2}, s[8:11], 0 offen")
    for j in range(4): k.e(f"buffer_load_dwordx4 {v(Q1[j],4)}, v{vQ1}, s[8:11], s{40+j} offen", f"buffer_load_dwordx2 {v(Q2[j],2)}, v{vQ2}, s[8:11], s{40+j} offen")
    k.e(f"v_bfe_u32 v{T[2]}, v0, 2, 1", f"v_lshlrev_b32 v{T[2]}, 3, v{T[2]}", f"v_bfe_u32 v{T[3]}, v0, 3, 1", f"v_lshl_add_u32 v{T[2]}, v{T[3]}, 2, v{T[2]}",
        f"v_and_b32 v{T[3]}, 3, v0", "s_lshl_b32 s35, s17, 2", f"v_add3_u32 v{T[2]}, v{T[2]}, v{T[3]}, s35",
        "s_lshl_b32 s35, s17, 4", f"v_subrev_u32 v{T[3]}, s35, v{l32}",
        f"v_cmp_gt_u32 vcc, 16, v{l32}", f"v_cmp_eq_u32 s[20:21], 20, v{l32}", f"v_cmp_lt_u32 s[22:23], 20, v{l32}", "s_mul_i32 s35, s12, 20", f"v_cndmask_b32 v{T[2]}, v{T[3]}, v{T[2]}, vcc",
        f"v_add_u32 v{T[2]}, s35, v{T[2]}", f"v_mov_b32 v{T[3]}, 640", f"v_cndmask_b32 v{T[2]}, v{T[2]}, v{T[3]}, s[20:21]",
        f"v_mul_u32_u24 v{T[4]}, 648, v{hf}", f"v_add_lshl_u32 v{T[2]}, v{T[2]}, v{T[4]}, 4", f"v_cndmask_b32 v{T[2]}, v{T[2]}, v{T[5]}, s[22:23]")
    def grp():
        return [f"s_and_b32 s20, s20, {NG-1}", "s_add_u32 s23, s20, s37", f"s_mul_i32 s21, s23, {512*NB}", f"s_mul_i32 s22, s23, {4*VP*NB}", "s_add_u32 s20, s20, 1"]
    def burst(b):
        return [f"buffer_load_dwordx4 {v(K1[b],4)}, v{vK1}, s[8:11], s21 offen offset:{512*b}", f"buffer_load_dwordx{KW} {v(K2[b],KW)}, v{vK2}, s[8:11], s21 offen offset:{512*b}",
                f"buffer_load_dwordx4 {v(V[b],4)}, v{vV[b][0]}, s[8:11], s22 offen", f"buffer_load_dwordx4 {v(V[b]+4,4)}, v{vV[b][1]}, s[8:11], s22 offen"]
    qk1 = lambda sb, kb, qt: f"v_mfma_f32_32x32x16_bf16 {v(Sx[sb],16)}, {v(K1[kb],4)}, {v(Q1[qt],4)}, 0"
    qk2 = lambda sb, kb, qt: f"v_mfma_f32_32x32x8_bf16 {v(Sx[sb],16)}, {v(K2[kb],2)}, {v(Q2[qt],2)}, {v(Sx[sb],16)}"
    pv = lambda half, kb, qt: f"v_mfma_f32_32x32x16_bf16 {v(O[qt],16)}, {v(V[kb]+4*half,4)}, {v(P+4*half,4)}, {v(O[qt],16)}"
    def maxtree(sb, dst, first):
        r = []
        s_ = Sx[sb]
        if first:
            r.append(f"v_max3_f32 v{dst}, v{s_}, v{s_+1}, v{s_+2}")
            for i in range(3, 15, 2): r.append(f"v_max3_f32 v{dst}, v{dst}, v{s_+i}, v{s_+i+1}")
            r.append(f"v_max_f32 v{dst}, v{dst}, v{s_+15}")
        else:
            for i in range(0, 16, 2): r.append(f"v_max3_f32 v{dst}, v{dst}, v{s_+i}, v{s_+i+1}")
        return r
    k.e(f"s_mul_i32 s37, s16, {NG}", "s_mov_b32 s20, s13", grp())
    for b in range(NB):
        k.e(f"v_add_u32 v{vV[b][0]}, {VT8 + 4*b*VP}, v{T[2]}", f"v_add_u32 v{vV[b][1]}, {VT8 + (4*b+2)*VP}, v{T[2]}")
        if b < NB-1: k.e(burst(b))
    def zeroO():
        return [f"v_mov_b32 v{P+i}, 0" for i in range(4, 8)] + [f"v_mov_b32 v{V[NB-1]+i}, 0" for i in range(4, 8)] + \
               [f"v_mfma_f32_32x32x16_bf16 {v(O[j],16)}, {v(P+4,4)}, {v(P+4,4)}, 0" for j in range(4)]
    k.e(zeroO())
    k.e("s_mov_b32 s26, 0", "s_mov_b32 s27, -1", "s_mov_b32 s29, 0", "s_mov_b32 s38, 0xffff0000", "s_mov_b32 s39, 0x07060302")
    k.e("STAMP0", f"s_waitcnt vmcnt({4*(NB-1)})", "STAMP1")
    for j in range(4): k.e(qk1(j, NB-1, j), qk2(j, NB-1, j))
    k.e("s_nop 7")
    for j in range(4): k.e(maxtree(j, MX[j], True))
    k.label("setm")
    k.e("s_mov_b64 exec, s[26:27]")
    for j in range(4):
        k.e(f"v_and_b32 v{T[3]}, s38, v{MX[j]}", f"v_sub_f32 v{T[4]}, v{T[3]}, v{MX[j]}", f"v_xor_b32 v{T[3]}, 0x80000000, v{T[3]}", f"v_perm_b32 v{Q2[j]}, v{T[4]}, v{T[3]}, s39")
    k.e("s_mov_b64 exec, -1")
    k.e(f"s_waitcnt vmcnt({4*(NB-2)})", qk1(0, 0, 0), qk2(0, 0, 0), f"s_mov_b32 s28, {NG}")
    if pf:
        k.e("s_lshl_b32 s60, s2, 2", "s_add_u32 s60, s60, s16", f"s_mul_i32 s72, s60, {48*128}", "s_cmp_eq_u32 s15, 0", "s_cselect_b32 s64, s56, s58", "s_cselect_b32 s65, s57, s59",
            f"s_mov_b32 s66, {hex(2048*1536*2)}", "s_mov_b32 s67, 0x00020000",
            f"v_lshlrev_b32 v{T[3]}, 7, v0", f"v_cmp_gt_u32 vcc, {48//NG}, v0", f"v_mov_b32 v{T[4]}, {OOB}", "s_nop 0", f"v_cndmask_b32 v{PF[0]}, v{T[4]}, v{T[3]}, vcc")
    else:
        k.e("s_nop 10")
    k.e("STAMP2", ".p2align 6")
    k.label("loop")
    ex = lambda sb, i: f"v_exp_f32 v{Sx[sb]+i}, v{Sx[sb]+i}"
    cv = lambda sb, i: f"v_cvt_pk_bf16_f32 v{P+i}, v{Sx[sb]+2*i}, v{Sx[sb]+2*i+1}"
    NT = 4*NB
    for n in range(NT):
        kt, qt = n//4, n % 4
        n1 = (n+1) % NT; n0 = (n-1) % NT
        sb = n % 2
        if qt == 3: k.e(f"s_waitcnt vmcnt({4*(NB-2) - (1 if spread else 0) + (1 if pf and kt < NB-1 else 0)})")
        k.e(qk1(1-sb, n1//4, n1 % 4))
        k.e([ex(sb, i) for i in range(0, 4)])
        k.e(pv(1, n0//4, n0 % 4))
        if spread:
            k.e(burst((kt-1) % NB)[qt])
            if kt == 0 and qt == 3: k.e(grp())
        if qt == 0:
            if not spread:
                k.e(burst((kt-1) % NB))
                if kt == 0:
                    k.e(grp())
                    if pf: k.e(f"buffer_load_dword v{T[6]}, v{PF[0]}, s[64:67], s72 offen", f"s_add_u32 s72, s72, {48//NG*128}")
            if prio and kt == NB-prio:
                k.e("s_cmp_lg_u32 s28, 1", f"s_cbranch_scc1 {k.L('kp')}", "s_setprio 0"); k.label("kp")
        k.e(cv(sb, 0), cv(sb, 1))
        k.e([ex(sb, i) for i in range(4, 8)])
        k.e(qk2(1-sb, n1//4, n1 % 4))
        k.e(cv(sb, 2), cv(sb, 3))
        k.e([ex(sb, i) for i in range(8, 12)])
        k.e(pv(0, kt, qt))
        k.e(cv(sb, 4), cv(sb, 5))
        k.e([ex(sb, i) for i in range(12, 16)])
        k.e(cv(sb, 6), cv(sb, 7))
    k.e("s_sub_u32 s28, s28, 1", "s_cmp_lg_u32 s28, 0", f"s_cbranch_scc1 {k.L('loop')}")
    k.e(pv(1, NB-1, 3), "STAMP3")
    wa_ = [T[2], T[3], T[4]]
    k.e(f"v_lshlrev_b32 v{T[5]}, 4, v0", "s_lshl_b32 s44, s15, 2")
    for j in range(1, 4):
        k.e(f"s_add_u32 s36, s16, {j}", "s_and_b32 s36, s36, 3", "s_add_u32 s36, s36, s44", "s_mul_i32 s36, s36, 9216", f"s_add_u32 s36, s36, {(j-1)*3072}", f"v_add_u32 v{wa_[j-1]}, s36, v{T[5]}")
        for q in range(3): k.e(f"ds_write_b128 v{wa_[j-1]}, {v(O[j]+4*q,4)} offset:{q*1024}")
    k.e("s_add_u32 s36, s16, s44", "s_mul_i32 s36, s36, 9216", f"v_add_u32 v{T[5]}, s36, v{T[5]}")
    k.e(f"s_mov_b32 s45, {hex(f2u(2.0**64))}")
    for j in range(4):
        k.e(f"v_cmp_nge_f32 s[{46+2*j}:{47+2*j}], s45, v{O[j]+8}")
    k.e("s_lshl_b32 s54, s14, 2", "s_add_u32 s54, s54, 73728", f"v_mov_b32 v{T[2]}, s54",
        "s_or_b32 s47, s47, s49", "s_or_b32 s51, s51, s53", "s_or_b32 s47, s47, s51", "s_cselect_b32 s46, 1, 0",
        f"v_mov_b32 v{T[3]}, s46", f"ds_write_b32 v{T[2]}, v{T[3]}", f"v_mov_b32 v{T[2]}, 73728",
        "s_waitcnt lgkmcnt(0)", "s_barrier")
    FL = Sx[0]
    k.e(f"ds_read_b128 {v(FL,4)}, v{T[2]}", f"ds_read_b128 {v(FL+4,4)}, v{T[2]} offset:16")
    for j in range(1, 4):
        for q in range(3): k.e(f"ds_read_b128 {v(O[j]+4*q,4)}, v{T[5]} offset:{(j-1)*3072+q*1024}")
    k.e("s_waitcnt lgkmcnt(9)", f"v_or3_b32 v{FL}, v{FL}, v{FL+1}, v{FL+2}", f"v_or3_b32 v{FL}, v{FL}, v{FL+3}, v{FL+4}", f"v_or3_b32 v{FL}, v{FL}, v{FL+5}, v{FL+6}", f"v_or_b32 v{FL}, v{FL}, v{FL+7}",
        "s_nop 0", f"v_readfirstlane_b32 s46, v{FL}", "s_nop 3", "s_andn2_b32 s46, s46, s29", f"s_cbranch_scc1 {k.L('redo')}")
    k.e("s_waitcnt lgkmcnt(0)")
    for i in range(0, 12, 2):
        k.e(f"v_pk_add_f32 {v(O[0]+i,2)}, {v(O[0]+i,2)}, {v(O[1]+i,2)}", f"v_pk_add_f32 {v(O[2]+i,2)}, {v(O[2]+i,2)}, {v(O[3]+i,2)}")
    for i in (8, 0, 2, 4, 6, 10):
        k.e(f"v_pk_add_f32 {v(O[0]+i,2)}, {v(O[0]+i,2)}, {v(O[2]+i,2)}")
    k.e(f"v_mov_b32 v{O[1]}, v{O[0]+8}", f"v_mov_b32 v{O[1]+2}, v{O[0]+8}", "s_nop 1", f"v_permlane32_swap_b32 v{O[1]}, v{O[1]+2}", "s_nop 1", f"v_rcp_f32 v{O[1]+2}, v{O[1]+2}", "s_nop 0")
    for i in range(0, 12, 2): k.e(f"v_pk_mul_f32 {v(O[0]+i,2)}, {v(O[0]+i,2)}, {v(O[1]+2,2)} op_sel_hi:[1,0]")
    for i in range(6): k.e(f"v_cvt_pk_bf16_f32 v{P+i}, v{O[0]+2*i}, v{O[0]+2*i+1}")
    k.e(f"s_add_u32 s40, s40, {O8}", f"buffer_store_dwordx4 {v(P,4)}, v{vQ1}, s[8:11], s40 offen{SC}", f"buffer_store_dwordx2 {v(P+4,2)}, v{vQ2}, s[8:11], s40 offen{SC}")
    k.label("end"); k.e("s_endpgm")
    k.label("redo")
    k.e("s_waitcnt vmcnt(0) lgkmcnt(0)", "s_barrier", "s_mov_b32 s29, 1", "s_mov_b64 exec, s[26:27]")
    for j in range(4): k.e(f"v_mov_b32 v{Q2[j]}, 0")
    k.e("s_mov_b64 exec, -1")
    for j in range(4): k.e(f"v_mov_b32 v{MX[j]}, 0xff800000")
    k.e("s_mov_b32 s21, 0")
    k.label("mx")
    k.e(f"buffer_load_dwordx4 {v(K1[NB-1],4)}, v{vK1}, s[8:11], s21 offen", f"buffer_load_dwordx2 {v(K2[NB-1],2)}, v{vK2}, s[8:11], s21 offen", "s_waitcnt vmcnt(0)")
    for j in range(4): k.e(qk1(j, NB-1, j), qk2(j, NB-1, j))
    k.e("s_nop 7")
    for j in range(4): k.e(maxtree(j, MX[j], False))
    k.e("s_add_u32 s21, s21, 512", f"s_cmp_lt_u32 s21, {64*512}", f"s_cbranch_scc1 {k.L('mx')}")
    for j in range(4):
        k.e(f"v_mov_b32 v{T[2]}, v{MX[j]}", "s_nop 1", f"v_permlane32_swap_b32 v{MX[j]}, v{T[2]}", "s_nop 1", f"v_max_f32 v{MX[j]}, v{MX[j]}, v{T[2]}")
    k.e("s_mov_b32 s20, s13", grp())
    for b in range(NB-1): k.e(burst(b))
    k.e(zeroO())
    k.e(f"s_branch {k.L('setm')}")
    return k

class VM:
    def __init__(self, k): self.k = k; self.q = []
    def note(self, lines, tag):
        for l in lines:
            if l.startswith("buffer_"): self.q.append(tag)
        return lines
    def emit(self, lines, tag): self.k.e(self.note(lines, tag))
    def need(self, tag):
        idx = [i for i, t in enumerate(self.q) if t == tag]
        if not idx: return []
        n = len(self.q) - 1 - idx[-1]
        self.q = self.q[idx[-1]+1:]
        assert n <= 63
        return [f"s_waitcnt vmcnt({n})"]
    def wait(self, tag): self.k.e(self.need(tag))

def kt_tail(DC=3, DD=4, DE=4, rot=True, NSL=5, sch1=(2,2,3,4), sch2=(3,4), tk=True):
    PART = 0
    RING = 61440
    IMG = RING + 4*NSL*4096
    k = Kernel("kt_kernel", 256, 256, IMG + 12288)
    vm = VM(k)
    al = Alloc(1)
    T = [al() for _ in range(7)]
    ACC = al(80)
    BUF = al(36*(DC+1))
    vA = al(); vB = [al() for _ in range(4)]
    vW = [al() for _ in range(4)]; vR = [al() for _ in range(4)]
    vPW = [al() for _ in range(3)]; vPR = al(); vI = al()
    HK = BUF + 120
    XB = BUF + 132
    assert XB + 8 <= BUF + 36*(DC+1)
    k.nv = 512; k.acc = 256
    l16, g4 = T[0], T[1]
    acc = lambda i, c: ACC + 4*(5*c+i)
    k.e("s_load_dwordx2 s[4:5], s[0:1], 80", "s_load_dwordx2 s[6:7], s[0:1], 0", "s_load_dwordx8 s[28:35], s[0:1], 32", "s_load_dwordx2 s[36:37], s[0:1], 64",
        "s_cmp_ge_u32 s2, 256", f"s_cbranch_scc1 {k.L('end')}")
    waveid(k, 14, T[0])
    if tk:
        k.e("s_waitcnt lgkmcnt(0)"); ticket(k, 4, TK3, 7, 14, IMG + 12288, T[2:5]); k.lds += 16
    k.e("s_and_b32 s16, s2, 7", "s_lshr_b32 s17, s2, 3", "v_and_b32 v0, 63, v0")
    k.e("s_lshr_b32 s12, s17, 2", "s_lshl_b32 s13, s16, 2", "s_and_b32 s18, s17, 3", "s_add_u32 s13, s13, s18", "s_add_u32 s18, s18, s12")
    k.e("s_mul_i32 s19, s12, 80", "s_lshl_b32 s20, s13, 6")
    k.e(f"v_and_b32 v{l16}, 15, v0", f"v_lshrrev_b32 v{g4}, 4, v0")
    for c in range(4): k.e(f"s_add_u32 s{38+c}, s14, {c}", f"s_and_b32 s{38+c}, s{38+c}, 3")
    def x8addr(vv, R, sb, off):
        return [f"v_mul_u32_u24 v{T[2]}, {R}, v{g4}", f"v_add3_u32 v{T[2]}, v{T[2]}, v{l16}, s{sb}", f"v_lshlrev_b32 v{vv}, 4, v{T[2]}", f"v_add_u32 v{vv}, {off}, v{vv}"]
    def baddr(R, sb, off):
        r = x8addr(T[3], R, sb, off)
        for c in range(4): r += [f"s_lshl_b32 s22, s{38+c}, 8", f"v_add_u32 v{vB[c]}, s22, v{T[3]}"]
        return r
    def stepcode(j, n, srot):
        if not rot or j >= (n & ~3): return [f"s_add_u32 s21, s14, {4*j}"]
        return [f"s_add_u32 s21, s{srot}, {j}", "s_and_b32 s21, s21, 3", "s_lshl_b32 s21, s21, 2", "s_add_u32 s21, s21, s14", f"s_add_u32 s21, s21, {4*(j & ~3)}"]
    def waddr(ld, sb, perm):
        r = [f"v_lshrrev_b32 v{T[2]}, 3, v0", f"v_mul_u32_u24 v{T[2]}, {ld}, v{T[2]}", f"s_lshl_b32 s22, s{sb}, 1", f"v_add_u32 v{T[2]}, s22, v{T[2]}", f"v_and_b32 v{T[3]}, 7, v0"]
        if perm:
            r += [f"v_lshlrev_b32 v{T[4]}, 1, v{g4}", f"v_xor_b32 v{T[3]}, v{T[3]}, v{T[4]}", f"v_lshl_add_u32 v{vW[0]}, v{T[3]}, 4, v{T[2]}"]
            r += [f"v_add_u32 v{vW[i]}, {i*(8*ld-1024)}, v{vW[0]}" for i in range(1, 4)]
        else:
            r += [f"v_bfe_u32 v{T[4]}, v0, 4, 1", f"v_lshlrev_b32 v{T[4]}, 1, v{T[4]}", f"v_xor_b32 v{T[3]}, v{T[3]}, v{T[4]}",
                  f"v_lshl_add_u32 v{vW[0]}, v{T[3]}, 4, v{T[2]}", f"v_xor_b32 v{vW[1]}, 64, v{vW[0]}",
                  f"v_add_u32 v{vW[2]}, {2*(8*ld-1024)}, v{vW[0]}", f"v_add_u32 v{vW[3]}, {3*(8*ld-1024)}, v{vW[1]}", f"v_add_u32 v{vW[1]}, {8*ld-1024}, v{vW[1]}"]
        return r
    def raddr(perm):
        if perm:
            r = [f"v_lshrrev_b32 v{T[2]}, 2, v0", f"v_lshlrev_b32 v{T[3]}, 7, v{T[2]}", f"v_bfe_u32 v{T[2]}, v0, 3, 2", f"v_lshl_add_u32 v{T[3]}, v{T[2]}, 5, v{T[3]}"]
        else:
            r = [f"v_bfe_u32 v{T[2]}, v0, 2, 2", f"v_lshl_add_u32 v{T[3]}, v{g4}, 3, v{T[2]}", f"v_lshlrev_b32 v{T[3]}, 7, v{T[3]}",
                 f"v_bfe_u32 v{T[2]}, v0, 3, 2", f"v_lshl_add_u32 v{T[3]}, v{T[2]}, 5, v{T[3]}"]
        r += [f"v_and_b32 v{T[2]}, 3, v0", f"v_lshl_add_u32 v{T[3]}, v{T[2]}, 3, v{T[3]}"]
        for c in range(4):
            if perm: r += [f"s_lshl_b32 s22, s{38+c}, 5", f"v_xor_b32 v{vR[c]}, s22, v{T[3]}", f"v_add_u32 v{vR[c]}, s15, v{vR[c]}"]
            else: r += [f"v_xor_b32 v{vR[c]}, {32*c}, v{T[3]}", f"v_add_u32 v{vR[c]}, s15, v{vR[c]}"]
        return r
    class WS:
        def __init__(s, name, n, srot, ld, tstep): s.name = name; s.n = n; s.srot = srot; s.ld = ld; s.tstep = tstep; s.ni = 0; s.nd = 0
        def issue_lines(s):
            j = s.ni; s.ni += 1
            return vm.note(stepcode(j, s.n, s.srot) + [f"s_mul_i32 s22, s21, {32*s.ld}", f"s_add_u32 m0, s15, {(j % NSL)*4096}", "s_nop 0"] +
                           [f"buffer_load_dwordx4 v{vW[i]}, s[44:47], s22 offen offset:{i*1024} lds" for i in range(4)], (s.name, j))
        def drain_lines(s):
            j = s.nd; s.nd += 1
            r = vm.need((s.name, j))
            for c in range(4):
                for t in range(2): r.append(f"ds_read_b64_tr_b16 {a(16*j+4*c+2*t,2)}, v{vR[c]} offset:{(j % NSL)*4096+t*s.tstep}")
            return r
        def handle(s, cnt):
            for _ in range(cnt):
                if s.nd >= s.n: return
                k.e(s.drain_lines())
                if s.ni < s.n: k.e("s_waitcnt lgkmcnt(0)", s.issue_lines())
    def scatter(MA):
        k.e("s_nop 3")
        for c in range(1, 4):
            for i in range(MA): k.e(f"ds_write_b128 v{vPW[c-1]}, {v(acc(i,c),4)} offset:{i*1024}")
        k.e("s_waitcnt lgkmcnt(0)", "s_barrier")
        for c in range(1, 4):
            for i in range(MA): k.e(f"ds_read_b128 {v(acc(i,c),4)}, v{vPR} offset:{(c-1)*5120+i*1024}")
    def gather(MA, grouped=True):
        n = 4*MA
        k.e(f"s_waitcnt lgkmcnt({min(15, 2*MA)})")
        for i in range(0, n, 2): k.e(f"v_pk_add_f32 {v(ACC+i,2)}, {v(ACC+i,2)}, {v(ACC+20+i,2)}")
        k.e("s_waitcnt lgkmcnt(0)")
        for i in range(0, n, 2): k.e(f"v_pk_add_f32 {v(ACC+40+i,2)}, {v(ACC+40+i,2)}, {v(ACC+60+i,2)}")
        for i in range(0, n, 2): k.e(f"v_pk_add_f32 {v(ACC+i,2)}, {v(ACC+i,2)}, {v(ACC+40+i,2)}")
    def allred(A):
        k.e("s_nop 1", f"v_permlane32_swap_b32 v{A}, v{A+1}", "s_nop 0", f"v_add_f32 v{A}, v{A}, v{A+1}", f"v_mov_b32 v{A+1}, v{A}", "s_nop 1", f"v_permlane16_swap_b32 v{A}, v{A+1}", "s_nop 0",
            f"v_add_f32 v{A}, v{A}, v{A+1}", f"v_mov_b32 v{A+1}, v{A}", "s_nop 1", f"v_permlane32_swap_b32 v{A}, v{A+1}", "s_nop 0")
    def signal(off, pitch, stile, sidx, name, sr):
        k.e("s_barrier", "s_cmp_lg_u32 s14, 0", f"s_cbranch_scc1 {k.L(name)}")
        k.e(f"s_lshl_b32 s22, s{stile}, 7", f"s_lshl_b32 s23, s{sidx}, 2", "s_add_u32 s22, s22, s23", f"s_add_u32 s22, s22, {off}", f"v_mul_u32_u24 v{T[2]}, {pitch}, v0", f"v_mov_b32 v{T[3]}, 1", "s_mov_b64 exec, 0xff",
            f"buffer_store_dword v{T[3]}, v{T[2]}, s[{sr}:{sr+3}], s22 offen sc1", "s_mov_b64 exec, -1")
        k.label(name)
    def polladdr(off, pitch, slo, shi, nprod):
        k.e(f"v_mov_b32 v{T[2]}, s{slo}", f"v_mov_b32 v{T[3]}, s{shi}", "v_cmp_gt_u32 vcc, 32, v0", f"s_mul_i32 s43, s16, {pitch}", f"s_add_u32 s43, s43, {off}",
            f"v_cndmask_b32 v{T[2]}, v{T[3]}, v{T[2]}, vcc", f"v_and_b32 v{T[3]}, 31, v0", f"v_min_u32 v{T[3]}, {nprod-1}, v{T[3]}", f"v_lshlrev_b32 v{T[3]}, 2, v{T[3]}", f"v_lshl_add_u32 v{T[5]}, v{T[2]}, 7, v{T[3]}")
    def pollcheck(name, ld, bad):
        vm.wait("poll")
        k.e("s_mov_b32 s23, 0x40000")
        k.label(name)
        k.e(bad, f"s_cbranch_vccz {k.L(name+'x')}", "s_sub_u32 s23, s23, 1", f"s_cbranch_scc1 {k.L(name+'x')}", ld, "s_waitcnt vmcnt(0)", f"s_branch {k.L(name)}")
        k.label(name+'x')

    k.e(x8addr(vA, 640, 19, WO8), baddr(2048, 20, O8))
    k.e("s_waitcnt lgkmcnt(0)", srd(8, 4, WS_BYTES))
    NSC = DC+1
    Af = [[BUF + 36*b + 4*i for i in range(5)] for b in range(NSC)]
    Bf = [[BUF + 36*b + 20 + 4*i for i in range(4)] for b in range(NSC)]
    def ldC(j):
        b = j % NSC
        r = stepcode(j, 5, 18) + [f"s_mul_i32 s22, s21, {4*640*16}", f"s_mul_i32 s23, s21, {4*2048*16}"]
        for i in range(5):
            if i < 4: r.append(f"buffer_load_dwordx4 {v(Bf[b][(i+1)%4],4)}, v{vB[(i+1)%4]}, s[8:11], s23 offen")
            r.append(f"buffer_load_dwordx4 {v(Af[b][i],4)}, v{vA}, s[8:11], s22 offen offset:{i*256}")
        return vm.note(r, ("C", j))
    for j in range(DC): k.e(ldC(j))
    k.e(f"s_mul_hi_u32 s52, s17, {magic(5)}", "s_mul_i32 s53, s52, 5", "s_sub_u32 s53, s17, s53",
        "s_and_b32 s54, s16, 1", "s_lshr_b32 s55, s16, 1",
        "s_mul_i32 s70, s54, 5", "s_add_u32 s70, s70, s53", "s_lshl_b32 s65, s70, 6",
        "s_mul_i32 s71, s55, 6", "s_add_u32 s71, s71, s52", "s_lshl_b32 s64, s71, 6", "s_add_u32 s66, s52, s53",
        f"s_mul_hi_u32 s72, s65, {magic(80)}", "s_add_u32 s73, s65, 63", f"s_mul_hi_u32 s73, s73, {magic(80)}",
        "s_lshr_b32 s74, s19, 6", "s_add_u32 s75, s74, 1",
        f"s_mul_i32 s15, s14, {NSL*4096}", f"s_add_u32 s15, s15, {RING}", "s_mul_i32 s42, s14, 3072", f"s_add_u32 s42, s42, {IMG}", "s_mov_b32 s56, 0xffff0000")
    k.e(srd(44, 28, 2048*1536*2), srd(48, 4, WS_BYTES), "s_cmp_ge_u32 s17, 30", "s_cselect_b32 s46, 0, s46", "s_cselect_b32 s50, 0, s50", srd(24, 6, 2048*640*2))
    k.e(waddr(3072, 64, False), raddr(False))
    k.e(f"v_lshlrev_b32 v{T[2]}, 4, v0")
    for c in range(1, 4): k.e(f"s_mul_i32 s22, s{38+c}, 15360", f"s_add_u32 s22, s22, {PART+(c-1)*5120}", f"v_add_u32 v{vPW[c-1]}, s22, v{T[2]}")
    k.e("s_mul_i32 s22, s14, 15360", f"v_add_u32 v{vPR}, s22, v{T[2]}",
        f"v_mul_u32_u24 v{T[2]}, 160, v{l16}", f"v_lshl_add_u32 v{T[2]}, v{g4}, 3, v{T[2]}", f"v_add_u32 v{vI}, s42, v{T[2]}")
    GO = [T[4], T[5], T[6]]
    def growaddr(dst):
        r = [f"s_lshl_b32 s22, s14, 4", "s_add_u32 s22, s22, s20", "s_mul_i32 s22, s22, 1280", "s_lshl_b32 s23, s19, 1", "s_add_u32 s57, s22, s23"]
        for rr in range(3):
            r += [f"v_add_u32 v{T[2]}, {64*rr}, v0", f"v_mul_u32_u24 v{T[3]}, 205, v{T[2]}", f"v_lshrrev_b32 v{T[3]}, 11, v{T[3]}", f"v_mul_u32_u24 v{T[3]}, {1280-160}, v{T[3]}", f"v_lshl_add_u32 v{dst[rr]}, v{T[2]}, 4, v{T[3]}"]
        return r
    k.e(growaddr(GO))
    xl = ["s_mov_b32 m0, s42", "s_nop 0", f"buffer_load_dwordx4 v{GO[0]}, s[24:27], s57 offen lds", "s_add_u32 m0, s42, 1024", "s_nop 0", f"buffer_load_dwordx4 v{GO[1]}, s[24:27], s57 offen lds",
          "s_add_u32 m0, s42, 2048", "s_mov_b32 exec_hi, 0", f"buffer_load_dwordx4 v{GO[2]}, s[24:27], s57 offen lds", "s_mov_b64 exec, -1"]
    W1 = WS("w1", 16, 66, 3072, 512)
    order5 = [(i, c) for c in (1, 2, 3, 0) for i in range(5)]
    order4 = [(i, c) for c in (1, 2, 3, 0) for i in range(4)]
    nx = NSL
    for j in range(5):
        b = j % NSC
        if j == 0: k.e("STAMP0")
        vm.wait(("C", j))
        m = [f"v_mfma_f32_16x16x32_bf16 {v(acc(i,c),4)}, {v(Af[b][i],4)}, {v(Bf[b][c],4)}, " + ("0" if j == 0 else v(acc(i,c), 4)) for (i, c) in order5]
        if j + DC < 5: f = ldC(j+DC)
        elif j + DC == 5:
            k.e(vm.note(xl, "x")); f = W1.issue_lines()
        else:
            f = []
            for _ in range(2):
                if W1.ni < NSL: f += W1.issue_lines()
        k.e(interleave(m, f))
    k.e("STAMP1")
    scatter(5)
    k.e("STAMP2")
    R = ACC; U = BUF; XR = BUF+20
    vm.wait("x")
    for i in range(5): k.e(f"ds_read_b64 {v(XR+2*i,2)}, v{vI} offset:{32*i}")
    k.e("s_lshl_b32 s58, s13, 12", f"s_add_u32 s58, s58, {STATS}", "s_lshl_b32 s59, s14, 7", "s_add_u32 s58, s58, s59", "s_lshl_b32 s59, s12, 9", "s_add_u32 s59, s59, s58",
        f"v_lshlrev_b32 v{T[6]}, 3, v{l16}", f"v_lshl_add_u32 v{T[5]}, v{g4}, 10, v{T[6]}")
    gather(5)
    for i in range(10): k.e(f"v_lshlrev_b32 v{U+2*i}, 16, v{XR+i}", f"v_and_b32 v{U+2*i+1}, s56, v{XR+i}")
    for i in range(0, 20, 2): k.e(f"v_pk_add_f32 {v(R+i,2)}, {v(R+i,2)}, {v(U+i,2)}")
    SS = R+20; QQ = R+22; ST = R+24; G = R+28
    k.e(f"v_pk_add_f32 {v(SS,2)}, {v(R,2)}, {v(R+2,2)}", f"v_pk_mul_f32 {v(QQ,2)}, {v(R,2)}, {v(R,2)}", f"v_pk_fma_f32 {v(QQ,2)}, {v(R+2,2)}, {v(R+2,2)}, {v(QQ,2)}")
    for i in range(4, 20, 2): k.e(f"v_pk_add_f32 {v(SS,2)}, {v(SS,2)}, {v(R+i,2)}", f"v_pk_fma_f32 {v(QQ,2)}, {v(R+i,2)}, {v(R+i,2)}, {v(QQ,2)}")
    k.e(f"v_add_f32 v{ST}, v{SS}, v{SS+1}", f"v_add_f32 v{ST+1}, v{QQ}, v{QQ+1}")
    allred(ST)
    vm.emit([f"v_and_b32 v{ST+1}, 0x7fffffff, v{ST+1}", "s_mov_b64 exec, 0xffff", f"buffer_store_dwordx2 {v(ST,2)}, v{T[6]}, s[8:11], s59 offen sc1", "s_mov_b64 exec, -1"], "st")
    k.e("STAMP3")
    for i in range(10): k.e(f"v_cvt_pk_bf16_f32 v{HK+i}, v{R+2*i}, v{R+2*i+1}")
    W1.handle(sch1[0])
    pl = [f"buffer_load_dwordx2 {v(G,2)}, v{T[5]}, s[8:11], s58 offen sc1", f"buffer_load_dwordx2 {v(G+2,2)}, v{T[5]}, s[8:11], s58 offen offset:512 sc1"]
    vm.emit(pl, "poll")
    k.e("STAMP4")
    W1.handle(sch1[1])
    pollcheck("sp", pl, [f"v_or_b32 v{G+4}, v{G+1}, v{G+3}", f"v_cmp_gt_i32 vcc, 0, v{G+4}"])
    k.e("STAMP5")
    k.e(f"v_pk_add_f32 {v(G,2)}, {v(G,2)}, {v(G+2,2)}")
    allred(G)
    c = hex(f2u(1.0/640)); e = hex(f2u(1e-5))
    k.e(f"v_mul_f32 v{G}, {c}, v{G}", f"v_mul_f32 v{G+1}, {c}, v{G+1}", f"v_fma_f32 v{G+1}, -v{G}, v{G}, v{G+1}", f"v_max_f32 v{G+1}, 0, v{G+1}",
        f"v_add_f32 v{G+2}, {e}, v{G+1}", f"v_rsq_f32 v{G+2}, v{G+2}", "s_nop 0", f"v_mul_f32 v{G+1}, v{G+1}, v{G+2}", f"v_mul_f32 v{G+1}, v{G+1}, v{G+2}",
        f"v_add_f32 v{G+1}, {e}, v{G+1}", f"v_rsq_f32 v{G+1}, v{G+1}", "s_nop 0", f"v_mul_f32 v{G+2}, v{G+1}, v{G+2}", f"v_mul_f32 v{G+3}, v{G}, v{G+2}", f"v_sub_f32 v{G+3}, 0, v{G+3}")
    for i in range(5):
        for h_ in range(2): k.e(f"v_pk_fma_f32 {v(R+4*i+2*h_,2)}, {v(R+4*i+2*h_,2)}, {v(G+2,2)}, {v(G+2,2)} op_sel:[0,0,1] op_sel_hi:[1,0,1]")
        k.e(f"v_cvt_pk_bf16_f32 v{U+2*i}, v{R+4*i}, v{R+4*i+1}", f"v_cvt_pk_bf16_f32 v{U+2*i+1}, v{R+4*i+2}, v{R+4*i+3}", f"ds_write_b64 v{vI}, {v(U+2*i,2)} offset:{32*i}")
    k.e(f"v_bfe_u32 v{T[2]}, v0, 4, 1", f"v_bfe_u32 v{T[6]}, v0, 2, 2", f"v_lshl_add_u32 v{T[6]}, v{T[2]}, 3, v{T[6]}", f"v_mul_u32_u24 v{T[6]}, 160, v{T[6]}",
        f"v_lshrrev_b32 v{T[5]}, 5, v0", f"v_lshl_add_u32 v{T[6]}, v{T[5]}, 5, v{T[6]}", f"v_and_b32 v{T[3]}, 3, v0", f"v_lshl_add_u32 v{T[6]}, v{T[3]}, 3, v{T[6]}", f"v_add_u32 v{T[6]}, s42, v{T[6]}")
    k.e("s_lshr_b32 s60, s20, 3", "s_lshl_b32 s61, s14, 1", "s_add_u32 s60, s60, s61", "s_mul_i32 s60, s60, 640", "s_add_u32 s60, s60, s19", "s_lshl_b32 s60, s60, 4", f"s_add_u32 s60, s60, {HN8}",
        f"v_mul_u32_u24 v{T[2]}, 640, v{T[2]}", f"v_lshl_add_u32 v{T[2]}, v{T[5]}, 4, v{T[2]}", f"v_add_lshl_u32 v{T[2]}, v{T[2]}, v{l16}, 4")
    k.e("s_waitcnt lgkmcnt(0)")
    for r in range(3):
        for t in range(2): k.e(f"ds_read_b64_tr_b16 {v(R+4*r+2*t,2)}, v{T[6]} offset:{64*r+4*t*160}")
    for r in range(3):
        k.e(f"s_waitcnt lgkmcnt({4-2*r})")
        if r == 2: k.e("s_mov_b32 exec_hi, 0")
        vm.emit([f"buffer_store_dwordx4 {v(R+4*r,4)}, v{T[2]}, s[8:11], s60 offen offset:{512*r} sc1"], "hn")
    k.e("s_mov_b64 exec, -1", "STAMP6")
    W1.handle(sch1[2])
    vm.wait("hn")
    signal(CNT1, 1024, 12, 13, "sg1", 8)
    k.e("STAMP7")
    k.e(srd(24, 30, 3072), baddr(640, 65, HN8))
    polladdr(CNT1, 1024, 72, 73, 32)
    k.e(f"v_lshlrev_b32 v{T[2]}, 3, v{g4}", "s_lshl_b32 s61, s64, 1")
    vm.emit([f"buffer_load_dwordx2 {v(XB+2*i,2)}, v{T[2]}, s[24:27], s61 offen offset:{32*i}" for i in range(4)], "b1")
    W1.handle(sch1[3])
    while W1.ni < W1.n: W1.handle(1)
    pl = [f"buffer_load_dword v{T[6]}, v{T[5]}, s[8:11], s43 offen sc1"]
    k.e("STAMP8")
    vm.emit(pl, "poll")
    W1.handle(2)
    k.e("s_cmp_ge_u32 s17, 30", f"s_cbranch_scc1 {k.L('p1x')}")
    q_save = list(vm.q)
    pollcheck("p1", pl, [f"v_cmp_eq_u32 vcc, 0, v{T[6]}"])
    vm.q = q_save
    k.e("STAMP9")
    NSD = DD+1
    Df = [[BUF + 16*b + 4*i for i in range(4)] for b in range(NSD)]
    assert 16*NSD <= 120
    def ldD(j):
        b = j % NSD
        return vm.note(stepcode(j, 16, 66) + [f"s_mul_i32 s23, s21, {4*640*16}"] + [f"buffer_load_dwordx4 {v(Df[b][c],4)}, v{vB[c]}, s[48:51], s23 offen sc1" for c in (1, 2, 3, 0)], ("D", j))
    for j in range(DD): k.e(ldD(j))
    W1.handle(16)
    k.e("s_waitcnt lgkmcnt(0)", srd(44, 32, 2048*1536*2), waddr(4096, 20, True), raddr(True))
    W2 = WS("w2", 12, 18, 4096, 2048)
    for j in range(16):
        b = j % NSD
        vm.wait(("D", j))
        m = [f"v_mfma_f32_16x16x32_bf16 {v(acc(i,c),4)}, {a(16*j+4*i,4)}, {v(Df[b][c],4)}, " + ("0" if j == 0 else v(acc(i,c), 4)) for (i, c) in order4]
        if j + DD < 16: f = ldD(j+DD)
        else:
            f = W2.issue_lines() if W2.ni < NSL else []
            if j == 15:
                while W2.ni < NSL: f += W2.issue_lines()
        k.e(interleave(m, f))
    k.e("STAMP10")
    scatter(4)
    c1 = -2.0*math.sqrt(2.0/math.pi)*math.log2(math.e); c3 = c1*0.044715
    U = BUF
    k.e(f"s_mov_b32 s58, {hex(f2u(c3))}", f"v_mov_b32 v{T[6]}, {hex(f2u(c1))}")
    for i in range(8): k.e(f"v_lshlrev_b32 v{U+2*i}, 16, v{XB+i}", f"v_and_b32 v{U+2*i+1}, s56, v{XB+i}")
    k.e(f"v_mul_u32_u24 v{T[4]}, 640, v{g4}", f"v_add_lshl_u32 v{T[4]}, v{T[4]}, v{l16}, 4", "s_lshr_b32 s60, s64, 3", "s_mul_i32 s60, s60, 640", "s_add_u32 s60, s60, s65", "s_lshl_b32 s61, s14, 4", "s_add_u32 s60, s60, s61",
        "s_lshl_b32 s60, s60, 4", f"s_add_u32 s60, s60, {U8}", f"s_add_u32 s61, s60, {4*640*16}")
    gather(4)
    for p in range(2):
        R = ACC + 8*p; Z = ACC + 20 + 8*p
        for i in range(0, 8, 2): k.e(f"v_pk_add_f32 {v(R+i,2)}, {v(R+i,2)}, {v(U+8*p+i,2)}")
        for i in range(0, 8, 2): k.e(f"v_pk_mul_f32 {v(Z+i,2)}, {v(R+i,2)}, {v(R+i,2)}")
        for i in range(8): k.e(f"v_fma_f32 v{Z+i}, v{Z+i}, s58, v{T[6]}")
        for i in range(0, 8, 2): k.e(f"v_pk_mul_f32 {v(Z+i,2)}, {v(Z+i,2)}, {v(R+i,2)}")
        for i in range(8): k.e(f"v_exp_f32 v{Z+i}, v{Z+i}")
        for i in range(8): k.e(f"v_add_f32 v{Z+i}, 1.0, v{Z+i}")
        for i in range(8): k.e(f"v_rcp_f32 v{Z+i}, v{Z+i}")
        k.e("s_nop 0")
        for i in range(0, 8, 2): k.e(f"v_pk_mul_f32 {v(R+i,2)}, {v(R+i,2)}, {v(Z+i,2)}")
        for i in range(4): k.e(f"v_cvt_pk_bf16_f32 v{ACC+40+4*p+i}, v{R+2*i}, v{R+2*i+1}")
        vm.emit([f"buffer_store_dwordx4 {v(ACC+40+4*p,4)}, v{T[4]}, s[48:51], s{60+p} offen sc1"], "u")
    k.e("STAMP11")
    W2.handle(sch2[0])
    vm.wait("u")
    signal(CNT2, 1280, 70, 71, "sg2", 48)
    k.e("STAMP12")
    k.e(srd(24, 34, 4096), x8addr(vA, 640, 19, U8))
    polladdr(CNT2, 1280, 74, 75, 24)
    k.e("s_lshl_b32 s60, s14, 4", "s_add_u32 s60, s60, s20", "s_lshl_b32 s60, s60, 1", f"v_lshlrev_b32 v{T[2]}, 1, v{l16}")
    vm.emit([f"buffer_load_ushort v{XB}, v{T[2]}, s[24:27], s60 offen"], "b2")
    W2.handle(sch2[1])
    while W2.ni < W2.n: W2.handle(1)
    k.e("STAMP13")
    vm.emit(pl, "poll")
    W2.handle(2)
    pollcheck("p2", pl, [f"v_cmp_eq_u32 vcc, 0, v{T[6]}"])
    k.e("STAMP14")
    NSE = DE+1
    Ef = [[BUF + 20*b + 4*i for i in range(5)] for b in range(NSE)]
    assert 20*NSE <= 120
    def ldE(j):
        b = j % NSE
        return vm.note(stepcode(j, 12, 18) + [f"s_mul_i32 s23, s21, {4*640*16}"] + [f"buffer_load_dwordx4 {v(Ef[b][i],4)}, v{vA}, s[8:11], s23 offen offset:{i*256} sc1" for i in range(5)], ("E", j))
    for j in range(DE): k.e(ldE(j))
    W2.handle(16)
    k.e(srd(24, 36, 2048*640*2), growaddr(GO), "s_waitcnt lgkmcnt(0)")
    for j in range(12):
        b = j % NSE
        vm.wait(("E", j))
        oe = order5 if j == 11 else [(i, c) for i in range(5) for c in (1, 2, 3, 0)]
        m = [f"v_mfma_f32_16x16x32_bf16 {v(acc(i,c),4)}, {v(Ef[b][i],4)}, {a(16*j+4*c,4)}, " + ("0" if j == 0 else v(acc(i,c), 4)) for (i, c) in oe]
        f = ldE(j+DE) if j + DE < 12 else []
        k.e(interleave(m, f))
    k.e("STAMP15")
    scatter(5)
    U = BUF; R = ACC
    k.e(f"v_lshlrev_b32 v{XB}, 16, v{XB}")
    for i in range(10): k.e(f"v_lshlrev_b32 v{U+2*i}, 16, v{HK+i}", f"v_and_b32 v{U+2*i+1}, s56, v{HK+i}")
    for i in range(0, 20, 2): k.e(f"v_pk_add_f32 {v(U+i,2)}, {v(U+i,2)}, {v(XB,2)} op_sel_hi:[1,0]")
    k.e(f"v_lshlrev_b32 v{T[2]}, 4, v0", f"v_add_u32 v{T[2]}, s42, v{T[2]}")
    gather(5)
    for i in range(5):
        for h_ in range(2): k.e(f"v_pk_add_f32 {v(R+4*i+2*h_,2)}, {v(R+4*i+2*h_,2)}, {v(U+4*i+2*h_,2)}")
        k.e(f"v_cvt_pk_bf16_f32 v{R+20+2*i}, v{R+4*i}, v{R+4*i+1}", f"v_cvt_pk_bf16_f32 v{R+21+2*i}, v{R+4*i+2}, v{R+4*i+3}", f"ds_write_b64 v{vI}, {v(R+20+2*i,2)} offset:{32*i}")
    k.e("s_waitcnt lgkmcnt(0)")
    for r in range(3): k.e(f"ds_read_b128 {v(R+40+4*r,4)}, v{T[2]} offset:{1024*r}")
    for r in range(3):
        k.e(f"s_waitcnt lgkmcnt({2-r})")
        if r == 2: k.e("s_mov_b32 exec_hi, 0")
        k.e(f"buffer_store_dwordx4 {v(R+40+4*r,4)}, v{GO[r]}, s[24:27], s57 offen")
    k.label("end"); k.e("s_endpgm")
    return k

def build(out=None, diag=None, **o):
    ks = [k1_qkv(o.get("rot1", True), o.get("sc1", False), o.get("LA", 2)), k2_attn(**o.get("k2", {})), kt_tail(**o.get("kt", {}))]
    if out: open(out, "w").write(assemble_file(ks))
    if diag:
        for b in range(4):
            STAMP_BASE[0] = 4*b
            open(diag if b == 0 else diag.replace(".s", f"_{b}.s"), "w").write(assemble_file(ks, diag=True))
        STAMP_BASE[0] = 0
    return ks
if __name__ == "__main__":
    ks = build("v6.s", "diag.s")
    for k in ks: print(k.name, "vgpr", k.nv, "lds", k.lds, "lines", len(k.lines))
```

```python
def v(i, n=1):
    return f"v{i}" if n == 1 else f"v[{i}:{i+n-1}]"
def a(i, n=1):
    return f"a{i}" if n == 1 else f"a[{i}:{i+n-1}]"
def s(i, n=1):
    return f"s{i}" if n == 1 else f"s[{i}:{i+n-1}]"

STAMP_BASE = [0]
TRACE_OFF = 220<<20
TRACE_STRIDE = 1<<20
DIAG_OFF = 200<<20
DIAG_STRIDE = 1<<19
class Alloc:
    def __init__(self, start=0, limit=256):
        self.p = start; self.limit = limit
    def __call__(self, n=1, align=None):
        if align is None:
            align = 1 if n == 1 else (2 if n < 4 else 4)
        self.p = (self.p + align - 1) // align * align
        r = self.p
        self.p += n
        assert self.p <= self.limit, "out of registers"
        return r

class Kernel:
    def __init__(self, name, grid, block, lds):
        self.name = name; self.grid = grid; self.block = block; self.lds = lds
        self.lines = []
        self.nv = 256; self.ns = 96; self.acc = None
    def e(self, *ls):
        for l in ls:
            if isinstance(l, (list, tuple)):
                self.e(*l)
            else:
                for x in l.split("\n"):
                    x = x.strip()
                    if x: self.lines.append(x)
    def L(self, n):
        return f"L_{self.name[-12:]}_{n}"
    def label(self, n):
        self.lines.append(self.L(n) + ":")
    def text(self, diag=None):
        lines = self.lines
        if diag is not None:
            pre = ["s_memrealtime s[88:89]", "s_memtime s[76:77]", "v_lshrrev_b32 v1, 6, v0", "s_nop 0", "v_readfirstlane_b32 s94, v1", "s_waitcnt lgkmcnt(0)"] + [f"s_mov_b32 s{r}, s88" for r in (80,82,84,86)]
            post = ["s_waitcnt vmcnt(0) lgkmcnt(0)", "s_memrealtime s[90:91]", "s_memtime s[78:79]", "s_load_dwordx2 s[92:93], s[0:1], 80", "s_lshl_b32 s95, s2, 4", "s_add_u32 s95, s95, s94", "s_lshl_b32 s95, s95, 5",
                    f"s_add_u32 s95, s95, {DIAG_OFF + diag*DIAG_STRIDE}", "s_mov_b64 exec, 1", "v_mov_b32 v1, s95", "s_waitcnt lgkmcnt(0)",
                    "v_mov_b32 v4, s88", "v_mov_b32 v5, s90", "v_mov_b32 v6, s80", "v_mov_b32 v7, s82", "v_mov_b32 v8, s84", "v_mov_b32 v9, s86",
                    "global_store_dwordx4 v1, v[4:7], s[92:93]", "s_sub_u32 s78, s78, s76", "v_mov_b32 v10, s78", "v_mov_b32 v11, 0", "global_store_dwordx4 v1, v[8:11], s[92:93] offset:16", "s_endpgm"]
            tv = getattr(self, "trace_v", None)
            if tv is not None:
                pre += ["s_mov_b64 s[98:99], 1", f"v_mov_b32 v{tv}, 0"]
                post = post[:-1] + ["s_mov_b64 exec, -1", "s_lshl_b32 s95, s2, 4", "s_add_u32 s95, s95, s94", "s_lshl_b32 s95, s95, 8", f"s_add_u32 s95, s95, {TRACE_OFF + diag*TRACE_STRIDE}",
                        "v_mbcnt_lo_u32_b32 v1, -1, 0", "v_mbcnt_hi_u32_b32 v1, -1, v1", "v_lshlrev_b32 v1, 2, v1", "v_add_u32 v1, s95, v1", f"global_store_dword v1, v{tv}, s[92:93]", "s_endpgm"]
                self.ns = 102; self.nv = max(self.nv, tv+1)
            nl = list(pre)
            for l in lines:
                if l.startswith("STAMP") and getattr(self, "stamp_trace", False): l = "TRACE"
                if l == "s_endpgm": nl += post
                elif l.startswith("STAMP"):
                    n = int(l[5:]) - STAMP_BASE[0]
                    if 0 <= n < 4: nl.append(f"s_memrealtime s[{80+2*n}:{81+2*n}]")
                elif l == "TRACE2":
                    if tv is not None: nl += ["s_memrealtime s[96:97]", "s_memtime s[74:75]", "s_waitcnt lgkmcnt(0)", "s_mov_b64 s[100:101], exec", "s_mov_b64 exec, s[98:99]", f"v_mov_b32 v{tv}, s96",
                                              "s_lshl_b64 s[98:99], s[98:99], 1", "s_mov_b64 exec, s[98:99]", f"v_mov_b32 v{tv}, s74", "s_mov_b64 exec, s[100:101]", "s_lshl_b64 s[98:99], s[98:99], 1"]
                elif l == "TRACE":
                    if tv is not None: nl += ["s_memrealtime s[96:97]", "s_waitcnt lgkmcnt(0)", "s_mov_b64 s[100:101], exec", "s_mov_b64 exec, s[98:99]", f"v_mov_b32 v{tv}, s96", "s_mov_b64 exec, s[100:101]", "s_lshl_b64 s[98:99], s[98:99], 1"]
                else: nl.append(l)
            lines = nl
        else:
            lines = [l for l in lines if not l.startswith("STAMP") and not l.startswith("TRACE")]
        body = "\n".join((l if l.endswith(":") else "    " + l) for l in lines)
        return f".globl {self.name}\n.p2align 8\n.type {self.name},@function\n{self.name}:\n{body}\n"
    def desc(self):
        nv = self.nv
        acc = self.acc if self.acc is not None else min(256, (nv + 3) // 4 * 4)
        return (f".p2align 6\n.amdhsa_kernel {self.name}\n  .amdhsa_next_free_vgpr {nv}\n  .amdhsa_next_free_sgpr {self.ns}\n"
                f"  .amdhsa_accum_offset {acc}\n  .amdhsa_group_segment_fixed_size 0\n  .amdhsa_kernarg_size 88\n"
                f"  .amdhsa_user_sgpr_count 2\n  .amdhsa_user_sgpr_kernarg_segment_ptr 1\n  .amdhsa_system_sgpr_workgroup_id_x 1\n"
                f".end_amdhsa_kernel\n")

def interleave(main, fill, lead=0):
    out = list(fill[:lead]); fill = fill[lead:]
    n = len(main); m = len(fill); j = 0
    for i, x in enumerate(main):
        out.append(x)
        k = (m * (i + 1) + n - 1) // n
        out.extend(fill[j:k]); j = k
    return out

def srd(d, base, nbytes):
    return [f"s_mov_b32 s{d}, s{base}", f"s_mov_b32 s{d+1}, s{base+1}", f"s_mov_b32 s{d+2}, {hex(nbytes)}", f"s_mov_b32 s{d+3}, 0x00020000"]

HEADER = """; Kernarg layout (88 bytes, ptrs only, base s[0:1]):
"""
def assemble_file(kernels, diag=False):
    t = HEADER
    for k in kernels:
        t += f"; @launch kernel={k.name} grid=({k.grid},1,1) block=({k.block},1,1) lds={k.lds}\n"
    t += '.amdgcn_target "amdgcn-amd-amdhsa--gfx950"\n.text\n'
    for i, k in enumerate(kernels):
        t += k.text(i if diag else None)
    t += '.section .rodata,"a"\n'
    for k in kernels:
        t += k.desc()
    return t
```

```python
from k_v3 import *
import copy
def ren(k, nm):
    k2 = copy.deepcopy(k); old = k.name; k2.name = nm
    k2.lines = [l.replace(f"L_{old}_", f"L_{nm}_") for l in k.lines]; return k2
if __name__ == "__main__":
    ks = [k1_qkv(), ren(k2_attn(pf=True),"k2pf_kernel"), ren(k2_attn(pf=False),"k2a_kernel"), ren(k2_attn(pf=False,spread=True),"k2sp_kernel"), ren(k2_attn(pf=False,k2x4=True),"k2x4_kernel"),
          ren(k2_attn(pf=False,k2x4=True,spread=True),"k2x4sp_kernel"), ren(k2_attn(pf=False,prio=0),"k2p0_kernel"), ren(k2_attn(pf=False,prio=2),"k2p2_kernel"), ren(k2_attn(pf=False,NB=2),"k2nb2_kernel")]
    open("diag_k2.s","w").write(assemble_file(ks, diag=True))
```

```python
from dsl import *
import math, struct
S=2048; D=640; F=1536
VP=648*16
QK8=0; VT8=QK8+161*2048*16; O8=VT8+256*VP; HH=O8+80*2048*16; HN8=HH+2048*1280; U8=HN8+256*640*16
WO8=U8+192*640*16; STATS=WO8+80*640*16; XST=STATS+256*512; CNT1=XST+2048*8; CNT2=CNT1+8*1024; TK2=CNT1+20480; TK3=CNT1+24576; WS_END=CNT1+32768
WS_BYTES=268435456
def f2u(x): return struct.unpack("<I", struct.pack("<f", x))[0]
QSCALE = math.log2(math.e)/math.sqrt(20.0)
def magic(d): return (2**32 + d - 1)//d
def waveid(k, sdst, vtmp):
    k.e(f"v_lshrrev_b32 v{vtmp}, 6, v0", "s_nop 0", f"v_readfirstlane_b32 s{sdst}, v{vtmp}")


def ticket(k, sbase, off, stride_log2, swave, lds_addr, vt):
    k.e(f"s_cmp_lg_u32 s{swave}, 0", f"s_cbranch_scc1 {k.L('tkw')}",
        "s_getreg_b32 s90, hwreg(HW_REG_XCC_ID)", "s_and_b32 s90, s90, 7", "s_lshl_b32 s90, s90, 2", "s_lshr_b32 s91, s2, 6", "s_add_u32 s90, s90, s91",
        "s_mov_b64 exec, 1", f"v_mov_b32 v{vt[1]}, 1", "s_mov_b32 s92, 32")
    k.label("tkl")
    k.e(f"s_lshl_b32 s91, s90, {stride_log2}", f"s_add_u32 s91, s91, {off}", f"v_mov_b32 v{vt[0]}, s91",
        f"global_atomic_add v{vt[2]}, v{vt[0]}, v{vt[1]}, s[{sbase}:{sbase+1}] sc0 sc1", "s_waitcnt vmcnt(0)", f"v_readfirstlane_b32 s91, v{vt[2]}", "s_nop 3",
        "s_cmp_lt_u32 s91, 8", f"s_cbranch_scc1 {k.L('tkd')}", "s_add_u32 s90, s90, 1", "s_and_b32 s90, s90, 31", "s_sub_u32 s92, s92, 1", "s_cmp_lg_u32 s92, 0", f"s_cbranch_scc1 {k.L('tkl')}")
    k.label("tkd")
    k.e("s_and_b32 s91, s91, 7", "s_lshl_b32 s91, s91, 3", "s_and_b32 s92, s90, 3", "s_lshl_b32 s92, s92, 6", "s_or_b32 s91, s91, s92", "s_lshr_b32 s90, s90, 2", "s_or_b32 s91, s91, s90",
        f"v_mov_b32 v{vt[0]}, {lds_addr}", f"v_mov_b32 v{vt[1]}, s91", f"ds_write_b32 v{vt[0]}, v{vt[1]}", "s_mov_b64 exec, -1", "s_waitcnt lgkmcnt(0)")
    k.label("tkw")
    k.e("s_barrier", f"v_mov_b32 v{vt[0]}, {lds_addr}", f"ds_read_b32 v{vt[1]}, v{vt[0]}", "s_waitcnt lgkmcnt(0)", f"v_readfirstlane_b32 s2, v{vt[1]}", "s_nop 3")

def k1_qkv(rot=True, sc1=False, LA=2, pf=0, trace=False, early=False, csv=False):
    k = Kernel("k1_kernel", 256, 512, 131072+1536)
    EX = 131072
    SC = " sc1" if sc1 else ""
    al = Alloc(1)
    T = [al() for _ in range(7)]
    acc = [[al(16) for _ in range(2)] for _ in range(2)]
    cs = al(16)
    xf = [[al(4) for _ in range(2)] for _ in range(4)]
    wf0 = [al(4) for _ in range(4)]
    wf1 = [al(4) for _ in range(4)]
    ones = al(2)
    xa = [al() for _ in range(4)]
    wa = [al() for _ in range(2)]
    ep = al(56)
    k.nv = al.p
    vx = [acc[0][0]+i for i in range(4)]; vw = [acc[0][0]+4+i for i in range(4)]
    k.e("s_load_dwordx4 s[4:7], s[0:1], 0", "s_load_dwordx4 s[48:51], s[0:1], 72", "s_load_dwordx2 s[10:11], s[0:1], 16")
    k.e("s_cmp_ge_u32 s2, 256", f"s_cbranch_scc1 {k.L('end')}")
    waveid(k, 26, T[0])
    k.e("s_and_b32 s36, s2, 7", "s_lshr_b32 s37, s2, 3",
        "s_lshr_b32 s24, s36, 1", "s_lshl_b32 s24, s24, 2", "s_and_b32 s38, s37, 3", "s_add_u32 s24, s24, s38",
        "s_and_b32 s25, s36, 1", "s_lshl_b32 s25, s25, 3", "s_lshr_b32 s39, s37, 2", "s_add_u32 s25, s25, s39",
        "v_and_b32 v0, 63, v0",
        "s_cmp_ge_u32 s25, 15", f"s_cbranch_scc1 {k.L('side')}",
        "s_cmp_lt_u32 s26, 4", f"s_cbranch_scc1 {k.L('cons')}")
    def pfcode(tmp):
        return ["s_and_b32 s58, s26, 1", "s_lshl_b32 s59, s2, 1", "s_add_u32 s59, s59, s58", "s_cmp_lt_u32 s26, 2", "s_cselect_b32 s58, 40, 38", "s_mul_i32 s59, s59, s58", "s_lshl_b32 s59, s59, 7",
                "s_cmp_lt_u32 s26, 2", "s_cselect_b32 s60, s4, s6", "s_cselect_b32 s61, s5, s7", f"s_mov_b32 s62, {640*1920*2}", f"s_cselect_b32 s62, {2048*640*2}, s62", "s_mov_b32 s63, 0x00020000",
                "s_sub_u32 s58, s58, 1", f"v_min_u32 v{tmp}, s58, v0", f"v_lshlrev_b32 v{tmp}, 7, v{tmp}", f"buffer_load_dword v{tmp}, v{tmp}, s[60:63], s59 offen"]
    k.e("s_sub_u32 s26, s26, 4")
    if isinstance(rot, list):
        ng = len(rot)
        k.e("s_add_u32 s55, s38, s39", f"s_and_b32 s55, s55, {ng-1}")
        for g, o in enumerate(rot):
            assert sorted(o) == list(range(10))
            val = sum(x << (4*i) for i, x in enumerate(o))
            if g == 0: k.e(f"s_mov_b32 s56, {hex(val & 0xffffffff)}", f"s_mov_b32 s57, {hex(val >> 32)}")
            else: k.e(f"s_cmp_eq_u32 s55, {g}", f"s_cselect_b32 s56, {hex(val & 0xffffffff)}, s56", f"s_cselect_b32 s57, {hex(val >> 32)}, s57")
    elif rot == "win":
        k.e("s_add_u32 s29, s38, s39", "s_mul_i32 s55, s38, 3", "s_lshr_b32 s55, s55, 1", "s_add_u32 s55, s55, s39", "s_cmp_ge_u32 s55, 6", "s_cselect_b32 s40, 6, 0", "s_sub_u32 s55, s55, s40",
            "s_add_u32 s55, s55, 4", "s_and_b32 s29, s29, 3", "s_mov_b32 s32, 0", "s_mov_b32 s56, 4", "s_mov_b32 s57, 0")
    elif rot: k.e("s_mul_i32 s29, s38, 3", "s_add_u32 s29, s29, s39", "s_cmp_ge_u32 s29, 10", "s_cselect_b32 s40, 10, 0", "s_sub_u32 s29, s29, s40")
    else: k.e("s_mov_b32 s29, 0")
    k.e(f"v_lshrrev_b32 v{T[0]}, 3, v0", f"v_lshrrev_b32 v{T[1]}, 4, v0", f"v_and_b32 v{T[2]}, 7, v0",
        "s_lshl_b32 s40, s24, 7", "s_lshl_b32 s41, s26, 5", "s_add_u32 s40, s40, s41",
        f"v_add_u32 v{T[0]}, s40, v{T[0]}", f"v_mul_u32_u24 v{T[0]}, 1280, v{T[0]}",
        f"v_xor_b32 v{T[3]}, v{T[2]}, v{T[1]}", f"v_lshl_add_u32 v{vx[0]}, v{T[3]}, 4, v{T[0]}",
        f"v_xor_b32 v{T[3]}, 4, v{T[3]}", f"v_lshl_add_u32 v{vx[1]}, v{T[3]}, 4, v{T[0]}",
        f"v_add_u32 v{vx[2]}, {2*(8*1280-1024)}, v{vx[0]}", f"v_add_u32 v{vx[3]}, {3*(8*1280-1024)}, v{vx[1]}", f"v_add_u32 v{vx[1]}, {8*1280-1024}, v{vx[1]}")
    k.e("s_lshl_b32 s40, s26, 4", f"v_add_u32 v{T[0]}, s40, v{T[1]}", f"v_mul_u32_u24 v{T[0]}, 3840, v{T[0]}",
        f"v_bfe_u32 v{T[2]}, v0, 2, 2", f"v_xor_b32 v{T[2]}, v{T[2]}, v{T[1]}", f"v_lshl_add_u32 v{T[0]}, v{T[2]}, 6, v{T[0]}",
        f"v_and_b32 v{T[2]}, 3, v0", f"v_lshl_add_u32 v{T[0]}, v{T[2]}, 4, v{T[0]}", "s_lshl_b32 s40, s25, 8", f"v_add_u32 v{vw[0]}, s40, v{T[0]}")
    for i in range(1, 4):
        k.e(f"v_add_u32 v{vw[i]}, {i*(4*3840-1024)}, v{vw[0]}")
    k.e("s_lshl_b32 s33, s26, 12", "s_waitcnt lgkmcnt(0)")
    k.e(srd(12, 4, 2048*640*2), srd(16, 6, 640*1920*2))
    def dma():
        if isinstance(rot, list):
            r = ["s_and_b32 s29, s56, 15", "s_lshl_b32 s30, s29, 7", "s_mul_i32 s31, s29, 245760", "s_mov_b32 m0, s33", "s_lshr_b64 s[56:57], s[56:57], 4"]
            r += [f"buffer_load_dwordx4 v{vx[i]}, s[12:15], s30 offen offset:{i*1024} lds" for i in range(4)]
            r += ["s_add_u32 m0, s33, 65536", "s_add_u32 s33, s33, 16384"]
            r += [f"buffer_load_dwordx4 v{vw[i]}, s[16:19], s31 offen offset:{i*1024} lds" for i in range(4)]
            return r + ["s_and_b32 s33, s33, 0xffff"]
        r = ["s_lshl_b32 s30, s29, 7", "s_mul_i32 s31, s29, 245760", "s_mov_b32 m0, s33", "s_add_u32 s29, s29, 1"]
        r += [f"buffer_load_dwordx4 v{vx[i]}, s[12:15], s30 offen offset:{i*1024} lds" for i in range(4)]
        r += ["s_add_u32 m0, s33, 65536", "s_cmp_eq_u32 s29, s56" if rot == "win" else "s_cmp_eq_u32 s29, 10"]
        r += [f"buffer_load_dwordx4 v{vw[i]}, s[16:19], s31 offen offset:{i*1024} lds" for i in range(4)]
        r += ["s_cselect_b32 s29, s57, s29" if rot == "win" else "s_cselect_b32 s29, 0, s29", "s_add_u32 s33, s33, 16384", "s_and_b32 s33, s33, 0xffff"]
        if rot == "win": r += ["s_add_u32 s32, s32, 1", "s_cmp_eq_u32 s32, 4", "s_cselect_b32 s29, s55, s29", "s_cselect_b32 s56, 10, s56", "s_cselect_b32 s57, 4, s57"]
        return r
    if early:
        assert LA == 3
        k.e(dma(), dma(), "s_waitcnt vmcnt(8)", "s_barrier", dma(), "s_mov_b32 s34, 7")
    else:
        for _ in range(LA-1): k.e(dma())
        k.e(f"s_mov_b32 s34, {10-LA+1}")
    k.label("hloop")
    if trace: k.trace_v = 250
    k.e(dma(), "TRACE2", f"s_waitcnt vmcnt({8*(LA-1)})", "s_barrier", "s_sub_u32 s34, s34, 1", "s_cmp_lg_u32 s34, 0", f"s_cbranch_scc1 {k.L('hloop')}")
    for i in range(LA-2, -1, -1): k.e(f"s_waitcnt vmcnt({8*i})", "s_barrier")
    k.e("STAMP2", "s_cmp_ge_u32 s26, 2", f"s_cbranch_scc1 {k.L('hfin')}")
    k.e(srd(20, 50, WS_BYTES), srd(44, 48, 256), "s_lshl_b32 s40, s24, 2", "s_mov_b32 s43, 0x40000")
    k.label("hpoll")
    k.e("s_sub_u32 s43, s43, 1", f"s_cbranch_scc1 {k.L('hgo')}", f"buffer_load_dword v{T[0]}, off, s[44:47], s40 sc1", "s_waitcnt vmcnt(0)", f"v_cmp_eq_u32 vcc, 0, v{T[0]}", f"s_cbranch_vccnz {k.L('hpoll')}")
    k.label("hgo")
    k.e("s_lshl_b32 s41, s26, 6", f"v_add_u32 v{T[0]}, s41, v0", f"v_lshlrev_b32 v{T[1]}, 3, v{T[0]}", "s_lshl_b32 s40, s24, 10", f"s_add_u32 s40, s40, {XST}",
        f"buffer_load_dwordx2 {v(acc[1][0],2)}, v{T[1]}, s[20:23], s40 offen sc1",
        "s_cmp_lt_u32 s25, 5", f"s_cselect_b32 s45, {hex(f2u(QSCALE))}, 1.0", f"v_lshlrev_b32 v{T[0]}, 2, v{T[0]}", f"v_add_u32 v{T[0]}, {EX}, v{T[0]}", "s_waitcnt vmcnt(0)",
        f"v_mul_f32 v{acc[1][0]}, s45, v{acc[1][0]}", f"v_mul_f32 v{acc[1][0]+1}, s45, v{acc[1][0]+1}",
        f"ds_write_b32 v{T[0]}, v{acc[1][0]}", f"ds_write_b32 v{T[0]}, v{acc[1][0]+1} offset:512", "s_waitcnt lgkmcnt(0)")
    k.label("hfin")
    k.e("STAMP3", "s_barrier", "s_endpgm")
    k.label("cons")
    if pf == 2: k.e("s_waitcnt lgkmcnt(0)", pfcode(ep+50))
    k.e("s_lshr_b32 s27, s26, 1", "s_and_b32 s28, s26, 1")
    k.e(f"v_and_b32 v{T[0]}, 31, v0", f"v_lshrrev_b32 v{T[1]}, 5, v0", f"v_bfe_u32 v{T[2]}, v0, 1, 3", f"v_xor_b32 v{T[2]}, v{T[2]}, v{T[1]}",
        "s_lshl_b32 s40, s27, 6", f"v_add_u32 v{T[0]}, s40, v{T[0]}", f"v_lshlrev_b32 v{T[0]}, 7, v{T[0]}", f"v_lshl_add_u32 v{xa[0]}, v{T[2]}, 4, v{T[0]}")
    for ks in range(1, 4): k.e(f"v_xor_b32 v{xa[ks]}, {ks*32}, v{xa[0]}")
    k.e(f"v_bfe_u32 v{T[2]}, v0, 2, 2", f"v_lshl_add_u32 v{T[0]}, v{T[1]}, 3, v{T[2]}", f"v_lshlrev_b32 v{T[0]}, 8, v{T[0]}",
        "s_lshl_b32 s40, s28, 1", "s_add_u32 s40, s40, s27", f"v_xor_b32 v{T[2]}, s40, v{T[2]}", f"v_lshl_add_u32 v{T[0]}, v{T[2]}, 6, v{T[0]}",
        f"v_bfe_u32 v{T[2]}, v0, 4, 1", f"v_lshl_add_u32 v{T[0]}, v{T[2]}, 5, v{T[0]}", f"v_add_u32 v{T[0]}, 65536, v{T[0]}",
        f"v_and_b32 v{T[2]}, 3, v0",
        f"v_and_b32 v{T[3]}, 1, v0", f"v_lshlrev_b32 v{T[3]}, 1, v{T[3]}", f"v_bfe_u32 v{T[4]}, v0, 1, 1", f"v_or_b32 v{T[3]}, v{T[3]}, v{T[4]}",
        "s_cmp_ge_u32 s25, 10", "s_cselect_b64 vcc, -1, 0", f"v_cndmask_b32 v{T[2]}, v{T[3]}, v{T[2]}, vcc",
        f"v_lshl_add_u32 v{wa[0]}, v{T[2]}, 3, v{T[0]}", f"v_xor_b32 v{wa[1]}, 64, v{wa[0]}")
    for i in range(2): k.e(f"v_mov_b32 v{ones+i}, 0x3f803f80")
    for r in [acc[0][0]+i for i in range(64)]+[cs+i for i in range(16)]:
        k.e(f"v_mov_b32 v{r}, 0")
    k.e("s_mov_b32 s42, 0xffff0000", "s_mov_b32 s35, 16384", "s_mov_b32 s34, 9", "s_waitcnt lgkmcnt(0)", srd(20, 50, WS_BYTES))
    if pf == 1: k.e(pfcode(ep+50))
    def reads(ks):
        buf = ks
        r = [f"ds_read_b128 {v(xf[buf][0],4)}, v{xa[ks]}"]
        for t in range(2): r.append(f"ds_read_b64_tr_b16 {v(wf0[ks]+2*t,2)}, v{wa[0]} offset:{(16*ks+4*t)*256}")
        for t in range(2): r.append(f"ds_read_b64_tr_b16 {v(wf1[buf]+2*t,2)}, v{wa[1]} offset:{(16*ks+4*t)*256}")
        r.append(f"ds_read_b128 {v(xf[buf][1],4)}, v{xa[ks]} offset:4096")
        return r
    def mf(ks, isv):
        r = []
        for xs in range(2):
            for ws in range(2):
                W = wf0[ks] if ws == 0 else wf1[ks]
                X = xf[ks][xs]
                A, B = (X, W) if isv else (W, X)
                r.append(f"v_mfma_f32_32x32x16_bf16 {v(acc[xs][ws],16)}, {v(A,4)}, {v(B,4)}, {v(acc[xs][ws],16)}")
        return r
    k.e("STAMP0", "s_barrier", "STAMP1")
    k.e(reads(0), reads(1))
    k.e("s_cmp_ge_u32 s25, 10", f"s_cbranch_scc1 {k.L('loopv')}")
    def loop(isv):
        nm = "loopv" if isv else "loopq"
        k.label(nm)
        def csum(ks):
            if not csv: return []
            r = []
            for d in range(4):
                x = wf0[ks]+d
                r += [f"v_and_b32 v{cs+1}, s42, v{x}", f"v_lshlrev_b32 v{cs+2}, 16, v{x}", f"v_add_f32 v{cs}, v{cs}, v{cs+1}", f"v_add_f32 v{cs+4}, v{cs+4}, v{cs+2}"]
            return r
        def m4(kss):
            if csv: return []
            r = []
            for n_, ks in enumerate(kss):
                for t in range(2):
                    c_ = cs + 4*(2*n_+t)
                    r.append(f"v_mfma_f32_4x4x4_16b_bf16 {v(c_,4)}, {v(ones,2)}, {v(wf0[ks]+2*t,2)}, {v(c_,4)}")
            return r
        def kstep(ks, fill, w=6):
            m = mf(ks, isv)
            if csv:
                k.e(f"s_waitcnt lgkmcnt({w})", interleave(m, fill + csum(ks)))
                return
            h = (len(fill)+2)//3
            k.e(f"s_waitcnt lgkmcnt({w})", m[0], fill[:h], m[1], fill[h:2*h], m[2], fill[2*h:], m[3])
        xors = [f"v_xor_b32 v{r}, s35, v{r}" for r in [xa[0], wa[0], wa[1], xa[1], xa[2], xa[3]]] + ["s_xor_b32 s35, s35, 32768", "s_sub_u32 s34, s34, 1"]
        kstep(0, reads(2))
        kstep(1, reads(3) + xors)
        k.e(m4((0, 1)), f"s_cbranch_scc1 {k.L(nm+'x')}", "s_waitcnt lgkmcnt(0)" if early else [], "s_barrier")
        kstep(2, reads(0))
        kstep(3, reads(1))
        k.e(m4((2, 3)), f"s_branch {k.L(nm)}")
        k.label(nm+'x')
        kstep(2, [])
        k.e("s_waitcnt lgkmcnt(0)", m4((2, 3)))
        m = mf(3, isv)
        k.e("STAMP2", m[0], csum(3)[:8], m[1], csum(3)[8:])
        k.e(f"v_and_b32 v{T[0]}, 31, v0", "s_lshl_b32 s40, s28, 6", "s_lshl_b32 s41, s27, 5", "s_add_u32 s44, s40, s41", "s_lshl_b32 s43, s27, 6")
        k.e(f"v_add_f32 v{cs}, v{cs}, v{cs+4}", f"v_add_f32 v{cs+8}, v{cs+8}, v{cs+12}", f"v_add_f32 v{cs}, v{cs}, v{cs+8}")
        k.e(f"v_mov_b32 v{T[3]}, v{cs}", m[2], f"v_add_lshl_u32 v{T[2]}, v{T[0]}, s44, 2", f"v_add_u32 v{T[2]}, {EX}, v{T[2]}", f"v_permlane32_swap_b32 v{cs}, v{T[3]}",
            "s_nop 0", f"v_add_f32 v{cs}, v{cs}, v{T[3]}", f"ds_write_b32 v{T[2]}, v{cs} offset:1024", m[3])
        hf = T[3]
        k.e(f"v_lshrrev_b32 v{hf}, 5, v0")
        if not isv:
            RM = [ep+0, ep+2]; C = [ep+4, ep+20]; out = ep+36
            k.e(f"v_add_lshl_u32 v{T[1]}, v{T[0]}, s43, 2", f"v_add_u32 v{T[1]}, {EX}, v{T[1]}", f"v_add_u32 v{T[4]}, 128, v{T[1]}")
            k.e(f"v_lshlrev_b32 v{T[5]}, 4, v{hf}", "s_lshl_b32 s40, s44, 2", f"s_add_u32 s40, s40, {EX}", f"v_add_u32 v{T[5]}, s40, v{T[5]}", f"v_xor_b32 v{T[6]}, 128, v{T[5]}")
            k.e("s_lshl_b32 s40, s25, 4", "s_lshl_b32 s41, s28, 3", "s_add_u32 s40, s40, s41", f"v_add_u32 v{T[2]}, s40, v{hf}", f"v_lshlrev_b32 v{T[2]}, 11, v{T[2]}",
                "s_lshl_b32 s40, s24, 7", "s_add_u32 s40, s40, s43", f"v_add3_u32 v{T[2]}, v{T[2]}, s40, v{T[0]}", f"v_lshlrev_b32 v{T[2]}, 4, v{T[2]}")
            k.e("s_lshl_b32 s46, s27, 17", "s_waitcnt lgkmcnt(0)", "s_barrier", "STAMP3")
            k.e(f"ds_read2st64_b32 {v(RM[0],2)}, v{T[1]} offset0:0 offset1:2", f"ds_read2st64_b32 {v(RM[1],2)}, v{T[4]} offset0:0 offset1:2")
            for ws in range(2):
                for q in range(4):
                    k.e(f"ds_read_b128 {v(C[ws]+4*q,4)}, v{T[5+ws]} offset:{1024+q*32}")
            n = 0
            for ws in range(2):
                k.e(f"s_waitcnt lgkmcnt({4*(1-ws)})")
                for xs in range(2):
                    A = acc[xs][ws]
                    for p in range(2):
                        o = out + 4*(n % 4); n += 1
                        for j in range(0, 8, 2):
                            r = 8*p+j
                            k.e(f"v_pk_mul_f32 {v(A+r,2)}, {v(A+r,2)}, {v(RM[xs],2)} op_sel_hi:[1,0]",
                                f"v_pk_fma_f32 {v(A+r,2)}, {v(C[ws]+r,2)}, {v(RM[xs],2)}, {v(A+r,2)} op_sel:[0,1,0] op_sel_hi:[1,1,1]")
                        for j in range(4):
                            k.e(f"v_cvt_pk_bf16_f32 v{o+j}, v{A+8*p+2*j}, v{A+8*p+2*j+1}")
                        k.e(f"s_xor_b32 s47, s46, {ws*131072}", f"s_add_u32 s47, s47, {QK8 + p*65536}",
                            f"buffer_store_dwordx4 {v(o,4)}, v{T[2]}, s[20:23], s47 offen offset:{xs*512}{SC}")
        else:
            Cn = ep+0; R = ep+4; M = ep+20; out = ep+36
            k.e(f"v_xor_b32 v{T[4]}, 128, v{T[2]}")
            k.e(f"v_lshlrev_b32 v{T[5]}, 4, v{hf}", "s_lshl_b32 s40, s43, 2", f"s_add_u32 s40, s40, {EX}", f"v_add_u32 v{T[5]}, s40, v{T[5]}")
            k.e("s_lshl_b32 s40, s24, 4", "s_lshl_b32 s41, s27, 3", "s_add_u32 s40, s40, s41", f"v_add_u32 v{T[1]}, s40, v{hf}", f"v_mul_u32_u24 v{T[1]}, 648, v{T[1]}",
                "s_sub_u32 s40, s25, 10", "s_lshl_b32 s40, s40, 7", "s_lshl_b32 s41, s28, 6", "s_add_u32 s40, s40, s41", f"v_add3_u32 v{T[1]}, v{T[1]}, s40, v{T[0]}", f"v_lshlrev_b32 v{T[1]}, 4, v{T[1]}")
            k.e("s_waitcnt lgkmcnt(0)", "s_barrier", "STAMP3")
            k.e(f"ds_read_b32 v{Cn}, v{T[2]} offset:1024", f"ds_read_b32 v{Cn+1}, v{T[4]} offset:1024")
            n = 0
            for xs in range(2):
                for q in range(4):
                    k.e(f"ds_read_b128 {v(R+4*q,4)}, v{T[5]} offset:{xs*128+q*32}", f"ds_read_b128 {v(M+4*q,4)}, v{T[5]} offset:{512+xs*128+q*32}")
                k.e("s_waitcnt lgkmcnt(0)")
                for ws in range(2):
                    A = acc[xs][ws]
                    k.e(f"s_xor_b32 s52, s27, {ws}", "s_lshl_b32 s52, s52, 9")
                    for p in range(2):
                        o = out + 4*(n % 4); n += 1
                        for j in range(0, 8, 2):
                            r = 8*p+j
                            k.e(f"v_pk_mul_f32 {v(A+r,2)}, {v(A+r,2)}, {v(R+r,2)}",
                                f"v_pk_fma_f32 {v(A+r,2)}, {v(M+r,2)}, {v(Cn,2)}, {v(A+r,2)} op_sel:[0,{ws},0] op_sel_hi:[1,{ws},1]")
                        for j in range(4):
                            k.e(f"v_cvt_pk_bf16_f32 v{o+j}, v{A+8*p+2*j}, v{A+8*p+2*j+1}")
                        k.e(f"s_add_u32 s47, s52, {VT8 + p*2*VP + xs*4*VP}", f"buffer_store_dwordx4 {v(o,4)}, v{T[1]}, s[20:23], s47 offen{SC}")
        k.e("s_endpgm")
    loop(False)
    loop(True)
    k.label("side")
    XR = 16
    k.e("v_lshrrev_b32 v1, 3, v0", "v_mul_u32_u24 v1, 1280, v1", "v_and_b32 v2, 7, v0", "v_lshl_add_u32 v1, v2, 4, v1", "v_add_u32 v8, 10240, v1",
        "s_lshl_b32 s54, s24, 3", "s_add_u32 s54, s54, s26", f"s_mul_i32 s27, s54, {16*1280}", "s_waitcnt lgkmcnt(0)", srd(12, 4, 2048*640*2))
    if pf == 99:
        k.e("v_lshlrev_b32 v120, 7, v0", "buffer_load_dword v121, v120, s[12:15], s27 offen", "s_add_u32 s28, s27, 8192", "buffer_load_dword v121, v120, s[12:15], s28 offen",
            "v_min_u32 v120, 31, v0", "v_lshlrev_b32 v120, 7, v120", "s_add_u32 s28, s27, 16384", "buffer_load_dword v121, v120, s[12:15], s28 offen")
    if pf:
        k.e("s_cmp_ge_u32 s26, 4", f"s_cbranch_scc1 {k.L('spf')}", pfcode(122)); k.label("spf")
    for hb in range(2):
        for i in range(10): k.e(f"buffer_load_dwordx4 {v(XR+40*hb+4*i,4)}, v{1 if hb == 0 else 8}, s[12:15], s27 offen offset:{128*i}")
    k.e(srd(20, 50, WS_BYTES), srd(16, 10, 640*640*2), srd(44, 48, 256), "s_mov_b32 s42, 0x3f803f80")
    for r in range(100, 116): k.e(f"v_mov_b32 v{r}, 0")
    for hb in range(2):
        for i in range(10):
            k.e(f"s_waitcnt vmcnt({19-10*hb-i})")
            for d in range(4):
                x = XR+40*hb+4*i+d
                k.e(f"v_dot2c_f32_bf16 v{100+8*hb+2*d}, s42, v{x}", f"v_dot2c_f32_bf16 v{101+8*hb+2*d}, v{x}, v{x}")
    k.e("s_nop 2")
    for hb in range(2):
        b = 100+8*hb
        k.e(f"v_pk_add_f32 {v(b,2)}, {v(b,2)}, {v(b+2,2)}", f"v_pk_add_f32 {v(b+4,2)}, {v(b+4,2)}, {v(b+6,2)}", f"v_pk_add_f32 {v(4+2*hb,2)}, {v(b,2)}, {v(b+4,2)}")
    k.e("s_nop 1")
    for ctl in ("quad_perm:[1,0,3,2]", "quad_perm:[2,3,0,1]", "row_half_mirror"):
        for r in (4, 5, 6, 7): k.e(f"v_add_f32_dpp v{r}, v{r}, v{r} {ctl} row_mask:0xf bank_mask:0xf")
    k.e("v_cmp_eq_u32 vcc, 1, v2", "s_nop 1", "v_cndmask_b32 v4, v4, v6, vcc", "v_cndmask_b32 v5, v5, v7, vcc")
    c = hex(f2u(1.0/640)); e = hex(f2u(1e-5))
    k.e(f"v_mul_f32 v4, {c}, v4", f"v_mul_f32 v5, {c}, v5", "v_fma_f32 v5, -v4, v4, v5", "v_max_f32 v5, 0, v5", f"v_add_f32 v5, {e}, v5", "v_rsq_f32 v6, v5", "v_lshrrev_b32 v9, 3, v0",
        "v_mul_f32 v7, v4, v6", "v_sub_f32 v7, 0, v7", "v_lshl_add_u32 v9, v2, 3, v9", "v_lshlrev_b32 v9, 3, v9",
        "s_lshl_b32 s30, s54, 7", f"s_add_u32 s30, s30, {XST}", "s_mov_b32 s40, 0x03030303", "s_mov_b32 s41, 0x03030303", "s_mov_b64 exec, s[40:41]",
        "buffer_store_dwordx2 v[6:7], v9, s[20:23], s30 offen sc1", "s_mov_b64 exec, -1", "s_waitcnt vmcnt(0)", "s_barrier")
    k.e("s_cmp_lg_u32 s26, 0", f"s_cbranch_scc1 {k.L('nf')}", "s_lshl_b32 s40, s24, 2", "v_mov_b32 v4, 1", "s_mov_b64 exec, 1", "buffer_store_dword v4, off, s[44:47], s40 sc1", "s_mov_b64 exec, -1")
    k.label("nf")
    k.e("STAMP0")
    k.e("v_lshlrev_b32 v3, 4, v0", "v_mov_b32 v4, -1", "v_mov_b32 v5, -1", "v_mov_b32 v6, -1", "v_mov_b32 v7, -1",
        "s_lshl_b32 s30, s54, 10", f"s_add_u32 s30, s30, {STATS}", "buffer_store_dwordx4 v[4:7], v3, s[20:23], s30 offen")
    k.e("v_mov_b32 v12, 0", "v_mov_b32 v13, 0", "v_mov_b32 v14, 0", "v_mov_b32 v15, 0", "s_lshl_b32 s30, s54, 8", f"s_add_u32 s30, s30, {CNT1}", "s_mov_b64 exec, 0xffff",
        "buffer_store_dwordx4 v[12:15], v3, s[20:23], s30 offen", "s_mov_b64 exec, -1", "s_nop 1")
    k.e("v_mov_b32 v12, s42", "v_mov_b32 v13, 0", "v_mov_b32 v14, s42", "v_mov_b32 v15, 0", "s_lshl_b32 s30, s54, 8", f"s_add_u32 s30, s30, {QK8+160*2048*16}", "s_mov_b64 exec, 0xffff",
        "buffer_store_dwordx4 v[12:15], v3, s[20:23], s30 offen",
        "v_mov_b32 v16, s42", "v_mov_b32 v17, s42", "v_mov_b32 v18, s42", "v_mov_b32 v19, s42", f"v_mul_u32_u24 v10, {VP}, v0", f"s_mul_i32 s30, s54, {2*VP}", f"s_add_u32 s30, s30, {VT8+640*16}", "s_mov_b64 exec, 3",
        "buffer_store_dwordx4 v[16:19], v10, s[20:23], s30 offen", "s_mov_b64 exec, -1")
    k.e("s_cmp_ge_u32 s54, 100", f"s_cbranch_scc1 {k.L('end')}")
    k.e(f"s_mul_hi_u32 s22, s54, {magic(10)}".replace("s22", "s52"), "s_mul_i32 s53, s52, 10", "s_sub_u32 s53, s54, s53")
    k.e(f"s_mul_i32 s27, s52, {64*1280}", "s_lshl_b32 s28, s53, 7", "s_add_u32 s27, s27, s28", "s_lshl_b32 s29, s26, 13")
    for u in range(8):
        k.e(f"s_add_u32 m0, s29, {u*1024}", "s_nop 0", "buffer_load_dwordx4 v1, s[16:19], s27 offen lds", "s_add_u32 s27, s27, 10240")
    k.e("v_bfe_u32 v2, v0, 2, 2", "v_lshlrev_b32 v2, 7, v2", "v_lshrrev_b32 v9, 4, v0", "v_lshl_add_u32 v2, v9, 5, v2", "v_and_b32 v9, 3, v0", "v_lshl_add_u32 v2, v9, 3, v2", "v_add_u32 v2, s29, v2")
    k.e(f"s_mul_i32 s30, s52, {8*10240}", "s_lshl_b32 s31, s53, 10", "s_add_u32 s30, s30, s31", f"s_add_u32 s30, s30, {WO8}")
    k.e("s_waitcnt vmcnt(0)")
    for u in range(8):
        for t in range(2):
            k.e(f"ds_read_b64_tr_b16 {v(20+4*u+2*t,2)}, v2 offset:{u*1024+t*512}")
    k.e("s_waitcnt lgkmcnt(0)")
    for u in range(8):
        k.e(f"buffer_store_dwordx4 {v(20+4*u,4)}, v3, s[20:23], s30 offen", "s_add_u32 s30, s30, 10240")
    k.label("end"); k.e("s_endpgm")
    return k

def k2_attn(NB=4, prio=1, pf=True, sc1=False, spread=False, k2x4=False, tokmap=False, l2pf=False, codepf=None):
    k = Kernel("k2_kernel", 256, 512, 73728+64)
    SC = " sc1" if sc1 else ""
    NG = 16//NB
    al = Alloc(1)
    T = [al() for _ in range(7)]
    O = [al(16) for _ in range(4)]
    Sx = [al(16) for _ in range(4)]
    P = al(8)
    Q1 = [al(4) for _ in range(4)]; Q2 = [al(2) for _ in range(4)]
    K1 = [al(4) for _ in range(NB)]; K2 = [al(4 if k2x4 else 2) for _ in range(NB)]
    KW = 4 if k2x4 else 2
    V = [al(8) for _ in range(NB)]
    vK1, vK2, vQ1, vQ2 = al(), al(), al(), al()
    vV = [[al(), al()] for _ in range(NB)]
    MX = [al() for _ in range(4)]
    PF = [al()]
    k.nv = al.p
    OOB = 0x40000000
    k.e("s_load_dwordx2 s[4:5], s[0:1], 80", "s_load_dwordx2 s[56:57], s[0:1], 32", "s_load_dwordx2 s[58:59], s[0:1], 48", "s_cmp_ge_u32 s2, 256", f"s_cbranch_scc1 {k.L('end')}")
    waveid(k, 14, T[0])
    if tokmap: k.e("s_lshr_b32 s12, s2, 3", "s_and_b32 s13, s2, 7")
    else: k.e("s_and_b32 s12, s2, 7", "s_lshl_b32 s12, s12, 2", "s_bfe_u32 s13, s2, 0x20003", "s_add_u32 s12, s12, s13", "s_lshr_b32 s13, s2, 5")
    if prio:
        k.e("s_cmp_lt_u32 s14, 4", f"s_cbranch_scc1 {k.L('np')}", "s_setprio 1"); k.label("np")
    k.e("v_and_b32 v0, 63, v0", "s_and_b32 s15, s14, 1", "s_lshr_b32 s16, s14, 1",
        "s_and_b32 s17, s12, 1", "s_lshr_b32 s18, s12, 1", "s_mul_i32 s18, s18, 5", "s_mul_i32 s19, s17, 3", "s_add_u32 s19, s19, s18")
    l32, hf = T[0], T[1]
    k.e(f"v_and_b32 v{l32}, 31, v0", f"v_lshrrev_b32 v{hf}, 5, v0", "v_cmp_gt_u32 vcc, 32, v0")
    k.e("s_lshl_b32 s31, s13, 8", "s_lshl_b32 s32, s15, 7", "s_add_u32 s31, s31, s32",
        f"v_add_u32 v{T[2]}, s19, v{hf}", f"v_lshl_add_u32 v{T[2]}, v{T[2]}, 11, v{l32}",
        f"v_add_lshl_u32 v{vQ1}, v{T[2]}, s31, 4", f"s_mov_b32 s34, {80*2048}", f"v_add_lshl_u32 v{vK1}, v{T[2]}, s34, 4",
        "s_add_u32 s32, s18, 2", "s_lshl_b32 s32, s32, 15", "s_lshl_b32 s33, s17, 3", "s_add_u32 s32, s32, s33",
        f"v_lshlrev_b32 v{T[3]}, 4, v{l32}",
        "s_lshl_b32 s33, s31, 4", "s_add_u32 s33, s33, s32", f"v_add_u32 v{T[4]}, s33, v{T[3]}", f"v_mov_b32 v{T[5]}, {OOB}", f"v_cndmask_b32 v{vQ2}, v{T[5]}, v{T[4]}, vcc",
        f"s_add_u32 s32, s32, {80*2048*16}", f"v_mov_b32 v{T[4]}, s32", f"v_mov_b32 v{T[6]}, {160*2048*16}", f"v_cndmask_b32 v{T[4]}, v{T[6]}, v{T[4]}, vcc", f"v_add_u32 v{vK2}, v{T[4]}, v{T[3]}")
    for j in range(4):
        k.e(f"s_add_u32 s36, s16, {j}", "s_and_b32 s36, s36, 3", f"s_lshl_b32 s{40+j}, s36, 9")
    k.e("s_waitcnt lgkmcnt(0)", srd(8, 4, WS_BYTES))
    k.e(f"buffer_load_dwordx4 {v(K1[NB-1],4)}, v{vK1}, s[8:11], 0 offen", f"buffer_load_dwordx2 {v(K2[NB-1],2)}, v{vK2}, s[8:11], 0 offen")
    for j in range(4): k.e(f"buffer_load_dwordx4 {v(Q1[j],4)}, v{vQ1}, s[8:11], s{40+j} offen", f"buffer_load_dwordx2 {v(Q2[j],2)}, v{vQ2}, s[8:11], s{40+j} offen")
    k.e(f"v_bfe_u32 v{T[2]}, v0, 2, 1", f"v_lshlrev_b32 v{T[2]}, 3, v{T[2]}", f"v_bfe_u32 v{T[3]}, v0, 3, 1", f"v_lshl_add_u32 v{T[2]}, v{T[3]}, 2, v{T[2]}",
        f"v_and_b32 v{T[3]}, 3, v0", "s_lshl_b32 s35, s17, 2", f"v_add3_u32 v{T[2]}, v{T[2]}, v{T[3]}, s35",
        "s_lshl_b32 s35, s17, 4", f"v_subrev_u32 v{T[3]}, s35, v{l32}",
        f"v_cmp_gt_u32 vcc, 16, v{l32}", f"v_cmp_eq_u32 s[20:21], 20, v{l32}", f"v_cmp_lt_u32 s[22:23], 20, v{l32}", "s_mul_i32 s35, s12, 20", f"v_cndmask_b32 v{T[2]}, v{T[3]}, v{T[2]}, vcc",
        f"v_add_u32 v{T[2]}, s35, v{T[2]}", f"v_mov_b32 v{T[3]}, 640", f"v_cndmask_b32 v{T[2]}, v{T[2]}, v{T[3]}, s[20:21]",
        f"v_mul_u32_u24 v{T[4]}, 648, v{hf}", f"v_add_lshl_u32 v{T[2]}, v{T[2]}, v{T[4]}, 4", f"v_cndmask_b32 v{T[2]}, v{T[2]}, v{T[5]}, s[22:23]")
    def grp():
        return [f"s_and_b32 s20, s20, {NG-1}", "s_add_u32 s23, s20, s37", f"s_mul_i32 s21, s23, {512*NB}", f"s_mul_i32 s22, s23, {4*VP*NB}", "s_add_u32 s20, s20, 1"]
    def burst(b):
        return [f"buffer_load_dwordx4 {v(K1[b],4)}, v{vK1}, s[8:11], s21 offen offset:{512*b}", f"buffer_load_dwordx{KW} {v(K2[b],KW)}, v{vK2}, s[8:11], s21 offen offset:{512*b}",
                f"buffer_load_dwordx4 {v(V[b],4)}, v{vV[b][0]}, s[8:11], s22 offen", f"buffer_load_dwordx4 {v(V[b]+4,4)}, v{vV[b][1]}, s[8:11], s22 offen"]
    qk1 = lambda sb, kb, qt: f"v_mfma_f32_32x32x16_bf16 {v(Sx[sb],16)}, {v(K1[kb],4)}, {v(Q1[qt],4)}, 0"
    qk2 = lambda sb, kb, qt: f"v_mfma_f32_32x32x8_bf16 {v(Sx[sb],16)}, {v(K2[kb],2)}, {v(Q2[qt],2)}, {v(Sx[sb],16)}"
    pv = lambda half, kb, qt: f"v_mfma_f32_32x32x16_bf16 {v(O[qt],16)}, {v(V[kb]+4*half,4)}, {v(P+4*half,4)}, {v(O[qt],16)}"
    def maxtree(sb, dst, first):
        r = []
        s_ = Sx[sb]
        if first:
            r.append(f"v_max3_f32 v{dst}, v{s_}, v{s_+1}, v{s_+2}")
            for i in range(3, 15, 2): r.append(f"v_max3_f32 v{dst}, v{dst}, v{s_+i}, v{s_+i+1}")
            r.append(f"v_max_f32 v{dst}, v{dst}, v{s_+15}")
        else:
            for i in range(0, 16, 2): r.append(f"v_max3_f32 v{dst}, v{dst}, v{s_+i}, v{s_+i+1}")
        return r
    k.e(f"s_mul_i32 s37, s16, {NG}", "s_mov_b32 s20, s13", grp())
    for b in range(NB):
        k.e(f"v_add_u32 v{vV[b][0]}, {VT8 + 4*b*VP}, v{T[2]}", f"v_add_u32 v{vV[b][1]}, {VT8 + (4*b+2)*VP}, v{T[2]}")
        if b < NB-1: k.e(burst(b))
    def zeroO():
        return [f"v_mov_b32 v{P+i}, 0" for i in range(4, 8)] + [f"v_mov_b32 v{V[NB-1]+i}, 0" for i in range(4, 8)] + \
               [f"v_mfma_f32_32x32x16_bf16 {v(O[j],16)}, {v(P+4,4)}, {v(P+4,4)}, 0" for j in range(4)]
    k.e(zeroO())
    k.e("s_mov_b32 s26, 0", "s_mov_b32 s27, -1", "s_mov_b32 s29, 0", "s_mov_b32 s38, 0xffff0000", "s_mov_b32 s39, 0x07060302")
    k.e("STAMP0", f"s_waitcnt vmcnt({4*(NB-1)})", "STAMP1")
    for j in range(4): k.e(qk1(j, NB-1, j), qk2(j, NB-1, j))
    k.e("s_nop 7")
    for j in range(4): k.e(maxtree(j, MX[j], True))
    k.label("setm")
    k.e("s_mov_b64 exec, s[26:27]")
    for j in range(4):
        k.e(f"v_and_b32 v{T[3]}, s38, v{MX[j]}", f"v_sub_f32 v{T[4]}, v{T[3]}, v{MX[j]}", f"v_xor_b32 v{T[3]}, 0x80000000, v{T[3]}", f"v_perm_b32 v{Q2[j]}, v{T[4]}, v{T[3]}, s39")
    k.e("s_mov_b64 exec, -1")
    k.e(f"s_waitcnt vmcnt({4*(NB-2)})", qk1(0, 0, 0), qk2(0, 0, 0), f"s_mov_b32 s28, {NG}")
    if pf:
        k.e("s_lshl_b32 s60, s2, 2", "s_add_u32 s60, s60, s16", f"s_mul_i32 s72, s60, {48*128}", "s_cmp_eq_u32 s15, 0", "s_cselect_b32 s64, s56, s58", "s_cselect_b32 s65, s57, s59",
            f"s_mov_b32 s66, {hex(2048*1536*2)}", "s_mov_b32 s67, 0x00020000",
            f"v_lshlrev_b32 v{T[3]}, 7, v0", f"v_cmp_gt_u32 vcc, {48//NG}, v0", f"v_mov_b32 v{T[4]}, {OOB}", "s_nop 0", f"v_cndmask_b32 v{PF[0]}, v{T[4]}, v{T[3]}, vcc")
    else:
        k.e("s_nop 10")
    k.e("STAMP2", ".p2align 6")
    k.label("loop")
    ex = lambda sb, i: f"v_exp_f32 v{Sx[sb]+i}, v{Sx[sb]+i}"
    cv = lambda sb, i: f"v_cvt_pk_bf16_f32 v{P+i}, v{Sx[sb]+2*i}, v{Sx[sb]+2*i+1}"
    NT = 4*NB
    for n in range(NT):
        kt, qt = n//4, n % 4
        n1 = (n+1) % NT; n0 = (n-1) % NT
        sb = n % 2
        if qt == 3: k.e(f"s_waitcnt vmcnt({4*(NB-2) - (1 if spread else 0) + (1 if pf and kt < NB-1 else 0)})")
        k.e(qk1(1-sb, n1//4, n1 % 4))
        k.e([ex(sb, i) for i in range(0, 4)])
        k.e(pv(1, n0//4, n0 % 4))
        if spread:
            k.e(burst((kt-1) % NB)[qt])
            if kt == 0 and qt == 3: k.e(grp())
        if qt == 0:
            if not spread:
                k.e(burst((kt-1) % NB))
                if kt == 0:
                    k.e(grp())
                    if pf: k.e(f"buffer_load_dword v{T[6]}, v{PF[0]}, s[64:67], s72 offen", f"s_add_u32 s72, s72, {48//NG*128}")
            if prio and kt == NB-prio:
                k.e("s_cmp_lg_u32 s28, 1", f"s_cbranch_scc1 {k.L('kp')}", "s_setprio 0"); k.label("kp")
        k.e(cv(sb, 0), cv(sb, 1))
        k.e([ex(sb, i) for i in range(4, 8)])
        k.e(qk2(1-sb, n1//4, n1 % 4))
        k.e(cv(sb, 2), cv(sb, 3))
        k.e([ex(sb, i) for i in range(8, 12)])
        k.e(pv(0, kt, qt))
        k.e(cv(sb, 4), cv(sb, 5))
        k.e([ex(sb, i) for i in range(12, 16)])
        k.e(cv(sb, 6), cv(sb, 7))
    k.e("s_sub_u32 s28, s28, 1", "s_cmp_lg_u32 s28, 0", f"s_cbranch_scc1 {k.L('loop')}")
    k.e(pv(1, NB-1, 3), "STAMP3")
    if l2pf:
        k.e("s_lshr_b32 s60, s2, 3", "s_lshl_b32 s60, s60, 3", "s_add_u32 s60, s60, s14", f"s_mul_i32 s62, s60, {25*128}", f"s_add_u32 s62, s62, {WO8}",
            f"v_min_u32 v{T[2]}, 24, v0", f"v_lshlrev_b32 v{T[2]}, 7, v{T[2]}", f"buffer_load_dword v{T[6]}, v{T[2]}, s[8:11], s62 offen")
    if codepf:
        k.e("s_getpc_b64 s[60:61]")
        k.label("pcb")
        k.e(f"s_add_u32 s60, s60, {codepf[0]}-{k.L('pcb')}", "s_addc_u32 s61, s61, 0", "s_lshr_b32 s62, s2, 3", "s_lshl_b32 s62, s62, 3", "s_add_u32 s62, s62, s14", "s_lshl_b32 s62, s62, 7",
            f"s_min_u32 s62, s62, {codepf[1]}-{codepf[0]}-4", f"v_mov_b32 v{T[2]}, s62", f"global_load_dword v{T[6]}, v{T[2]}, s[60:61]")
    wa_ = [T[2], T[3], T[4]]
    k.e(f"v_lshlrev_b32 v{T[5]}, 4, v0", "s_lshl_b32 s44, s15, 2")
    for j in range(1, 4):
        k.e(f"s_add_u32 s36, s16, {j}", "s_and_b32 s36, s36, 3", "s_add_u32 s36, s36, s44", "s_mul_i32 s36, s36, 9216", f"s_add_u32 s36, s36, {(j-1)*3072}", f"v_add_u32 v{wa_[j-1]}, s36, v{T[5]}")
        for q in range(3): k.e(f"ds_write_b128 v{wa_[j-1]}, {v(O[j]+4*q,4)} offset:{q*1024}")
    k.e("s_add_u32 s36, s16, s44", "s_mul_i32 s36, s36, 9216", f"v_add_u32 v{T[5]}, s36, v{T[5]}")
    k.e(f"s_mov_b32 s45, {hex(f2u(2.0**64))}")
    for j in range(4):
        k.e(f"v_cmp_nge_f32 s[{46+2*j}:{47+2*j}], s45, v{O[j]+8}")
    k.e("s_lshl_b32 s54, s14, 2", "s_add_u32 s54, s54, 73728", f"v_mov_b32 v{T[2]}, s54",
        "s_or_b32 s47, s47, s49", "s_or_b32 s51, s51, s53", "s_or_b32 s47, s47, s51", "s_cselect_b32 s46, 1, 0",
        f"v_mov_b32 v{T[3]}, s46", f"ds_write_b32 v{T[2]}, v{T[3]}", f"v_mov_b32 v{T[2]}, 73728",
        "s_waitcnt lgkmcnt(0)", "s_barrier")
    FL = Sx[0]
    k.e(f"ds_read_b128 {v(FL,4)}, v{T[2]}", f"ds_read_b128 {v(FL+4,4)}, v{T[2]} offset:16")
    for j in range(1, 4):
        for q in range(3): k.e(f"ds_read_b128 {v(O[j]+4*q,4)}, v{T[5]} offset:{(j-1)*3072+q*1024}")
    k.e("s_waitcnt lgkmcnt(9)", f"v_or3_b32 v{FL}, v{FL}, v{FL+1}, v{FL+2}", f"v_or3_b32 v{FL}, v{FL}, v{FL+3}, v{FL+4}", f"v_or3_b32 v{FL}, v{FL}, v{FL+5}, v{FL+6}", f"v_or_b32 v{FL}, v{FL}, v{FL+7}",
        "s_nop 0", f"v_readfirstlane_b32 s46, v{FL}", "s_nop 3", "s_andn2_b32 s46, s46, s29", f"s_cbranch_scc1 {k.L('redo')}")
    k.e("s_waitcnt lgkmcnt(0)")
    for i in range(0, 12, 2):
        k.e(f"v_pk_add_f32 {v(O[0]+i,2)}, {v(O[0]+i,2)}, {v(O[1]+i,2)}", f"v_pk_add_f32 {v(O[2]+i,2)}, {v(O[2]+i,2)}, {v(O[3]+i,2)}")
    for i in (8, 0, 2, 4, 6, 10):
        k.e(f"v_pk_add_f32 {v(O[0]+i,2)}, {v(O[0]+i,2)}, {v(O[2]+i,2)}")
    k.e(f"v_mov_b32 v{O[1]}, v{O[0]+8}", f"v_mov_b32 v{O[1]+2}, v{O[0]+8}", "s_nop 1", f"v_permlane32_swap_b32 v{O[1]}, v{O[1]+2}", "s_nop 1", f"v_rcp_f32 v{O[1]+2}, v{O[1]+2}", "s_nop 0")
    for i in range(0, 12, 2): k.e(f"v_pk_mul_f32 {v(O[0]+i,2)}, {v(O[0]+i,2)}, {v(O[1]+2,2)} op_sel_hi:[1,0]")
    for i in range(6): k.e(f"v_cvt_pk_bf16_f32 v{P+i}, v{O[0]+2*i}, v{O[0]+2*i+1}")
    k.e(f"s_add_u32 s40, s40, {O8}", f"buffer_store_dwordx4 {v(P,4)}, v{vQ1}, s[8:11], s40 offen{SC}", f"buffer_store_dwordx2 {v(P+4,2)}, v{vQ2}, s[8:11], s40 offen{SC}")
    k.label("end"); k.e("s_endpgm")
    k.label("redo")
    k.e("s_waitcnt vmcnt(0) lgkmcnt(0)", "s_barrier", "s_mov_b32 s29, 1", "s_mov_b64 exec, s[26:27]")
    for j in range(4): k.e(f"v_mov_b32 v{Q2[j]}, 0")
    k.e("s_mov_b64 exec, -1")
    for j in range(4): k.e(f"v_mov_b32 v{MX[j]}, 0xff800000")
    k.e("s_mov_b32 s21, 0")
    k.label("mx")
    k.e(f"buffer_load_dwordx4 {v(K1[NB-1],4)}, v{vK1}, s[8:11], s21 offen", f"buffer_load_dwordx2 {v(K2[NB-1],2)}, v{vK2}, s[8:11], s21 offen", "s_waitcnt vmcnt(0)")
    for j in range(4): k.e(qk1(j, NB-1, j), qk2(j, NB-1, j))
    k.e("s_nop 7")
    for j in range(4): k.e(maxtree(j, MX[j], False))
    k.e("s_add_u32 s21, s21, 512", f"s_cmp_lt_u32 s21, {64*512}", f"s_cbranch_scc1 {k.L('mx')}")
    for j in range(4):
        k.e(f"v_mov_b32 v{T[2]}, v{MX[j]}", "s_nop 1", f"v_permlane32_swap_b32 v{MX[j]}, v{T[2]}", "s_nop 1", f"v_max_f32 v{MX[j]}, v{MX[j]}, v{T[2]}")
    k.e("s_mov_b32 s20, s13", grp())
    for b in range(NB-1): k.e(burst(b))
    k.e(zeroO())
    k.e(f"s_branch {k.L('setm')}")
    return k

class VM:
    def __init__(self, k): self.k = k; self.q = []
    def note(self, lines, tag):
        for l in lines:
            if l.startswith("buffer_"): self.q.append(tag)
        return lines
    def emit(self, lines, tag): self.k.e(self.note(lines, tag))
    def need(self, tag):
        idx = [i for i, t in enumerate(self.q) if t == tag]
        if not idx: return []
        n = len(self.q) - 1 - idx[-1]
        self.q = self.q[idx[-1]+1:]
        assert n <= 63
        return [f"s_waitcnt vmcnt({n})"]
    def wait(self, tag): self.k.e(self.need(tag))

def kt_tail(DC=3, DD=4, DE=4, rot=True, NSL=5, sch1=(2,2,3,4), sch2=(3,4), tk=True):
    PART = 0
    RING = 61440
    IMG = RING + 4*NSL*4096
    k = Kernel("kt_kernel", 256, 256, IMG + 12288)
    vm = VM(k)
    al = Alloc(1)
    T = [al() for _ in range(7)]
    ACC = al(80)
    BUF = al(36*(DC+1))
    vA = al(); vB = [al() for _ in range(4)]
    vW = [al() for _ in range(4)]; vR = [al() for _ in range(4)]
    vPW = [al() for _ in range(3)]; vPR = al(); vI = al()
    HK = BUF + 120
    XB = BUF + 132
    assert XB + 8 <= BUF + 36*(DC+1)
    k.nv = 512; k.acc = 256
    l16, g4 = T[0], T[1]
    acc = lambda i, c: ACC + 4*(5*c+i)
    k.e("s_load_dwordx2 s[4:5], s[0:1], 80", "s_load_dwordx2 s[6:7], s[0:1], 0", "s_load_dwordx8 s[28:35], s[0:1], 32", "s_load_dwordx2 s[36:37], s[0:1], 64",
        "s_cmp_ge_u32 s2, 256", f"s_cbranch_scc1 {k.L('end')}")
    waveid(k, 14, T[0])
    if tk:
        k.e("s_waitcnt lgkmcnt(0)"); ticket(k, 4, TK3, 7, 14, IMG + 12288, T[2:5]); k.lds += 16
    k.e("s_and_b32 s16, s2, 7", "s_lshr_b32 s17, s2, 3", "v_and_b32 v0, 63, v0")
    k.e("s_lshr_b32 s12, s17, 2", "s_lshl_b32 s13, s16, 2", "s_and_b32 s18, s17, 3", "s_add_u32 s13, s13, s18", "s_add_u32 s18, s18, s12")
    k.e("s_mul_i32 s19, s12, 80", "s_lshl_b32 s20, s13, 6")
    k.e(f"v_and_b32 v{l16}, 15, v0", f"v_lshrrev_b32 v{g4}, 4, v0")
    for c in range(4): k.e(f"s_add_u32 s{38+c}, s14, {c}", f"s_and_b32 s{38+c}, s{38+c}, 3")
    def x8addr(vv, R, sb, off):
        return [f"v_mul_u32_u24 v{T[2]}, {R}, v{g4}", f"v_add3_u32 v{T[2]}, v{T[2]}, v{l16}, s{sb}", f"v_lshlrev_b32 v{vv}, 4, v{T[2]}", f"v_add_u32 v{vv}, {off}, v{vv}"]
    def baddr(R, sb, off):
        r = x8addr(T[3], R, sb, off)
        for c in range(4): r += [f"s_lshl_b32 s22, s{38+c}, 8", f"v_add_u32 v{vB[c]}, s22, v{T[3]}"]
        return r
    def stepcode(j, n, srot):
        if not rot or j >= (n & ~3): return [f"s_add_u32 s21, s14, {4*j}"]
        return [f"s_add_u32 s21, s{srot}, {j}", "s_and_b32 s21, s21, 3", "s_lshl_b32 s21, s21, 2", "s_add_u32 s21, s21, s14", f"s_add_u32 s21, s21, {4*(j & ~3)}"]
    def waddr(ld, sb, perm):
        r = [f"v_lshrrev_b32 v{T[2]}, 3, v0", f"v_mul_u32_u24 v{T[2]}, {ld}, v{T[2]}", f"s_lshl_b32 s22, s{sb}, 1", f"v_add_u32 v{T[2]}, s22, v{T[2]}", f"v_and_b32 v{T[3]}, 7, v0"]
        if perm:
            r += [f"v_lshlrev_b32 v{T[4]}, 1, v{g4}", f"v_xor_b32 v{T[3]}, v{T[3]}, v{T[4]}", f"v_lshl_add_u32 v{vW[0]}, v{T[3]}, 4, v{T[2]}"]
            r += [f"v_add_u32 v{vW[i]}, {i*(8*ld-1024)}, v{vW[0]}" for i in range(1, 4)]
        else:
            r += [f"v_bfe_u32 v{T[4]}, v0, 4, 1", f"v_lshlrev_b32 v{T[4]}, 1, v{T[4]}", f"v_xor_b32 v{T[3]}, v{T[3]}, v{T[4]}",
                  f"v_lshl_add_u32 v{vW[0]}, v{T[3]}, 4, v{T[2]}", f"v_xor_b32 v{vW[1]}, 64, v{vW[0]}",
                  f"v_add_u32 v{vW[2]}, {2*(8*ld-1024)}, v{vW[0]}", f"v_add_u32 v{vW[3]}, {3*(8*ld-1024)}, v{vW[1]}", f"v_add_u32 v{vW[1]}, {8*ld-1024}, v{vW[1]}"]
        return r
    def raddr(perm):
        if perm:
            r = [f"v_lshrrev_b32 v{T[2]}, 2, v0", f"v_lshlrev_b32 v{T[3]}, 7, v{T[2]}", f"v_bfe_u32 v{T[2]}, v0, 3, 2", f"v_lshl_add_u32 v{T[3]}, v{T[2]}, 5, v{T[3]}"]
        else:
            r = [f"v_bfe_u32 v{T[2]}, v0, 2, 2", f"v_lshl_add_u32 v{T[3]}, v{g4}, 3, v{T[2]}", f"v_lshlrev_b32 v{T[3]}, 7, v{T[3]}",
                 f"v_bfe_u32 v{T[2]}, v0, 3, 2", f"v_lshl_add_u32 v{T[3]}, v{T[2]}, 5, v{T[3]}"]
        r += [f"v_and_b32 v{T[2]}, 3, v0", f"v_lshl_add_u32 v{T[3]}, v{T[2]}, 3, v{T[3]}"]
        for c in range(4):
            if perm: r += [f"s_lshl_b32 s22, s{38+c}, 5", f"v_xor_b32 v{vR[c]}, s22, v{T[3]}", f"v_add_u32 v{vR[c]}, s15, v{vR[c]}"]
            else: r += [f"v_xor_b32 v{vR[c]}, {32*c}, v{T[3]}", f"v_add_u32 v{vR[c]}, s15, v{vR[c]}"]
        return r
    class WS:
        def __init__(s, name, n, srot, ld, tstep): s.name = name; s.n = n; s.srot = srot; s.ld = ld; s.tstep = tstep; s.ni = 0; s.nd = 0
        def issue_lines(s):
            j = s.ni; s.ni += 1
            return vm.note(stepcode(j, s.n, s.srot) + [f"s_mul_i32 s22, s21, {32*s.ld}", f"s_add_u32 m0, s15, {(j % NSL)*4096}", "s_nop 0"] +
                           [f"buffer_load_dwordx4 v{vW[i]}, s[44:47], s22 offen offset:{i*1024} lds" for i in range(4)], (s.name, j))
        def drain_lines(s):
            j = s.nd; s.nd += 1
            r = vm.need((s.name, j))
            for c in range(4):
                for t in range(2): r.append(f"ds_read_b64_tr_b16 {a(16*j+4*c+2*t,2)}, v{vR[c]} offset:{(j % NSL)*4096+t*s.tstep}")
            return r
        def handle(s, cnt):
            for _ in range(cnt):
                if s.nd >= s.n: return
                k.e(s.drain_lines())
                if s.ni < s.n: k.e("s_waitcnt lgkmcnt(0)", s.issue_lines())
    def scatter(MA):
        k.e("s_nop 3")
        for c in range(1, 4):
            for i in range(MA): k.e(f"ds_write_b128 v{vPW[c-1]}, {v(acc(i,c),4)} offset:{i*1024}")
        k.e("s_waitcnt lgkmcnt(0)", "s_barrier")
        for c in range(1, 4):
            for i in range(MA): k.e(f"ds_read_b128 {v(acc(i,c),4)}, v{vPR} offset:{(c-1)*5120+i*1024}")
    def gather(MA, grouped=True):
        n = 4*MA
        k.e(f"s_waitcnt lgkmcnt({min(15, 2*MA)})")
        for i in range(0, n, 2): k.e(f"v_pk_add_f32 {v(ACC+i,2)}, {v(ACC+i,2)}, {v(ACC+20+i,2)}")
        k.e("s_waitcnt lgkmcnt(0)")
        for i in range(0, n, 2): k.e(f"v_pk_add_f32 {v(ACC+40+i,2)}, {v(ACC+40+i,2)}, {v(ACC+60+i,2)}")
        for i in range(0, n, 2): k.e(f"v_pk_add_f32 {v(ACC+i,2)}, {v(ACC+i,2)}, {v(ACC+40+i,2)}")
    def allred(A):
        k.e("s_nop 1", f"v_permlane32_swap_b32 v{A}, v{A+1}", "s_nop 0", f"v_add_f32 v{A}, v{A}, v{A+1}", f"v_mov_b32 v{A+1}, v{A}", "s_nop 1", f"v_permlane16_swap_b32 v{A}, v{A+1}", "s_nop 0",
            f"v_add_f32 v{A}, v{A}, v{A+1}", f"v_mov_b32 v{A+1}, v{A}", "s_nop 1", f"v_permlane32_swap_b32 v{A}, v{A+1}", "s_nop 0")
    def signal(off, pitch, stile, sidx, name, sr):
        k.e("s_barrier", "s_cmp_lg_u32 s14, 0", f"s_cbranch_scc1 {k.L(name)}")
        k.e(f"s_lshl_b32 s22, s{stile}, 7", f"s_lshl_b32 s23, s{sidx}, 2", "s_add_u32 s22, s22, s23", f"s_add_u32 s22, s22, {off}", f"v_mul_u32_u24 v{T[2]}, {pitch}, v0", f"v_mov_b32 v{T[3]}, 1", "s_mov_b64 exec, 0xff",
            f"buffer_store_dword v{T[3]}, v{T[2]}, s[{sr}:{sr+3}], s22 offen sc1", "s_mov_b64 exec, -1")
        k.label(name)
    def polladdr(off, pitch, slo, shi, nprod):
        k.e(f"v_mov_b32 v{T[2]}, s{slo}", f"v_mov_b32 v{T[3]}, s{shi}", "v_cmp_gt_u32 vcc, 32, v0", f"s_mul_i32 s43, s16, {pitch}", f"s_add_u32 s43, s43, {off}",
            f"v_cndmask_b32 v{T[2]}, v{T[3]}, v{T[2]}, vcc", f"v_and_b32 v{T[3]}, 31, v0", f"v_min_u32 v{T[3]}, {nprod-1}, v{T[3]}", f"v_lshlrev_b32 v{T[3]}, 2, v{T[3]}", f"v_lshl_add_u32 v{T[5]}, v{T[2]}, 7, v{T[3]}")
    def pollcheck(name, ld, bad):
        vm.wait("poll")
        k.e("s_mov_b32 s23, 0x40000")
        k.label(name)
        k.e(bad, f"s_cbranch_vccz {k.L(name+'x')}", "s_sub_u32 s23, s23, 1", f"s_cbranch_scc1 {k.L(name+'x')}", ld, "s_waitcnt vmcnt(0)", f"s_branch {k.L(name)}")
        k.label(name+'x')

    k.e(x8addr(vA, 640, 19, WO8), baddr(2048, 20, O8))
    k.e("s_waitcnt lgkmcnt(0)", srd(8, 4, WS_BYTES))
    NSC = DC+1
    Af = [[BUF + 36*b + 4*i for i in range(5)] for b in range(NSC)]
    Bf = [[BUF + 36*b + 20 + 4*i for i in range(4)] for b in range(NSC)]
    def ldC(j):
        b = j % NSC
        r = stepcode(j, 5, 18) + [f"s_mul_i32 s22, s21, {4*640*16}", f"s_mul_i32 s23, s21, {4*2048*16}"]
        for i in range(5):
            if i < 4: r.append(f"buffer_load_dwordx4 {v(Bf[b][(i+1)%4],4)}, v{vB[(i+1)%4]}, s[8:11], s23 offen")
            r.append(f"buffer_load_dwordx4 {v(Af[b][i],4)}, v{vA}, s[8:11], s22 offen offset:{i*256}")
        return vm.note(r, ("C", j))
    for j in range(DC): k.e(ldC(j))
    k.e(f"s_mul_hi_u32 s52, s17, {magic(5)}", "s_mul_i32 s53, s52, 5", "s_sub_u32 s53, s17, s53",
        "s_and_b32 s54, s16, 1", "s_lshr_b32 s55, s16, 1",
        "s_mul_i32 s70, s54, 5", "s_add_u32 s70, s70, s53", "s_lshl_b32 s65, s70, 6",
        "s_mul_i32 s71, s55, 6", "s_add_u32 s71, s71, s52", "s_lshl_b32 s64, s71, 6", "s_add_u32 s66, s52, s53",
        f"s_mul_hi_u32 s72, s65, {magic(80)}", "s_add_u32 s73, s65, 63", f"s_mul_hi_u32 s73, s73, {magic(80)}",
        "s_lshr_b32 s74, s19, 6", "s_add_u32 s75, s74, 1",
        f"s_mul_i32 s15, s14, {NSL*4096}", f"s_add_u32 s15, s15, {RING}", "s_mul_i32 s42, s14, 3072", f"s_add_u32 s42, s42, {IMG}", "s_mov_b32 s56, 0xffff0000")
    k.e(srd(44, 28, 2048*1536*2), srd(48, 4, WS_BYTES), "s_cmp_ge_u32 s17, 30", "s_cselect_b32 s46, 0, s46", "s_cselect_b32 s50, 0, s50", srd(24, 6, 2048*640*2))
    k.e(waddr(3072, 64, False), raddr(False))
    k.e(f"v_lshlrev_b32 v{T[2]}, 4, v0")
    for c in range(1, 4): k.e(f"s_mul_i32 s22, s{38+c}, 15360", f"s_add_u32 s22, s22, {PART+(c-1)*5120}", f"v_add_u32 v{vPW[c-1]}, s22, v{T[2]}")
    k.e("s_mul_i32 s22, s14, 15360", f"v_add_u32 v{vPR}, s22, v{T[2]}",
        f"v_mul_u32_u24 v{T[2]}, 160, v{l16}", f"v_lshl_add_u32 v{T[2]}, v{g4}, 3, v{T[2]}", f"v_add_u32 v{vI}, s42, v{T[2]}")
    GO = [T[4], T[5], T[6]]
    def growaddr(dst):
        r = [f"s_lshl_b32 s22, s14, 4", "s_add_u32 s22, s22, s20", "s_mul_i32 s22, s22, 1280", "s_lshl_b32 s23, s19, 1", "s_add_u32 s57, s22, s23"]
        for rr in range(3):
            r += [f"v_add_u32 v{T[2]}, {64*rr}, v0", f"v_mul_u32_u24 v{T[3]}, 205, v{T[2]}", f"v_lshrrev_b32 v{T[3]}, 11, v{T[3]}", f"v_mul_u32_u24 v{T[3]}, {1280-160}, v{T[3]}", f"v_lshl_add_u32 v{dst[rr]}, v{T[2]}, 4, v{T[3]}"]
        return r
    k.e(growaddr(GO))
    xl = ["s_mov_b32 m0, s42", "s_nop 0", f"buffer_load_dwordx4 v{GO[0]}, s[24:27], s57 offen lds", "s_add_u32 m0, s42, 1024", "s_nop 0", f"buffer_load_dwordx4 v{GO[1]}, s[24:27], s57 offen lds",
          "s_add_u32 m0, s42, 2048", "s_mov_b32 exec_hi, 0", f"buffer_load_dwordx4 v{GO[2]}, s[24:27], s57 offen lds", "s_mov_b64 exec, -1"]
    W1 = WS("w1", 16, 66, 3072, 512)
    order5 = [(i, c) for c in (1, 2, 3, 0) for i in range(5)]
    order4 = [(i, c) for c in (1, 2, 3, 0) for i in range(4)]
    nx = NSL
    for j in range(5):
        b = j % NSC
        if j == 0: k.e("STAMP0")
        vm.wait(("C", j))
        m = [f"v_mfma_f32_16x16x32_bf16 {v(acc(i,c),4)}, {v(Af[b][i],4)}, {v(Bf[b][c],4)}, " + ("0" if j == 0 else v(acc(i,c), 4)) for (i, c) in order5]
        if j + DC < 5: f = ldC(j+DC)
        elif j + DC == 5:
            k.e(vm.note(xl, "x")); f = W1.issue_lines()
        else:
            f = []
            for _ in range(2):
                if W1.ni < NSL: f += W1.issue_lines()
        k.e(interleave(m, f))
    k.e("STAMP1")
    scatter(5)
    k.e("STAMP2")
    R = ACC; U = BUF; XR = BUF+20
    vm.wait("x")
    for i in range(5): k.e(f"ds_read_b64 {v(XR+2*i,2)}, v{vI} offset:{32*i}")
    k.e("s_lshl_b32 s58, s13, 12", f"s_add_u32 s58, s58, {STATS}", "s_lshl_b32 s59, s14, 7", "s_add_u32 s58, s58, s59", "s_lshl_b32 s59, s12, 9", "s_add_u32 s59, s59, s58",
        f"v_lshlrev_b32 v{T[6]}, 3, v{l16}", f"v_lshl_add_u32 v{T[5]}, v{g4}, 10, v{T[6]}")
    gather(5)
    for i in range(10): k.e(f"v_lshlrev_b32 v{U+2*i}, 16, v{XR+i}", f"v_and_b32 v{U+2*i+1}, s56, v{XR+i}")
    for i in range(0, 20, 2): k.e(f"v_pk_add_f32 {v(R+i,2)}, {v(R+i,2)}, {v(U+i,2)}")
    SS = R+20; QQ = R+22; ST = R+24; G = R+28
    k.e(f"v_pk_add_f32 {v(SS,2)}, {v(R,2)}, {v(R+2,2)}", f"v_pk_mul_f32 {v(QQ,2)}, {v(R,2)}, {v(R,2)}", f"v_pk_fma_f32 {v(QQ,2)}, {v(R+2,2)}, {v(R+2,2)}, {v(QQ,2)}")
    for i in range(4, 20, 2): k.e(f"v_pk_add_f32 {v(SS,2)}, {v(SS,2)}, {v(R+i,2)}", f"v_pk_fma_f32 {v(QQ,2)}, {v(R+i,2)}, {v(R+i,2)}, {v(QQ,2)}")
    k.e(f"v_add_f32 v{ST}, v{SS}, v{SS+1}", f"v_add_f32 v{ST+1}, v{QQ}, v{QQ+1}")
    allred(ST)
    vm.emit([f"v_and_b32 v{ST+1}, 0x7fffffff, v{ST+1}", "s_mov_b64 exec, 0xffff", f"buffer_store_dwordx2 {v(ST,2)}, v{T[6]}, s[8:11], s59 offen sc1", "s_mov_b64 exec, -1"], "st")
    k.e("STAMP3")
    for i in range(10): k.e(f"v_cvt_pk_bf16_f32 v{HK+i}, v{R+2*i}, v{R+2*i+1}")
    W1.handle(sch1[0])
    pl = [f"buffer_load_dwordx2 {v(G,2)}, v{T[5]}, s[8:11], s58 offen sc1", f"buffer_load_dwordx2 {v(G+2,2)}, v{T[5]}, s[8:11], s58 offen offset:512 sc1"]
    vm.emit(pl, "poll")
    k.e("STAMP4")
    W1.handle(sch1[1])
    pollcheck("sp", pl, [f"v_or_b32 v{G+4}, v{G+1}, v{G+3}", f"v_cmp_gt_i32 vcc, 0, v{G+4}"])
    k.e("STAMP5")
    k.e(f"v_pk_add_f32 {v(G,2)}, {v(G,2)}, {v(G+2,2)}")
    allred(G)
    c = hex(f2u(1.0/640)); e = hex(f2u(1e-5))
    k.e(f"v_mul_f32 v{G}, {c}, v{G}", f"v_mul_f32 v{G+1}, {c}, v{G+1}", f"v_fma_f32 v{G+1}, -v{G}, v{G}, v{G+1}", f"v_max_f32 v{G+1}, 0, v{G+1}",
        f"v_add_f32 v{G+2}, {e}, v{G+1}", f"v_rsq_f32 v{G+2}, v{G+2}", "s_nop 0", f"v_mul_f32 v{G+1}, v{G+1}, v{G+2}", f"v_mul_f32 v{G+1}, v{G+1}, v{G+2}",
        f"v_add_f32 v{G+1}, {e}, v{G+1}", f"v_rsq_f32 v{G+1}, v{G+1}", "s_nop 0", f"v_mul_f32 v{G+2}, v{G+1}, v{G+2}", f"v_mul_f32 v{G+3}, v{G}, v{G+2}", f"v_sub_f32 v{G+3}, 0, v{G+3}")
    for i in range(5):
        for h_ in range(2): k.e(f"v_pk_fma_f32 {v(R+4*i+2*h_,2)}, {v(R+4*i+2*h_,2)}, {v(G+2,2)}, {v(G+2,2)} op_sel:[0,0,1] op_sel_hi:[1,0,1]")
        k.e(f"v_cvt_pk_bf16_f32 v{U+2*i}, v{R+4*i}, v{R+4*i+1}", f"v_cvt_pk_bf16_f32 v{U+2*i+1}, v{R+4*i+2}, v{R+4*i+3}", f"ds_write_b64 v{vI}, {v(U+2*i,2)} offset:{32*i}")
    k.e(f"v_bfe_u32 v{T[2]}, v0, 4, 1", f"v_bfe_u32 v{T[6]}, v0, 2, 2", f"v_lshl_add_u32 v{T[6]}, v{T[2]}, 3, v{T[6]}", f"v_mul_u32_u24 v{T[6]}, 160, v{T[6]}",
        f"v_lshrrev_b32 v{T[5]}, 5, v0", f"v_lshl_add_u32 v{T[6]}, v{T[5]}, 5, v{T[6]}", f"v_and_b32 v{T[3]}, 3, v0", f"v_lshl_add_u32 v{T[6]}, v{T[3]}, 3, v{T[6]}", f"v_add_u32 v{T[6]}, s42, v{T[6]}")
    k.e("s_lshr_b32 s60, s20, 3", "s_lshl_b32 s61, s14, 1", "s_add_u32 s60, s60, s61", "s_mul_i32 s60, s60, 640", "s_add_u32 s60, s60, s19", "s_lshl_b32 s60, s60, 4", f"s_add_u32 s60, s60, {HN8}",
        f"v_mul_u32_u24 v{T[2]}, 640, v{T[2]}", f"v_lshl_add_u32 v{T[2]}, v{T[5]}, 4, v{T[2]}", f"v_add_lshl_u32 v{T[2]}, v{T[2]}, v{l16}, 4")
    k.e("s_waitcnt lgkmcnt(0)")
    for r in range(3):
        for t in range(2): k.e(f"ds_read_b64_tr_b16 {v(R+4*r+2*t,2)}, v{T[6]} offset:{64*r+4*t*160}")
    for r in range(3):
        k.e(f"s_waitcnt lgkmcnt({4-2*r})")
        if r == 2: k.e("s_mov_b32 exec_hi, 0")
        vm.emit([f"buffer_store_dwordx4 {v(R+4*r,4)}, v{T[2]}, s[8:11], s60 offen offset:{512*r} sc1"], "hn")
    k.e("s_mov_b64 exec, -1", "STAMP6")
    W1.handle(sch1[2])
    vm.wait("hn")
    signal(CNT1, 1024, 12, 13, "sg1", 8)
    k.e("STAMP7")
    k.e(srd(24, 30, 3072), baddr(640, 65, HN8))
    polladdr(CNT1, 1024, 72, 73, 32)
    k.e(f"v_lshlrev_b32 v{T[2]}, 3, v{g4}", "s_lshl_b32 s61, s64, 1")
    vm.emit([f"buffer_load_dwordx2 {v(XB+2*i,2)}, v{T[2]}, s[24:27], s61 offen offset:{32*i}" for i in range(4)], "b1")
    W1.handle(sch1[3])
    while W1.ni < W1.n: W1.handle(1)
    pl = [f"buffer_load_dword v{T[6]}, v{T[5]}, s[8:11], s43 offen sc1"]
    k.e("STAMP8")
    vm.emit(pl, "poll")
    W1.handle(2)
    k.e("s_cmp_ge_u32 s17, 30", f"s_cbranch_scc1 {k.L('p1x')}")
    q_save = list(vm.q)
    pollcheck("p1", pl, [f"v_cmp_eq_u32 vcc, 0, v{T[6]}"])
    vm.q = q_save
    k.e("STAMP9")
    NSD = DD+1
    Df = [[BUF + 16*b + 4*i for i in range(4)] for b in range(NSD)]
    assert 16*NSD <= 120
    def ldD(j):
        b = j % NSD
        return vm.note(stepcode(j, 16, 66) + [f"s_mul_i32 s23, s21, {4*640*16}"] + [f"buffer_load_dwordx4 {v(Df[b][c],4)}, v{vB[c]}, s[48:51], s23 offen sc1" for c in (1, 2, 3, 0)], ("D", j))
    for j in range(DD): k.e(ldD(j))
    W1.handle(16)
    k.e("s_waitcnt lgkmcnt(0)", srd(44, 32, 2048*1536*2), waddr(4096, 20, True), raddr(True))
    W2 = WS("w2", 12, 18, 4096, 2048)
    for j in range(16):
        b = j % NSD
        vm.wait(("D", j))
        m = [f"v_mfma_f32_16x16x32_bf16 {v(acc(i,c),4)}, {a(16*j+4*i,4)}, {v(Df[b][c],4)}, " + ("0" if j == 0 else v(acc(i,c), 4)) for (i, c) in order4]
        if j + DD < 16: f = ldD(j+DD)
        else:
            f = W2.issue_lines() if W2.ni < NSL else []
            if j == 15:
                while W2.ni < NSL: f += W2.issue_lines()
        k.e(interleave(m, f))
    k.e("STAMP10")
    scatter(4)
    c1 = -2.0*math.sqrt(2.0/math.pi)*math.log2(math.e); c3 = c1*0.044715
    U = BUF
    k.e(f"s_mov_b32 s58, {hex(f2u(c3))}", f"v_mov_b32 v{T[6]}, {hex(f2u(c1))}")
    for i in range(8): k.e(f"v_lshlrev_b32 v{U+2*i}, 16, v{XB+i}", f"v_and_b32 v{U+2*i+1}, s56, v{XB+i}")
    k.e(f"v_mul_u32_u24 v{T[4]}, 640, v{g4}", f"v_add_lshl_u32 v{T[4]}, v{T[4]}, v{l16}, 4", "s_lshr_b32 s60, s64, 3", "s_mul_i32 s60, s60, 640", "s_add_u32 s60, s60, s65", "s_lshl_b32 s61, s14, 4", "s_add_u32 s60, s60, s61",
        "s_lshl_b32 s60, s60, 4", f"s_add_u32 s60, s60, {U8}", f"s_add_u32 s61, s60, {4*640*16}")
    gather(4)
    for p in range(2):
        R = ACC + 8*p; Z = ACC + 20 + 8*p
        for i in range(0, 8, 2): k.e(f"v_pk_add_f32 {v(R+i,2)}, {v(R+i,2)}, {v(U+8*p+i,2)}")
        for i in range(0, 8, 2): k.e(f"v_pk_mul_f32 {v(Z+i,2)}, {v(R+i,2)}, {v(R+i,2)}")
        for i in range(8): k.e(f"v_fma_f32 v{Z+i}, v{Z+i}, s58, v{T[6]}")
        for i in range(0, 8, 2): k.e(f"v_pk_mul_f32 {v(Z+i,2)}, {v(Z+i,2)}, {v(R+i,2)}")
        for i in range(8): k.e(f"v_exp_f32 v{Z+i}, v{Z+i}")
        for i in range(8): k.e(f"v_add_f32 v{Z+i}, 1.0, v{Z+i}")
        for i in range(8): k.e(f"v_rcp_f32 v{Z+i}, v{Z+i}")
        k.e("s_nop 0")
        for i in range(0, 8, 2): k.e(f"v_pk_mul_f32 {v(R+i,2)}, {v(R+i,2)}, {v(Z+i,2)}")
        for i in range(4): k.e(f"v_cvt_pk_bf16_f32 v{ACC+40+4*p+i}, v{R+2*i}, v{R+2*i+1}")
        vm.emit([f"buffer_store_dwordx4 {v(ACC+40+4*p,4)}, v{T[4]}, s[48:51], s{60+p} offen sc1"], "u")
    k.e("STAMP11")
    W2.handle(sch2[0])
    vm.wait("u")
    signal(CNT2, 1280, 70, 71, "sg2", 48)
    k.e("STAMP12")
    k.e(srd(24, 34, 4096), x8addr(vA, 640, 19, U8))
    polladdr(CNT2, 1280, 74, 75, 24)
    k.e("s_lshl_b32 s60, s14, 4", "s_add_u32 s60, s60, s20", "s_lshl_b32 s60, s60, 1", f"v_lshlrev_b32 v{T[2]}, 1, v{l16}")
    vm.emit([f"buffer_load_ushort v{XB}, v{T[2]}, s[24:27], s60 offen"], "b2")
    W2.handle(sch2[1])
    while W2.ni < W2.n: W2.handle(1)
    k.e("STAMP13")
    vm.emit(pl, "poll")
    W2.handle(2)
    pollcheck("p2", pl, [f"v_cmp_eq_u32 vcc, 0, v{T[6]}"])
    k.e("STAMP14")
    NSE = DE+1
    Ef = [[BUF + 20*b + 4*i for i in range(5)] for b in range(NSE)]
    assert 20*NSE <= 120
    def ldE(j):
        b = j % NSE
        return vm.note(stepcode(j, 12, 18) + [f"s_mul_i32 s23, s21, {4*640*16}"] + [f"buffer_load_dwordx4 {v(Ef[b][i],4)}, v{vA}, s[8:11], s23 offen offset:{i*256} sc1" for i in range(5)], ("E", j))
    for j in range(DE): k.e(ldE(j))
    W2.handle(16)
    k.e(srd(24, 36, 2048*640*2), growaddr(GO), "s_waitcnt lgkmcnt(0)")
    for j in range(12):
        b = j % NSE
        vm.wait(("E", j))
        oe = order5 if j == 11 else [(i, c) for i in range(5) for c in (1, 2, 3, 0)]
        m = [f"v_mfma_f32_16x16x32_bf16 {v(acc(i,c),4)}, {v(Ef[b][i],4)}, {a(16*j+4*c,4)}, " + ("0" if j == 0 else v(acc(i,c), 4)) for (i, c) in oe]
        f = ldE(j+DE) if j + DE < 12 else []
        k.e(interleave(m, f))
    k.e("STAMP15")
    scatter(5)
    U = BUF; R = ACC
    k.e(f"v_lshlrev_b32 v{XB}, 16, v{XB}")
    for i in range(10): k.e(f"v_lshlrev_b32 v{U+2*i}, 16, v{HK+i}", f"v_and_b32 v{U+2*i+1}, s56, v{HK+i}")
    for i in range(0, 20, 2): k.e(f"v_pk_add_f32 {v(U+i,2)}, {v(U+i,2)}, {v(XB,2)} op_sel_hi:[1,0]")
    k.e(f"v_lshlrev_b32 v{T[2]}, 4, v0", f"v_add_u32 v{T[2]}, s42, v{T[2]}")
    gather(5)
    for i in range(5):
        for h_ in range(2): k.e(f"v_pk_add_f32 {v(R+4*i+2*h_,2)}, {v(R+4*i+2*h_,2)}, {v(U+4*i+2*h_,2)}")
        k.e(f"v_cvt_pk_bf16_f32 v{R+20+2*i}, v{R+4*i}, v{R+4*i+1}", f"v_cvt_pk_bf16_f32 v{R+21+2*i}, v{R+4*i+2}, v{R+4*i+3}", f"ds_write_b64 v{vI}, {v(R+20+2*i,2)} offset:{32*i}")
    k.e("s_waitcnt lgkmcnt(0)")
    for r in range(3): k.e(f"ds_read_b128 {v(R+40+4*r,4)}, v{T[2]} offset:{1024*r}")
    for r in range(3):
        k.e(f"s_waitcnt lgkmcnt({2-r})")
        if r == 2: k.e("s_mov_b32 exec_hi, 0")
        k.e(f"buffer_store_dwordx4 {v(R+40+4*r,4)}, v{GO[r]}, s[24:27], s57 offen")
    k.label("end"); k.e("s_endpgm")
    return k

def build(out=None, diag=None, **o):
    ks = [k1_qkv(**o.get("k1", {})), k2_attn(**o.get("k2", {})), kt_tail(**o.get("kt", {}))]
    if out: open(out, "w").write(assemble_file(ks))
    if diag:
        for b in range(4):
            STAMP_BASE[0] = 4*b
            open(diag if b == 0 else diag.replace(".s", f"_{b}.s"), "w").write(assemble_file(ks, diag=True))
        STAMP_BASE[0] = 0
    return ks
if __name__ == "__main__":
    ks = build("v6.s", "diag.s")
    for k in ks: print(k.name, "vgpr", k.nv, "lds", k.lds, "lines", len(k.lines))
```

```python
from k_v7 import *
from exp3 import ren
G4 = [[0,4,1,2,8,3,5,6,7,9],[1,5,2,3,9,0,6,7,4,8],[2,6,3,0,1,7,4,5,8,9],[3,7,0,1,2,4,5,6,9,8]]
G2 = [[0,2,1,4,3,6,5,8,7,9],[1,3,0,5,2,7,4,9,6,8]]
H4 = [[0,2,6,1,3,4,5,7,8,9],[1,3,7,0,2,4,5,6,8,9],[0,4,8,1,2,3,5,6,7,9],[1,5,9,0,2,3,4,6,7,8]]
mk = lambda **o: k1_qkv(trace=True, **o)
W = lambda n, ks: open(f"e{n}.s","w").write(assemble_file(ks, diag=True))
W("A", [mk(rot=G4), ren(mk(rot=G4), "k1b_kernel")])
W("B", [mk(rot=G4,csv=True), ren(mk(rot=G4,csv=True), "k1b_kernel")])
W("C", [mk(rot=G2,csv=True)])
W("D", [mk(rot=H4,csv=True)])
W("E", [mk(rot="win",csv=True)])
build("v7.s", None, k1=dict(sc1=True, rot=G4, csv=True), kt=dict(tk=False), k2=dict(l2pf=True))
build("v7n.s", None, k1=dict(sc1=False, rot=G4, csv=True), kt=dict(tk=False), k2=dict(l2pf=True))
```

```python
from dsl import *
import math, struct
S=2048; D=640; F=1536
import os
VP=648*16
QP=int(os.environ.get('QP','2096'))
QK8=0; VT8=QK8+161*QP*16; O8=VT8+272*VP; HN8=O8+80*QP*16; U8=HN8+256*640*16
WO8=U8+192*640*16; STATS=WO8+80*640*16; XST=STATS+256*1024; CSP=XST+2048*64; CNT1=CSP+256*512; CNT2=CNT1+8*1024; CNT0=CNT1+20480; TK2=CNT1+20480; TK3=CNT1+24576; CNTH=CNT1+32768; WS_END=CNT1+65536; O5=O8+64*QP*16
WS_BYTES=268435456
def f2u(x): return struct.unpack("<I", struct.pack("<f", x))[0]
QSCALE = math.log2(math.e)/math.sqrt(20.0)
def magic(d): return (2**32 + d - 1)//d
def waveid(k, sdst, vtmp):
    k.e(f"v_lshrrev_b32 v{vtmp}, 6, v0", "s_nop 0", f"v_readfirstlane_b32 s{sdst}, v{vtmp}")


def ticket(k, sbase, off, stride_log2, swave, lds_addr, vt):
    k.e(f"s_cmp_lg_u32 s{swave}, 0", f"s_cbranch_scc1 {k.L('tkw')}",
        "s_getreg_b32 s90, hwreg(HW_REG_XCC_ID)", "s_and_b32 s90, s90, 7", "s_lshl_b32 s90, s90, 2", "s_lshr_b32 s91, s2, 6", "s_add_u32 s90, s90, s91",
        "s_mov_b64 exec, 1", f"v_mov_b32 v{vt[1]}, 1", "s_mov_b32 s92, 32")
    k.label("tkl")
    k.e(f"s_lshl_b32 s91, s90, {stride_log2}", f"s_add_u32 s91, s91, {off}", f"v_mov_b32 v{vt[0]}, s91",
        f"global_atomic_add v{vt[2]}, v{vt[0]}, v{vt[1]}, s[{sbase}:{sbase+1}] sc0 sc1", "s_waitcnt vmcnt(0)", f"v_readfirstlane_b32 s91, v{vt[2]}", "s_nop 3",
        "s_cmp_lt_u32 s91, 8", f"s_cbranch_scc1 {k.L('tkd')}", "s_add_u32 s90, s90, 1", "s_and_b32 s90, s90, 31", "s_sub_u32 s92, s92, 1", "s_cmp_lg_u32 s92, 0", f"s_cbranch_scc1 {k.L('tkl')}")
    k.label("tkd")
    k.e("s_and_b32 s91, s91, 7", "s_lshl_b32 s91, s91, 3", "s_and_b32 s92, s90, 3", "s_lshl_b32 s92, s92, 6", "s_or_b32 s91, s91, s92", "s_lshr_b32 s90, s90, 2", "s_or_b32 s91, s91, s90",
        f"v_mov_b32 v{vt[0]}, {lds_addr}", f"v_mov_b32 v{vt[1]}, s91", f"ds_write_b32 v{vt[0]}, v{vt[1]}", "s_mov_b64 exec, -1", "s_waitcnt lgkmcnt(0)")
    k.label("tkw")
    k.e("s_barrier", f"v_mov_b32 v{vt[0]}, {lds_addr}", f"ds_read_b32 v{vt[1]}, v{vt[0]}", "s_waitcnt lgkmcnt(0)", f"v_readfirstlane_b32 s2, v{vt[1]}", "s_nop 3")

class VM:
    def __init__(self, k): self.k = k; self.q = []
    def note(self, lines, tag):
        for l in lines:
            if l.startswith("buffer_"): self.q.append(tag)
        return lines
    def emit(self, lines, tag): self.k.e(self.note(lines, tag))
    def need(self, tag):
        idx = [i for i, t in enumerate(self.q) if t == tag]
        if not idx: return []
        n = len(self.q) - 1 - idx[-1]
        self.q = self.q[idx[-1]+1:]
        assert n <= 63
        return [f"s_waitcnt vmcnt({n})"]
    def wait(self, tag): self.k.e(self.need(tag))

def kf(order=None, wfl='', g0=0, g1=0, g2=63, blk='W Q e0 e1 e2 e3 B L c0 c1 e4 e5 e6 e7 R c2 c3 e8 e9 e10 e11 A S c4 c5 e12 e13 e14 e15 c6 c7', per=16, quiet=0, nper=None, NBX=0, chunk=False, pfpar=None, xoff=None, late1st=1, n1=8, s1w1=(0,50), s1w2=(50,100), l2w1=None, l2w2=None, cg=4, nE=0, nA=4, w0=70, wlast=110, s0n=3, mlast=108, drate=8, pp=(0,0,4), dq=2, cpf=16, pe=3, nofill=False, dpos=1, stp=0, dcs=True, stc=0, ip=1, fp=8, st4=False, pre0=2, kvsc=False, osc='', spread=True, tokmap=False, DD=14, DE=14, bD=7, bE=4, DCC=8, rot=True, s0=(2,2), wc=(12,15,18), s1=(3,1), w2n=2, ask1=2, s2=(3,), wpre=4, late1=2, late2=2, slp=0, pfl=16, krot=False):
    NB = 4; NG = 8
    PART = 0; RING = 86016; IMG = 151552; FLG = IMG + 2560
    k = Kernel(KNAME, 256, 256, 163840)
    KS = " sc1" if kvsc else ""; OSC = osc
    k.nv = 512; k.acc = 256
    OOB = 0x40000000
    R1 = 16//l2w1[0] if l2w1 else 1; R2 = 12//l2w2[0] if l2w2 else 1
    pa = Alloc(210, 255)
    XB = pa(8, 2); XB2 = pa(2)
    vW = [pa() for _ in range(4)]; vR = [pa() for _ in range(4)]; vPW = [pa() for _ in range(3)]
    vPR, vI, vL, vL2, vA, vC0, vC1, vSW, vSR, vTR, vHN, vUS = [pa() for _ in range(12)]
    vB = [pa() for _ in range(4)]; GO = [pa() for _ in range(3)]
    l16, g4 = pa(), pa()
    al = Alloc(1, 210)
    T = [al() for _ in range(7)]
    O = [al(16) for _ in range(4)]
    Sx = [al(16) for _ in range(2)]
    P = al(8)
    Q1 = [al(4) for _ in range(4)]; Q2 = [al(2) for _ in range(4)]
    K1 = [al(4) for _ in range(NB)]; K2 = [al(2) for _ in range(NB)]
    V = [al(8) for _ in range(NB)]
    vK1, vK2, vQ1, vQ2, PF, vWO = [al() for _ in range(6)]
    vV = [[al(), al()] for _ in range(NB)]
    MX = [al() for _ in range(4)]
    ACC = 8; BUF = 88; HK = BUF + 100
    acc = lambda i, c: ACC + 4*(5*c+i)

    def x8addr(vv, R, sb, off):
        return [f"v_mul_u32_u24 v{T[2]}, {R}, v{g4}", f"v_add3_u32 v{T[2]}, v{T[2]}, v{l16}, s{sb}", f"v_lshlrev_b32 v{vv}, 4, v{T[2]}", f"v_add_u32 v{vv}, {off}, v{vv}"]
    def stepcode(j, n, srot):
        if not rot or j >= (n & ~3): return [f"s_add_u32 s21, s14, {4*j}"]
        return [f"s_add_u32 s21, s{srot}, {4*j}", "s_and_b32 s21, s21, 15", f"s_add_u32 s21, s21, {4*(j & ~3)}"]
    def waddr(ld, sb, perm):
        r = [f"v_lshrrev_b32 v{T[2]}, 3, v0", f"v_mul_u32_u24 v{T[2]}, {ld}, v{T[2]}", f"s_lshl_b32 s22, s{sb}, 1", f"v_add_u32 v{T[2]}, s22, v{T[2]}", f"v_and_b32 v{T[3]}, 7, v0"]
        if perm:
            r += [f"v_lshlrev_b32 v{T[4]}, 1, v{g4}", f"v_xor_b32 v{T[3]}, v{T[3]}, v{T[4]}", f"v_lshl_add_u32 v{vW[0]}, v{T[3]}, 4, v{T[2]}"]
            r += [f"v_add_u32 v{vW[i]}, {i*(8*ld-1024)}, v{vW[0]}" for i in range(1, 4)]
        else:
            r += [f"v_bfe_u32 v{T[4]}, v0, 4, 1", f"v_lshlrev_b32 v{T[4]}, 1, v{T[4]}", f"v_xor_b32 v{T[3]}, v{T[3]}, v{T[4]}",
                  f"v_lshl_add_u32 v{vW[0]}, v{T[3]}, 4, v{T[2]}", f"v_xor_b32 v{vW[1]}, 64, v{vW[0]}",
                  f"v_add_u32 v{vW[2]}, {2*(8*ld-1024)}, v{vW[0]}", f"v_add_u32 v{vW[3]}, {3*(8*ld-1024)}, v{vW[1]}", f"v_add_u32 v{vW[1]}, {8*ld-1024}, v{vW[1]}"]
        return r
    def raddr(perm):
        if perm:
            r = [f"v_lshrrev_b32 v{T[2]}, 2, v0", f"v_lshlrev_b32 v{T[3]}, 7, v{T[2]}", f"v_bfe_u32 v{T[2]}, v0, 3, 2", f"v_lshl_add_u32 v{T[3]}, v{T[2]}, 5, v{T[3]}"]
        else:
            r = [f"v_bfe_u32 v{T[2]}, v0, 2, 2", f"v_lshl_add_u32 v{T[3]}, v{g4}, 3, v{T[2]}", f"v_lshlrev_b32 v{T[3]}, 7, v{T[3]}",
                 f"v_bfe_u32 v{T[2]}, v0, 3, 2", f"v_lshl_add_u32 v{T[3]}, v{T[2]}, 5, v{T[3]}"]
        r += [f"v_and_b32 v{T[2]}, 3, v0", f"v_lshl_add_u32 v{T[3]}, v{T[2]}, 3, v{T[3]}"]
        for c in range(4):
            if perm: r += [f"s_lshl_b32 s22, s{38+c}, 5", f"v_xor_b32 v{vR[c]}, s22, v{T[3]}", f"v_add_u32 v{vR[c]}, s15, v{vR[c]}"]
            else: r += [f"v_xor_b32 v{vR[c]}, {32*c}, v{T[3]}", f"v_add_u32 v{vR[c]}, s15, v{vR[c]}"]
        return r

    EX = IMG
    aa = Alloc(8, 168)
    accA = [[aa(16) for _ in range(2)] for _ in range(2)]
    cs = aa(16)
    xf = [[aa(4) for _ in range(2)] for _ in range(4)]
    wf0 = [aa(4) for _ in range(4)]; wf1 = [aa(4) for _ in range(4)]
    ones = aa(2)
    xa = [aa() for _ in range(4)]; wa = [aa() for _ in range(2)]
    vx = [aa() for _ in range(4)]; vw = [aa() for _ in range(4)]
    ep = xf[0][0]
    SV = 168; FV = 170; RS_ = 176
    statld = [f"buffer_load_dwordx4 {v(RS_+4*i,4)}, v{RS_+12+i//2}, s[44:47], s43 offen offset:{512*i}" for i in range(3)]
    assert vK1 >= 192
    k.label("code0")
    k.e("s_load_dwordx2 s[6:7], s[0:1], 0", "s_load_dwordx2 s[48:49], s[0:1], 8", "s_load_dwordx2 s[4:5], s[0:1], 80", "s_load_dwordx8 s[28:35], s[0:1], 32", "s_load_dwordx2 s[36:37], s[0:1], 64", "s_load_dwordx2 s[52:53], s[0:1], 72",
        "s_cmp_ge_u32 s2, 256", f"s_cbranch_scc1 {k.L('end')}")
    if cpf:
        k.e("s_getpc_b64 s[92:93]")
        k.label("pc")
        k.e("s_lshr_b32 s17, s2, 3", f"v_lshlrev_b32 v{T[1]}, 5, v0", f"v_add_lshl_u32 v{T[1]}, v{T[1]}, s17, 7", f"v_min_u32 v{T[1]}, {k.L('codeend')}-{k.L('pc')}-4, v{T[1]}",
            f"v_cmp_gt_u32 vcc, {cpf}, v0", "s_and_saveexec_b64 s[22:23], vcc", f"s_cbranch_execz {k.L('ncp')}", f"global_load_dword v191, v{T[1]}, s[92:93]")
        k.label("ncp"); k.e("s_mov_b64 exec, s[22:23]")
    waveid(k, 14, T[0])
    k.e("s_and_b32 s16, s2, 7", "s_lshr_b32 s17, s2, 3",
        "s_and_b32 s21, s17, 3", "s_and_b32 s22, s16, 1", "s_lshl_b32 s79, s22, 3", "s_lshr_b32 s23, s17, 2", "s_add_u32 s79, s79, s23",
        "s_lshl_b32 s22, s22, 1", "s_and_b32 s24, s17, 1", "s_add_u32 s22, s22, s24", "s_cmp_ge_u32 s17, 28", "s_cselect_b32 s21, s22, s21", "s_cselect_b32 s79, 7, s79",
        "s_lshr_b32 s78, s16, 1", "s_lshl_b32 s78, s78, 2", "s_add_u32 s78, s78, s21", "v_and_b32 v0, 63, v0",
        "s_cmp_ge_u32 s17, 30", "s_cselect_b32 s24, 15, s79", "s_lshl_b32 s91, s78, 4", "s_add_u32 s91, s91, s24", "s_lshl_b32 s91, s91, 2", "s_add_u32 s91, s91, s14",
        "s_mul_i32 s43, s91, 2560", f"v_lshrrev_b32 v{T[0]}, 5, v0", f"v_mul_u32_u24 v{T[0]}, {1280-512}, v{T[0]}", f"v_lshl_add_u32 v{RS_+12}, v0, 4, v{T[0]}",
        f"v_bfe_u32 v{T[0]}, v0, 4, 1", f"v_lshl_add_u32 v{RS_+13}, v{T[0]}, 30, v{RS_+12}",
        "s_cmp_ge_u32 s17, 30", f"s_cbranch_scc1 {k.L('side1')}")
    k.e("s_mov_b32 s3, 0", "s_add_u32 s21, s21, s23", f"s_and_b32 s21, s21, {len(order)-1}", "s_mov_b32 s81, s21")
    if xoff:
        order = [[(x + of) % 10 for x in o_] for of in xoff[1] for o_ in order]
        k.e(xoff[0], "s_lshl_b32 s22, s22, 2", "s_add_u32 s21, s21, s22")
    for g, o_ in enumerate(order):
        val = sum(x << (4*i) for i, x in enumerate(list(o_) + [15, 15, 15]))
        if g == 0: k.e(f"s_mov_b32 s82, {hex(val & 0xffffffff)}", f"s_mov_b32 s83, {hex(val >> 32)}")
        else: k.e(f"s_cmp_eq_u32 s21, {g}", f"s_cselect_b32 s82, {hex(val & 0xffffffff)}, s82", f"s_cselect_b32 s83, {hex(val >> 32)}, s83")
    k.e(f"v_lshrrev_b32 v{T[0]}, 3, v0", f"v_lshrrev_b32 v{T[1]}, 4, v0", f"v_and_b32 v{T[2]}, 7, v0",
        "s_lshl_b32 s21, s78, 7", "s_lshl_b32 s22, s14, 5", "s_add_u32 s21, s21, s22",
        f"v_add_u32 v{T[0]}, s21, v{T[0]}", f"v_mul_u32_u24 v{T[0]}, 1280, v{T[0]}",
        f"v_xor_b32 v{T[3]}, v{T[2]}, v{T[1]}", f"v_lshl_add_u32 v{vx[0]}, v{T[3]}, 4, v{T[0]}",
        f"v_xor_b32 v{T[3]}, 4, v{T[3]}", f"v_lshl_add_u32 v{vx[1]}, v{T[3]}, 4, v{T[0]}",
        f"v_add_u32 v{vx[2]}, {2*(8*1280-1024)}, v{vx[0]}", f"v_add_u32 v{vx[3]}, {3*(8*1280-1024)}, v{vx[1]}", f"v_add_u32 v{vx[1]}, {8*1280-1024}, v{vx[1]}")
    k.e("s_lshl_b32 s21, s14, 4", f"v_add_u32 v{T[0]}, s21, v{T[1]}", f"v_mul_u32_u24 v{T[0]}, 3840, v{T[0]}",
        f"v_bfe_u32 v{T[2]}, v0, 2, 2", f"v_xor_b32 v{T[2]}, v{T[2]}, v{T[1]}", f"v_lshl_add_u32 v{T[0]}, v{T[2]}, 6, v{T[0]}",
        f"v_and_b32 v{T[2]}, 3, v0", f"v_lshl_add_u32 v{T[0]}, v{T[2]}, 4, v{T[0]}", "s_lshl_b32 s21, s79, 8", f"v_add_u32 v{vw[0]}, s21, v{T[0]}")
    for i in range(1, 4): k.e(f"v_add_u32 v{vw[i]}, {i*(4*3840-1024)}, v{vw[0]}")
    va = VM(k)
    def dmax(p):
        return [f"s_bfe_u32 s21, s{82 + p//8}, {hex(0x40000 + 4*(p % 8))}", f"s_add_u32 m0, s86, {(p % 4)*16384}", "s_lshl_b32 s84, s21, 7", "s_mul_i32 s85, s21, 245760"], \
               [f"buffer_load_dwordx4 v{vx[i]}, s[44:47], s84 offen offset:{i*1024} lds" for i in range(4)]
    def dmaw(p):
        return [f"s_add_u32 m0, s86, {65536 + (p % 4)*16384}"], [f"buffer_load_dwordx4 v{vw[i]}, s[48:51], s85 offen offset:{i*1024} lds" for i in range(4)]
    def whole(f, p):
        a_, b_ = f(p); va.emit(a_ + ["s_nop 0"] + b_, p)
    k.e("s_lshl_b32 s86, s14, 12", "s_waitcnt lgkmcnt(0)", srd(44, 6, 2048*640*2), f"s_mov_b32 s50, {640*1920*2}", "s_mov_b32 s51, 0x00020000")
    whole(dmax, 0); whole(dmaw, 0)
    if stp == 0: va.emit(statld, "stat")
    k.label("par")
    k.e(srd(8, 4, WS_BYTES), "s_mov_b32 s54, 256", "s_mov_b32 s55, 0x00020000")
    k.e(f"v_and_b32 v{l16}, 15, v0", f"v_lshrrev_b32 v{g4}, 4, v0", f"v_lshlrev_b32 v{vL}, 4, v0", "s_lshr_b32 s12, s17, 2",
        "s_lshl_b32 s13, s16, 2", "s_and_b32 s18, s17, 3", "s_add_u32 s13, s13, s18", "s_add_u32 s18, s18, s12", "s_lshl_b32 s18, s18, 2", "s_add_u32 s18, s18, s14",
        "s_mul_i32 s19, s12, 80", "s_lshl_b32 s20, s13, 6", "s_lshl_b32 s63, s14, 4", "s_add_u32 s63, s63, s20",
        "s_mul_i32 s57, s63, 1280", "s_lshl_b32 s74, s19, 1", "s_add_u32 s57, s57, s74",
        f"s_mul_hi_u32 s74, s17, {magic(5)}", "s_mul_i32 s75, s74, 5", "s_sub_u32 s75, s17, s75",
        "s_and_b32 s70, s16, 1", "s_mul_i32 s70, s70, 5", "s_add_u32 s70, s70, s75", "s_lshl_b32 s65, s70, 6",
        "s_lshr_b32 s64, s16, 1", "s_mul_i32 s64, s64, 6", "s_add_u32 s64, s64, s74", "s_lshl_b32 s64, s64, 6",
        "s_add_u32 s66, s74, s75", "s_lshl_b32 s66, s66, 2", "s_add_u32 s66, s66, s14",
        "s_lshl_b32 s15, s14, 12", f"s_add_u32 s15, s15, {RING}", "s_mul_i32 s42, s14, 3072", f"s_add_u32 s42, s42, {IMG}")
    biasld = srd(24, 30, 3072) + ["s_lshl_b32 s23, s64, 1", f"v_lshlrev_b32 v{T[2]}, 3, v{g4}"] + \
        [f"buffer_load_dwordx2 {v(XB+2*i,2)}, v{T[2]}, s[24:27], s23 offen offset:{32*i}" for i in range(4)] + \
        srd(24, 34, 4096) + [f"v_lshlrev_b32 v{T[2]}, 1, v{l16}", "s_lshl_b32 s23, s63, 1", f"buffer_load_ushort v{XB2}, v{T[2]}, s[24:27], s23 offen"]
    l32, hf = T[0], T[1]
    vO1 = pa()
    k.e("s_and_b32 s61, s14, 1", "s_lshr_b32 s62, s14, 1", f"v_and_b32 v{l32}, 31, v0", f"v_lshrrev_b32 v{hf}, 5, v0")
    k.e("EARLY")
    k.e("s_cmp_eq_u32 s3, 1", f"s_cbranch_scc1 {k.L('side2')}")
    k.e(f"v_bfe_u32 v{T[2]}, v0, 1, 3", f"v_xor_b32 v{T[2]}, v{T[2]}, v{hf}",
        "s_lshl_b32 s21, s62, 6", f"v_add_u32 v{T[3]}, s21, v{l32}", f"v_lshlrev_b32 v{T[3]}, 7, v{T[3]}", f"v_lshl_add_u32 v{xa[0]}, v{T[2]}, 4, v{T[3]}")
    for ks in range(1, 4): k.e(f"v_xor_b32 v{xa[ks]}, {ks*32}, v{xa[0]}")
    k.e(f"v_bfe_u32 v{T[2]}, v0, 2, 2", f"v_lshl_add_u32 v{T[5]}, v{hf}, 3, v{T[2]}", f"v_lshlrev_b32 v{T[5]}, 8, v{T[5]}",
        "s_lshl_b32 s21, s61, 1", "s_add_u32 s21, s21, s62", f"v_xor_b32 v{T[2]}, s21, v{T[2]}", f"v_lshl_add_u32 v{T[5]}, v{T[2]}, 6, v{T[5]}",
        f"v_bfe_u32 v{T[2]}, v0, 4, 1", f"v_lshl_add_u32 v{T[5]}, v{T[2]}, 5, v{T[5]}", f"v_add_u32 v{T[5]}, 65536, v{T[5]}",
        f"v_and_b32 v{T[2]}, 3, v0",
        f"v_and_b32 v{T[3]}, 1, v0", f"v_lshlrev_b32 v{T[3]}, 1, v{T[3]}", f"v_bfe_u32 v{T[4]}, v0, 1, 1", f"v_or_b32 v{T[3]}, v{T[3]}, v{T[4]}",
        "s_cmp_ge_u32 s79, 10", "s_cselect_b64 vcc, -1, 0", f"v_cndmask_b32 v{T[2]}, v{T[3]}, v{T[2]}, vcc",
        f"v_lshl_add_u32 v{wa[0]}, v{T[2]}, 3, v{T[5]}", f"v_xor_b32 v{wa[1]}, 64, v{wa[0]}")
    z4 = xf[3][0]
    k.e([f"v_mov_b32 v{z4+i}, 0" for i in range(4)], "s_cmp_lt_u32 s81, 2" if dcs else "s_cmp_eq_u32 s81, s81", "s_cselect_b32 s21, 0x3f803f80, 0", f"v_mov_b32 v{ones}, s21", f"v_mov_b32 v{ones+1}, s21")
    if dcs:
        assert sorted(order[0][:3] + order[1][:3] + order[2][1:3] + order[3][1:3]) == list(range(10)) and not xoff
        k.e("s_lshr_b32 s21, s78, 2", "s_lshl_b32 s21, s21, 4", "s_add_u32 s21, s21, s79", "s_lshl_b32 s21, s21, 11", f"s_add_u32 s87, s21, {CSP}", "s_and_b32 s21, s78, 3", "s_lshl_b32 s21, s21, 9", "s_add_u32 s90, s87, s21",
            "s_lshl_b32 s21, s61, 6", "s_lshl_b32 s22, s62, 5", "s_add_u32 s21, s21, s22", f"v_add_lshl_u32 v{FV+1}, v{l32}, s21, 2", f"v_lshl_add_u32 v{FV+1}, v{hf}, 9, v{FV+1}")
    for r_ in (accA[0][0], accA[0][1], accA[1][0], accA[1][1], cs): k.e(f"v_mfma_f32_32x32x16_bf16 {v(r_,16)}, {v(z4,4)}, {v(z4,4)}, 0")
    k.e("s_lshl_b32 s21, s14, 5", f"v_add_u32 v{T[2]}, s21, v{l32}", f"v_lshlrev_b32 v{FV+2}, 6, v{T[2]}", f"v_lshlrev_b32 v{FV+3}, 2, v{T[2]}", f"v_add_u32 v{FV+3}, {EX}, v{FV+3}",
        "s_lshl_b32 s80, s78, 13", f"s_add_u32 s80, s80, {XST+8}")
    def reads(p, ks):
        sl = (p % 4)*16384
        r = [f"ds_read_b128 {v(xf[ks][0],4)}, v{xa[ks]} offset:{sl}"]
        for t in range(2): r.append(f"ds_read_b64_tr_b16 {v(wf0[ks]+2*t,2)}, v{wa[0]} offset:{sl+(16*ks+4*t)*256}")
        for t in range(2): r.append(f"ds_read_b64_tr_b16 {v(wf1[ks]+2*t,2)}, v{wa[1]} offset:{sl+(16*ks+4*t)*256}")
        r.append(f"ds_read_b128 {v(xf[ks][1],4)}, v{xa[ks]} offset:{sl+4096}")
        return r
    def mf(ks, isv):
        r = []
        for xs in range(2):
            for ws in range(2):
                W = wf0[ks] if ws == 0 else wf1[ks]
                A, B = (xf[ks][xs], W) if isv else (W, xf[ks][xs])
                r.append(f"v_mfma_f32_32x32x16_bf16 {v(accA[xs][ws],16)}, {v(A,4)}, {v(B,4)}, {v(accA[xs][ws],16)}")
        return r
    def m4(kss, p=0):
        if dcs and p > 2: return []
        return [f"v_mfma_f32_4x4x4_16b_bf16 {v(cs+4*(2*n_+t),4)}, {v(ones,2)}, {v(wf0[ks]+2*t,2)}, {v(cs+4*(2*n_+t),4)}" for n_, ks in enumerate(kss) for t in range(2)]
    WR = [84, 85, 86, 90]
    def wrot(srot, ld):
        r = []
        for q in range(4): r += ([f"s_add_u32 s23, s{srot}, {4*q}", "s_and_b32 s23, s23, 15"] if rot else [f"s_add_u32 s23, s14, {4*q}"]) + [f"s_mul_i32 s{WR[q]}, s23, {32*ld}"]
        return r
    def early(j):
        if j >= nE: return [], []
        return [f"s_add_u32 m0, s15, {[1, 2, 3, 0][j]*16384}"], [f"buffer_load_dwordx4 v{vW[i]}, s[48:51], s{WR[j]} offen offset:{i*1024} lds" for i in range(4)]
    flagld = f"buffer_load_dword v{FV}, off, s[52:55], 0 sc1"
    statst = ["s_mov_b32 exec_lo, 15", "s_mov_b32 exec_hi, 15", f"buffer_store_dwordx4 {v(RS_,4)}, v{RS_+4}, s[8:11], s91 offen sc1", "s_mov_b64 exec, -1"]
    svld = [f"buffer_load_dwordx2 {v(SV,2)}, v{FV+2}, s[8:11], s80 offen sc1"]
    svbad = [f"v_cmp_eq_u32 vcc, -1, v{SV}"]
    if dcs:
        svld += [f"buffer_load_dword v{cs+4}, v{FV+1}, s[8:11], s87 offen sc1", f"buffer_load_dword v{cs+5}, v{FV+1}, s[8:11], s87 offen offset:1024 sc1"]
        svbad = [f"v_max3_u32 v{cs+6}, v{SV}, v{cs+4}, v{cs+5}", f"v_cmp_eq_u32 vcc, -1, v{cs+6}"]
    k.e("STAMP0")
    if late1st < 2: whole(dmax, 1)
    if late1st < 1: whole(dmaw, 1)
    if stp == 1: va.emit(statld, "stat")
    q0 = list(va.q)
    k.e("s_cmp_ge_u32 s79, 10", f"s_cbranch_scc1 {k.L('loopv')}")
    def loopA(isv):
        nm = "loopv" if isv else "loopq"
        k.label(nm)
        va.q = list(q0)
        va.wait(0)
        k.e("s_barrier", "STAMP0", reads(0, 0), reads(0, 1))
        if late1st >= 2: whole(dmax, 1)
        if late1st >= 1: whole(dmaw, 1)
        if stp == 2: va.emit(statld, "stat")
        whole(dmax, 2)
        def kstep(ks, rd, pre, dm, tag, mid=(), w=6, mtag=None):
            m = mf(ks, isv)
            d0, d1 = (dm[:1], dm[1:]) if dpos else ([], dm)
            va.note(pre, tag); va.note(d0, tag); va.note(list(mid), mtag); va.note(d1, tag)
            k.e(f"s_waitcnt lgkmcnt({w})", m[0], rd[0:2], pre[:2], m[1], rd[2:4], pre[2:], d0, m[2], rd[4:6], list(mid), m[3], d1)
        for p in range(10):
            pw, dw = dmaw(p+2) if p+2 < 10 else ([], [])
            px, dx = dmax(p+3) if p+3 < 10 else ([], [])
            if p == 9:
                kstep(0, reads(p, 2), biasld[6:9], [biasld[9]] + early(0)[1][2:], "bias")
                kstep(1, reads(p, 3), biasld[10:16] + early(1)[0], [biasld[16]] + early(1)[1][:2], "bias", mid=m4((0, 1), p))
                break
            if p == 8 and nE:
                su = ["s_mov_b32 s48, s28", "s_mov_b32 s49, s29", f"s_mov_b32 s50, {2048*1536*2}"] + wrot(66, 3072)
                kstep(0, reads(p, 2), su[:5], [], None, mid=su[5:9]); kstep(1, reads(p, 3), su[9:], [], None, mid=m4((0, 1), p))
            else:
                x0 = [f"v_mov_b32 v{ones}, 0x3f803f80", f"v_mov_b32 v{ones+1}, 0x3f803f80"] if p == 1 else []
                if dcs and p == 3: x0 = [f"v_add_f32 v{cs}, v{cs}, v{cs+4}", f"v_add_f32 v{cs+8}, v{cs+8}, v{cs+12}", f"v_add_f32 v{cs}, v{cs}, v{cs+8}", f"v_mov_b32 v{cs+1}, v{cs}"]
                kstep(0, reads(p, 2), pw, dw[:2], p+2, mid=x0)
                x1 = [f"v_permlane32_swap_b32 v{cs}, v{cs+1}", "s_nop 0", f"v_add_f32 v{cs}, v{cs}, v{cs+1}", f"v_min_u32 v{cs}, -2, v{cs}"] if dcs and p == 3 else []
                kstep(1, reads(p, 3), x1, dw[2:], p+2, mid=m4((0, 1), p))
                if dcs and p == 3: va.emit(["s_mov_b32 exec_hi, 0", f"buffer_store_dword v{cs}, v{FV+1}, s[8:11], s90 offen sc1", "s_mov_b64 exec, -1"], "cs")
            if p == 9: break
            if p == stc:
                va.wait("stat"); k.e(f"s_call_b64 s[92:93], {k.L('sub')}")
            if p == ip+1: va.wait("flag")
            va.wait(p+1)
            k.e("s_barrier")
            ex, et = ([flagld], "flag") if p == ip else ((svld, "sv") if p == fp else ([], None))
            kstep(2, reads(p+1, 0), px, dx[:2], p+3, mid=ex, mtag=et)
            if p == ip+1:
                va.emit([f"v_cmp_gt_u32 vcc, 16, v{FV}", f"s_cbranch_vccz {k.L(nm+'i')}", f"s_call_b64 s[92:93], {k.L('spin')}", k.L(nm+'i') + ":"] + statst, "st")
            if p == 8: kstep(3, reads(p+1, 1), early(0)[0] + biasld[:6], early(0)[1][:2], "e", mid=m4((2, 3), p))
            else: kstep(3, reads(p+1, 1), [], dx[2:], p+3, mid=m4((2, 3), p))
        kstep(2, [], early(1)[1][2:] + early(2)[0] + ["s_nop 0"], early(2)[1], "e")
        k.e("s_waitcnt lgkmcnt(0)", m4((2, 3), 9))
        m = mf(3, isv)
        k.e(m[0], "s_cmp_lt_u32 s79, 5", f"s_cselect_b32 s21, {hex(f2u(QSCALE))}, 1.0", va.need("sv"), svbad, f"s_cbranch_vccz {k.L(nm+'j')}", f"s_call_b64 s[92:93], {k.L('spin2')}", k.L(nm+'j') + ":", f"v_mul_f32 v{SV}, s21, v{SV}", f"v_mul_f32 v{SV+1}, s21, v{SV+1}", m[1],
            f"ds_write_b32 v{FV+3}, v{SV}", f"ds_write_b32 v{FV+3}, v{SV+1} offset:512")
        k.e("s_lshl_b32 s21, s61, 6", "s_lshl_b32 s22, s62, 5", "s_add_u32 s24, s21, s22", "s_lshl_b32 s23, s62, 6")
        if dcs: k.e(f"v_add_f32 v{cs}, v{cs+4}, v{cs+5}")
        else: k.e(f"v_add_f32 v{cs}, v{cs}, v{cs+4}", f"v_add_f32 v{cs+8}, v{cs+8}, v{cs+12}", f"v_add_f32 v{cs}, v{cs}, v{cs+8}")
        k.e(f"v_mov_b32 v{T[3]}, v{cs}", m[2], f"v_add_lshl_u32 v{T[2]}, v{l32}, s24, 2", f"v_add_u32 v{T[2]}, {EX}, v{T[2]}", f"v_permlane32_swap_b32 v{cs}, v{T[3]}",
            "s_nop 0", f"v_add_f32 v{cs}, v{cs}, v{T[3]}", f"ds_write_b32 v{T[2]}, v{cs} offset:1024", m[3])
        if not isv:
            RM = [ep+0, ep+2]; C = [ep+4, ep+20]; out = ep+36
            k.e(f"v_add_lshl_u32 v{T[3]}, v{l32}, s23, 2", f"v_add_u32 v{T[3]}, {EX}, v{T[3]}", f"v_add_u32 v{T[4]}, 128, v{T[3]}")
            k.e(f"v_lshlrev_b32 v{T[5]}, 4, v{hf}", "s_lshl_b32 s21, s24, 2", f"s_add_u32 s21, s21, {EX}", f"v_add_u32 v{T[5]}, s21, v{T[5]}", f"v_xor_b32 v{T[6]}, 128, v{T[5]}")
            k.e("s_lshl_b32 s21, s79, 4", "s_lshl_b32 s22, s61, 3", "s_add_u32 s21, s21, s22", f"v_add_u32 v{T[2]}, s21, v{hf}", f"v_mul_u32_u24 v{T[2]}, {QP}, v{T[2]}",
                "s_lshl_b32 s21, s78, 7", "s_add_u32 s21, s21, s23", f"v_add3_u32 v{T[2]}, v{T[2]}, s21, v{l32}", f"v_lshlrev_b32 v{T[2]}, 4, v{T[2]}")
            k.e(f"s_mul_i32 s43, s62, {64*QP}", f"s_sub_u32 s22, {64*QP}, s43", "s_waitcnt lgkmcnt(0)", "s_barrier", "STAMP0")
            k.e(f"ds_read2st64_b32 {v(RM[0],2)}, v{T[3]} offset0:0 offset1:2", f"ds_read2st64_b32 {v(RM[1],2)}, v{T[4]} offset0:0 offset1:2")
            for ws in range(2):
                for q in range(4): k.e(f"ds_read_b128 {v(C[ws]+4*q,4)}, v{T[5+ws]} offset:{1024+q*32}")
            n = 0
            for ws in range(2):
                k.e(f"s_waitcnt lgkmcnt({4*(1-ws)})")
                for xs in range(2):
                    A = accA[xs][ws]
                    for p in range(2):
                        o = out + 4*(n % 4); n += 1
                        for j in range(0, 8, 2):
                            r = 8*p+j
                            k.e(f"v_pk_mul_f32 {v(A+r,2)}, {v(A+r,2)}, {v(RM[xs],2)} op_sel_hi:[1,0]",
                                f"v_pk_fma_f32 {v(A+r,2)}, {v(C[ws]+r,2)}, {v(RM[xs],2)}, {v(A+r,2)} op_sel:[0,1,0] op_sel_hi:[1,1,1]")
                        for j in range(4): k.e(f"v_cvt_pk_bf16_f32 v{o+j}, v{A+8*p+2*j}, v{A+8*p+2*j+1}")
                        k.e(f"s_add_u32 s21, s{22 if ws else 43}, {QK8 + p*32*QP}",
                            f"buffer_store_dwordx4 {v(o,4)}, v{T[2]}, s[8:11], s21 offen offset:{xs*512} sc1")
            k.e(f"s_branch {k.L('adone')}")
        else:
            Cn = ep+0; R = ep+4; M = ep+20; out = ep+36
            k.e(f"v_xor_b32 v{T[4]}, 128, v{T[2]}")
            k.e(f"v_lshlrev_b32 v{T[5]}, 4, v{hf}", "s_lshl_b32 s21, s23, 2", f"s_add_u32 s21, s21, {EX}", f"v_add_u32 v{T[5]}, s21, v{T[5]}")
            k.e("s_lshl_b32 s21, s78, 4", "s_lshl_b32 s22, s62, 3", "s_add_u32 s21, s21, s22", f"v_add_u32 v{T[3]}, s21, v{hf}", f"v_mul_u32_u24 v{T[3]}, 648, v{T[3]}",
                "s_sub_u32 s21, s79, 10", "s_lshl_b32 s21, s21, 7", "s_lshl_b32 s22, s61, 6", "s_add_u32 s21, s21, s22", f"v_add3_u32 v{T[3]}, v{T[3]}, s21, v{l32}", f"v_lshlrev_b32 v{T[3]}, 4, v{T[3]}")
            k.e("s_waitcnt lgkmcnt(0)", "s_barrier", "STAMP0")
            k.e(f"ds_read_b32 v{Cn}, v{T[2]} offset:1024", f"ds_read_b32 v{Cn+1}, v{T[4]} offset:1024")
            n = 0
            for xs in range(2):
                for q in range(4): k.e(f"ds_read_b128 {v(R+4*q,4)}, v{T[5]} offset:{xs*128+q*32}", f"ds_read_b128 {v(M+4*q,4)}, v{T[5]} offset:{512+xs*128+q*32}")
                k.e("s_waitcnt lgkmcnt(0)")
                for ws in range(2):
                    A = accA[xs][ws]
                    k.e(f"s_xor_b32 s22, s62, {ws}", "s_lshl_b32 s22, s22, 9")
                    for p in range(2):
                        o = out + 4*(n % 4); n += 1
                        for j in range(0, 8, 2):
                            r = 8*p+j
                            k.e(f"v_pk_mul_f32 {v(A+r,2)}, {v(A+r,2)}, {v(R+r,2)}",
                                f"v_pk_fma_f32 {v(A+r,2)}, {v(M+r,2)}, {v(Cn,2)}, {v(A+r,2)} op_sel:[0,{ws},0] op_sel_hi:[1,{ws},1]")
                        for j in range(4): k.e(f"v_cvt_pk_bf16_f32 v{o+j}, v{A+8*p+2*j}, v{A+8*p+2*j+1}")
                        k.e(f"s_add_u32 s21, s22, {VT8 + p*2*VP + xs*4*VP}", f"buffer_store_dwordx4 {v(o,4)}, v{T[3]}, s[8:11], s21 offen sc1")
    loopA(False)
    k.label("sub")
    c = hex(f2u(1.0/640)); e = hex(f2u(1e-5))
    k.e("s_mov_b32 s24, 0x3f803f80", [f"v_mov_b32 v{T[2+i]}, 0" for i in range(4)])
    for d in range(12): k.e(f"v_dot2c_f32_bf16 v{T[2+2*(d%2)]}, s24, v{RS_+d}", f"v_dot2c_f32_bf16 v{T[3+2*(d%2)]}, v{RS_+d}, v{RS_+d}")
    k.e("s_nop 2", f"v_add_f32 v{RS_}, v{T[2]}, v{T[4]}", f"v_add_f32 v{RS_+1}, v{T[3]}, v{T[5]}", "s_nop 0")
    for ctl in ("quad_perm:[1,0,3,2]", "quad_perm:[2,3,0,1]", "row_half_mirror", "row_mirror"):
        k.e(f"v_add_f32_dpp v{RS_}, v{RS_}, v{RS_} {ctl} row_mask:0xf bank_mask:0xf", f"v_add_f32_dpp v{RS_+1}, v{RS_+1}, v{RS_+1} {ctl} row_mask:0xf bank_mask:0xf", "s_nop 0")
    k.e(f"v_mov_b32 v{RS_+2}, v{RS_}", f"v_mov_b32 v{RS_+3}, v{RS_+1}", "s_nop 0", f"v_permlane16_swap_b32 v{RS_}, v{RS_+2}", f"v_permlane16_swap_b32 v{RS_+1}, v{RS_+3}", "s_nop 0",
        f"v_add_f32 v{RS_}, v{RS_}, v{RS_+2}", f"v_add_f32 v{RS_+1}, v{RS_+1}, v{RS_+3}",
        f"v_mul_f32 v{RS_}, {c}, v{RS_}", f"v_mul_f32 v{RS_+1}, {c}, v{RS_+1}", f"v_fma_f32 v{RS_+1}, -v{RS_}, v{RS_}, v{RS_+1}", f"v_max_f32 v{RS_+1}, 0, v{RS_+1}", f"v_add_f32 v{RS_+1}, {e}, v{RS_+1}",
        f"v_rsq_f32 v{RS_+2}, v{RS_+1}", f"v_and_b32 v{T[2]}, 3, v0", f"v_mul_f32 v{RS_+3}, v{RS_}, v{RS_+2}", f"v_sub_f32 v{RS_+3}, 0, v{RS_+3}",
        f"v_lshlrev_b32 v{T[2]}, 4, v{T[2]}", f"v_lshl_add_u32 v{RS_+4}, v{hf}, 6, v{T[2]}", f"v_min_u32 v{RS_+2}, -2, v{RS_+2}",
        "s_lshl_b32 s91, s91, 7", f"s_add_u32 s91, s91, {XST}")
    k.e("s_setpc_b64 s[92:93]")
    for nm_, ld_, bad_ in (("spin", flagld, f"v_cmp_gt_u32 vcc, 16, v{FV}"), ("spin2", svld, svbad)):
        k.label(nm_)
        k.e("s_mov_b32 s23, 0x200000")
        k.label(nm_+"h")
        k.e("s_sleep 8" if nm_ == "spin" else [], ld_, "s_sub_u32 s23, s23, 1", "s_waitcnt vmcnt(0)", f"s_cbranch_scc1 {k.L(nm_+'i')}", bad_, f"s_cbranch_vccnz {k.L(nm_+'h')}")
        k.label(nm_+"i")
        k.e("s_setpc_b64 s[92:93]")
    loopA(True)
    k.label("adone")
    k.e(early(3)[0], "s_nop 0", early(3)[1])
    k.e(f"s_mul_hi_u32 s23, s79, {magic(5)}", "s_mul_i32 s21, s23, 5", "s_sub_u32 s21, s79, s21", "s_lshl_b32 s21, s21, 7", "s_add_u32 s22, s21, 127",
        f"s_mul_hi_u32 s21, s21, {magic(20)}", f"s_mul_hi_u32 s22, s22, {magic(20)}", "s_sub_u32 s22, s22, s21", "s_add_u32 s22, s22, 1")
    k.label("asig")
    k.e("s_mov_b32 s3, 0")
    def kvstart(): return ["s_lshl_b32 s21, s62, 14", f"s_mul_i32 s22, s62, {128*VP}"]
    def zeroO():
        return [f"v_mov_b32 v{P+i}, 0" for i in range(4, 8)] + [f"v_mov_b32 v{V[NB-1]+i}, 0" for i in range(4, 8)] + \
               [f"v_mfma_f32_32x32x16_bf16 {v(O[j],16)}, {v(P+4,4)}, {v(P+4,4)}, 0" for j in range(4)]
    NBT = NB + NBX
    def rK1(b): return v(K1[b], 4) if b < NB else a(176 + 16*(b-NB), 4)
    def rK2(b): return v(K2[b], 2) if b < NB else a(180 + 16*(b-NB), 2)
    def rV(b, h_): return v(V[b]+4*h_, 4) if b < NB else a(184 + 16*(b-NB) + 4*h_, 4)
    def burstx(tile):
        b = tile % NBT; g_ = tile % 4
        return [f"buffer_load_dwordx4 {rK1(b)}, v{vK1}, s[8:11], s21 offen offset:{512*g_}{KS}", f"buffer_load_dwordx2 {rK2(b)}, v{vK2}, s[8:11], s21 offen offset:{512*g_}{KS}",
                f"buffer_load_dwordx4 {rV(b,0)}, v{vV[g_][0]}, s[8:11], s22 offen{KS}", f"buffer_load_dwordx4 {rV(b,1)}, v{vV[g_][1]}, s[8:11], s22 offen{KS}"]
    def burst(b):
        return [f"buffer_load_dwordx4 {v(K1[b],4)}, v{vK1}, s[8:11], s21 offen offset:{512*b}{KS}", f"buffer_load_dwordx2 {v(K2[b],2)}, v{vK2}, s[8:11], s21 offen offset:{512*b}{KS}",
                f"buffer_load_dwordx4 {v(V[b],4)}, v{vV[b][0]}, s[8:11], s22 offen{KS}", f"buffer_load_dwordx4 {v(V[b]+4,4)}, v{vV[b][1]}, s[8:11], s22 offen{KS}"]
    k.e("STAMP0", "s_lshl_b32 s21, s21, 9", "s_lshl_b32 s23, s23, 7", "s_add_u32 s21, s21, s23", f"s_add_u32 s80, s21, {CNTH}", "s_bfm_b64 s[82:83], s22, 0")
    n_l0 = len(k.lines)
    if tokmap: k.e("s_mov_b32 s68, s17", "s_mov_b32 s69, s16")
    else: k.e("s_lshl_b32 s68, s16, 2", "s_and_b32 s69, s17, 3", "s_add_u32 s68, s68, s69", "s_lshr_b32 s69, s2, 5")
    k.e("s_and_b32 s21, s68, 1", "s_lshr_b32 s71, s68, 1", "s_mul_i32 s71, s71, 5", "s_mul_i32 s72, s21, 3", "s_add_u32 s72, s72, s71",
        f"v_and_b32 v{l32}, 31, v0", f"v_lshrrev_b32 v{hf}, 5, v0", "v_cmp_gt_u32 vcc, 32, v0",
        "s_lshl_b32 s73, s69, 8", "s_lshl_b32 s74, s61, 7", "s_add_u32 s73, s73, s74",
        f"v_add_u32 v{T[2]}, s72, v{hf}", f"v_mul_u32_u24 v{T[2]}, {QP}, v{T[2]}", f"v_add_u32 v{T[2]}, v{T[2]}, v{l32}",
        f"v_add_lshl_u32 v{vQ1}, v{T[2]}, s73, 4", f"s_mov_b32 s74, {80*QP}", f"v_add_lshl_u32 v{vK1}, v{T[2]}, s74, 4",
        "s_add_u32 s74, s71, 2", f"s_mul_i32 s74, s74, {16*QP}", "s_lshl_b32 s75, s21, 3", "s_add_u32 s74, s74, s75",
        f"v_lshlrev_b32 v{T[3]}, 4, v{l32}",
        "s_lshl_b32 s75, s73, 4", "s_add_u32 s75, s75, s74", f"v_add_u32 v{T[4]}, s75, v{T[3]}", f"v_mov_b32 v{T[5]}, {OOB}", f"v_cndmask_b32 v{vQ2}, v{T[5]}, v{T[4]}, vcc",
        f"s_add_u32 s74, s74, {80*QP*16}", f"v_mov_b32 v{T[4]}, s74", f"v_mov_b32 v{T[6]}, {160*QP*16}", f"v_cndmask_b32 v{T[4]}, v{T[6]}, v{T[4]}, vcc", f"v_add_u32 v{vK2}, v{T[4]}, v{T[3]}",
        "s_lshl_b32 s59, s62, 10")
    k.e(f"v_bfe_u32 v{T[2]}, v0, 2, 1", f"v_lshlrev_b32 v{T[2]}, 3, v{T[2]}", f"v_bfe_u32 v{T[3]}, v0, 3, 1", f"v_lshl_add_u32 v{T[2]}, v{T[3]}, 2, v{T[2]}",
        f"v_and_b32 v{T[3]}, 3, v0", f"v_add_u32 v{T[2]}, v{T[2]}, v{T[3]}",
        f"v_cmp_gt_u32 vcc, 16, v{l32}", f"v_cmp_eq_u32 s[92:93], 20, v{l32}", f"v_cmp_lt_u32 s[22:23], 20, v{l32}", "s_mul_i32 s74, s68, 20", f"v_cndmask_b32 v{T[2]}, v{l32}, v{T[2]}, vcc",
        f"v_add_u32 v{T[2]}, s74, v{T[2]}", f"v_mov_b32 v{T[3]}, 640", f"v_cndmask_b32 v{T[2]}, v{T[2]}, v{T[3]}, s[92:93]",
        f"v_mul_u32_u24 v{T[4]}, 648, v{hf}", f"v_add_lshl_u32 v{T[2]}, v{T[2]}, v{T[4]}, 4", f"v_cndmask_b32 v{T[2]}, v{T[2]}, v{T[5]}, s[22:23]")
    for b in range(NB): k.e(f"v_add_u32 v{vV[b][0]}, {VT8 + 4*b*VP}, v{T[2]}", f"v_add_u32 v{vV[b][1]}, {VT8 + (4*b+2)*VP}, v{T[2]}")
    k.e("s_mul_i32 s74, s12, 102400", f"s_add_u32 s74, s74, {WO8}", f"v_add_u32 v{vWO}, s74, v{vL}", "s_mul_i32 s67, s14, 25600",
        "s_lshl_b32 s74, s68, 1", f"v_add_u32 v{T[2]}, s74, v{hf}", f"v_mul_u32_u24 v{T[2]}, {QP}, v{T[2]}", f"v_add_u32 v{T[2]}, v{T[2]}, v{l32}", f"v_add_lshl_u32 v{vO1}, v{T[2]}, s73, 4", f"v_add_u32 v{vO1}, {O8}, v{vO1}",
        "s_lshr_b32 s74, s73, 6", "s_add_u32 s74, s74, s62", "s_lshl_b32 s60, s68, 5", "s_add_u32 s60, s60, s74", "s_lshl_b32 s60, s60, 9", f"s_add_u32 s60, s60, {O5}",
        "s_lshl_b32 s74, s17, 2", "s_add_u32 s74, s74, s14", f"s_mul_i32 s74, s74, {R1*3072}", "s_lshr_b32 s75, s16, 1", "s_mul_i32 s75, s75, 768", "s_add_u32 s74, s74, s75",
        f"v_mul_u32_u24 v{T[3]}, 43, v0", f"v_lshrrev_b32 v{T[3]}, 8, v{T[3]}", f"v_mul_u32_u24 v{T[3]}, {3072-768}, v{T[3]}", f"v_lshl_add_u32 v{T[3]}, v0, 7, v{T[3]}", f"v_add_u32 v{T[3]}, s74, v{T[3]}", f"v_cmp_gt_u32 vcc, {6*R1}, v0",
        "s_mov_b32 s56, 0xffff0000", "s_mov_b32 s58, 0x07060302", f"v_cndmask_b32 v{PF}, v{T[5]}, v{T[3]}, vcc")
    k.e("CUT")
    for c in range(4): k.e(f"s_add_u32 s{38+c}, s14, {c}", f"s_and_b32 s{38+c}, s{38+c}, 3")
    k.e(f"s_mul_hi_u32 s72, s65, {magic(80)}", "s_add_u32 s73, s65, 63", f"s_mul_hi_u32 s73, s73, {magic(80)}", "s_lshr_b32 s74, s19, 6", "s_add_u32 s75, s74, 1")
    k.e(waddr(3072, 64, False), raddr(False))
    for c in range(1, 4): k.e(f"s_mul_i32 s23, s{38+c}, 15360", f"s_add_u32 s23, s23, {PART+(c-1)*5120}", f"v_add_u32 v{vPW[c-1]}, s23, v{vL}")
    k.e("s_mul_i32 s23, s14, 15360", f"v_add_u32 v{vPR}, s23, v{vL}", f"v_add_u32 v{vL2}, 51200, v{vL}",
        f"v_mul_u32_u24 v{T[2]}, 160, v{l16}", f"v_lshl_add_u32 v{T[2]}, v{g4}, 3, v{T[2]}", f"v_add_u32 v{vI}, s42, v{T[2]}")
    k.e("CUT")
    k.e(x8addr(vC0, QP, 63, O8), x8addr(vA, 640, 19, U8), x8addr(T[3], 640, 65, HN8))
    for c in range(4): k.e(f"s_lshl_b32 s23, s{38+c}, 8", f"v_add_u32 v{vB[c]}, s23, v{T[3]}")
    k.e("s_lshl_b32 s23, s13, 5", "s_lshl_b32 s24, s61, 4", "s_add_u32 s23, s23, s24", "s_lshl_b32 s23, s23, 4", "s_lshl_b32 s24, s62, 3", "s_add_u32 s23, s23, s24",
        f"s_add_u32 s23, s23, {O5}", f"v_lshlrev_b32 v{T[2]}, 15, v{g4}", f"v_lshl_add_u32 v{T[2]}, v{l16}, 4, v{T[2]}", f"v_add_u32 v{vC1}, s23, v{T[2]}")
    k.e(f"s_lshl_b32 s23, s13, {12+st4}", f"s_lshl_b32 s24, s14, {7+st4}", "s_add_u32 s23, s23, s24", f"s_add_u32 s23, s23, {STATS}", f"v_lshl_add_u32 v{T[2]}, v{l16}, {3+st4}, s23",
        f"v_lshl_add_u32 v{vSR}, v{g4}, {10+st4}, v{T[2]}", f"s_lshl_b32 s24, s12, {9+st4}", f"v_add_u32 v{vSW}, s24, v{T[2]}",
        f"v_bfe_u32 v{T[2]}, v0, 4, 1", f"v_bfe_u32 v{T[3]}, v0, 2, 2", f"v_lshl_add_u32 v{T[3]}, v{T[2]}, 3, v{T[3]}", f"v_mul_u32_u24 v{T[3]}, 160, v{T[3]}",
        f"v_lshl_add_u32 v{T[3]}, v{hf}, 5, v{T[3]}", f"v_and_b32 v{T[4]}, 3, v0", f"v_lshl_add_u32 v{T[3]}, v{T[4]}, 3, v{T[3]}", f"v_add_u32 v{vTR}, s42, v{T[3]}",
        "s_lshr_b32 s23, s63, 3", "s_mul_i32 s23, s23, 640", "s_add_u32 s23, s23, s19", "s_lshl_b32 s23, s23, 4", f"s_add_u32 s23, s23, {HN8}",
        f"v_mul_u32_u24 v{T[2]}, 640, v{T[2]}", f"v_lshl_add_u32 v{T[2]}, v{hf}, 4, v{T[2]}", f"v_add_lshl_u32 v{T[2]}, v{T[2]}, v{l16}, 4", f"v_add_u32 v{vHN}, s23, v{T[2]}",
        "s_lshr_b32 s23, s64, 3", "s_mul_i32 s23, s23, 640", "s_add_u32 s23, s23, s65", "s_lshl_b32 s24, s14, 4", "s_add_u32 s23, s23, s24", x8addr(vUS, 640, 23, U8))
    for rr in range(3):
        k.e(f"v_add_u32 v{T[2]}, {64*rr}, v0", f"v_mul_u32_u24 v{T[3]}, 205, v{T[2]}", f"v_lshrrev_b32 v{T[3]}, 11, v{T[3]}", f"v_mul_u32_u24 v{T[3]}, {1280-160}, v{T[3]}", f"v_lshl_add_u32 v{GO[rr]}, v{T[2]}, 4, v{T[3]}")
    latel = k.lines[n_l0:]; del k.lines[n_l0:]
    cuts = [i for i, l in enumerate(latel) if l == "CUT"]
    cutp = ([0] + cuts + [len(latel)])[pe]
    ie = k.lines.index("EARLY")
    k.lines[ie:ie+1] = [l for l in latel[:cutp] if l != "CUT"]
    k.e([l for l in latel[cutp:] if l != "CUT"])
    k.e(f"v_lshlrev_b32 v{T[2]}, 9, v0", f"v_mov_b32 v{T[3]}, 1", "s_cmp_lg_u32 s14, 0", "s_waitcnt vmcnt(0)", "s_barrier", f"s_cbranch_scc1 {k.L('asg')}",
        "s_mov_b64 exec, s[82:83]", f"buffer_atomic_add v{T[3]}, v{T[2]}, s[8:11], s80 offen sc1", "s_mov_b64 exec, -1")
    k.label("asg")
    k.e("STAMP0")
    k.e("s_mov_b32 m0, s42", "s_nop 0", f"buffer_load_dwordx4 v{GO[0]}, s[44:47], s57 offen lds", "s_add_u32 m0, s42, 1024", "s_nop 0", f"buffer_load_dwordx4 v{GO[1]}, s[44:47], s57 offen lds",
        "s_add_u32 m0, s42, 2048", "s_mov_b32 exec_hi, 0", f"buffer_load_dwordx4 v{GO[2]}, s[44:47], s57 offen lds", "s_mov_b64 exec, -1")
    k.e(srd(44, 28, 2048*1536*2), srd(48, 4, WS_BYTES), "s_cmp_ge_u32 s17, 30", "s_cselect_b32 s46, 0, s46", "s_cselect_b32 s50, 0, s50",
        "s_mov_b32 s52, s28", "s_mov_b32 s53, s29", f"s_mov_b32 s54, {hex(2048*1536*2)}", "s_mov_b32 s55, 0x00020000",
        "s_mov_b32 s26, 0", "s_mov_b32 s27, -1", "s_mov_b32 s25, 0", "s_mov_b32 m0, s67", "s_xor_b32 s71, s59, 1024")
    k.e("s_mov_b32 s87, 0x400000", wrot(66, 3072), srd(80, 32, 2048*1536*2))
    ESL = [1, 2, 3, 0]
    for j in range(nE): k.e([f"ds_read_b64_tr_b16 {a(16*j+4*c+2*t,2)}, v{vR[c]} offset:{ESL[j]*16384+t*512}" for c in range(4) for t in range(2)])
    k.e("s_lshl_b32 s21, s17, 2", "s_add_u32 s21, s21, s14", f"s_mul_i32 s21, s21, {R2*4096}", "s_lshl_b32 s22, s16, 9", "s_add_u32 s21, s21, s22", f"v_cmp_gt_u32 vcc, {4*R2}, v0",
        f"v_lshrrev_b32 v{T[0]}, 2, v0", f"v_mul_u32_u24 v{T[0]}, {4096-512}, v{T[0]}", f"v_lshl_add_u32 v{T[0]}, v0, 7, v{T[0]}", f"v_add_u32 v{T[0]}, s21, v{T[0]}", f"v_mov_b32 v{T[1]}, {OOB}", f"v_cndmask_b32 v{T[0]}, v{T[1]}, v{T[0]}, vcc",
        (["s_lshl_b32 s21, s2, 2", "s_add_u32 s21, s21, s14", f"s_mul_i32 s21, s21, {6144 if chunk else 96//n1*128}", f"v_cmp_gt_u32 vcc, {96//n1}, v0"] if pfpar is None else
         ["s_lshr_b32 s21, s2, 1", "s_lshl_b32 s21, s21, 2", "s_add_u32 s21, s21, s14", f"s_mul_i32 s21, s21, {192//n1*128}", "s_and_b32 s22, s2, 1", f"s_cmp_eq_u32 s22, {pfpar}", f"s_cselect_b32 s22, {192//n1}, 0", "v_cmp_gt_u32 vcc, s22, v0"]), f"v_lshlrev_b32 v{T[2]}, 7, v0", f"v_add_u32 v{T[2]}, s21, v{T[2]}", f"v_cndmask_b32 v{T[1]}, v{T[1]}, v{T[2]}, vcc")
    k.e("s_cmp_lg_u32 s14, 1", f"s_cbranch_scc1 {k.L('pax')}",
        "s_mul_i32 s21, s68, 20", "s_add_u32 s22, s21, 19", "s_lshr_b32 s21, s21, 7", "s_lshr_b32 s22, s22, 7", "s_sub_u32 s22, s22, s21", "s_lshl_b32 s22, s22, 4", "s_add_u32 s22, s22, 16",
        f"v_mov_b32 v{T[4]}, s22", "v_cmp_eq_u32 vcc, 3, v0", f"v_lshlrev_b32 v{T[5]}, 7, v0", "s_lshl_b32 s43, s68, 9", f"v_cndmask_b32 v{T[4]}, v{T[4]}, 16, vcc".replace(", 16, vcc", ", 16, vcc"),
        f"s_add_u32 s43, s43, {CNTH}", "s_mov_b32 s23, 0x200000", "s_mov_b64 exec, 15")
    k.label("pa")
    k.e(f"v_mov_b32 v{T[6]}, 0", f"buffer_atomic_add v{T[6]}, v{T[5]}, s[8:11], s43 offen sc0 sc1", "s_sub_u32 s23, s23, 1", f"s_cbranch_scc1 {k.L('pay')}", "s_waitcnt vmcnt(0)",
        f"v_cmp_gt_u32 vcc, v{T[4]}, v{T[6]}", f"s_cbranch_vccnz {k.L('pa')}")
    k.label("pay"); k.e("s_waitcnt vmcnt(0)", "s_mov_b64 exec, -1")
    k.label("pax"); k.e(kvstart(), "s_waitcnt lgkmcnt(0)", "s_barrier", "STAMP0")
    k.e(f"buffer_load_dwordx4 {v(K1[NB-1],4)}, v{vK1}, s[8:11], 0 offen{KS}", f"buffer_load_dwordx2 {v(K2[NB-1],2)}, v{vK2}, s[8:11], 0 offen{KS}")
    for j in (3, 2, 1, 0): k.e(f"buffer_load_dwordx4 {v(Q1[j],4)}, v{vQ1}, s[8:11], s{59 if j < 2 else 71} offen offset:{512*(j%2)}{KS}", f"buffer_load_dwordx2 {v(Q2[j],2)}, v{vQ2}, s[8:11], s{59 if j < 2 else 71} offen offset:{512*(j%2)}{KS}")
    k.e(burst(0))
    SD = lambda j: v(Sx[j], 16) if j < 2 else a(208+16*(j-2), 16)
    qk1 = lambda sb, kb, qt: f"v_mfma_f32_32x32x16_bf16 {SD(sb)}, {rK1(kb)}, {v(Q1[qt],4)}, 0"
    qk2 = lambda sb, kb, qt: f"v_mfma_f32_32x32x8_bf16 {SD(sb)}, {rK2(kb)}, {v(Q2[qt],2)}, {SD(sb)}"
    pv = lambda half, kb, qt: f"v_mfma_f32_32x32x16_bf16 {v(O[qt],16)}, {rV(kb,half)}, {v(P+4*half,4)}, {v(O[qt],16)}"
    k.e("s_waitcnt vmcnt(4)")
    mm = []
    for sb, j in ((2, 3), (3, 2), (1, 1), (0, 0)): mm += [qk1(sb, NB-1, j), qk2(sb, NB-1, j)]
    k.e(interleave(mm, burst(1) + burst(2)))
    for n_, j in enumerate((3, 2)):
        k.e([f"v_accvgpr_read_b32 v{T[2+i]}, a{208+16*n_+i}" for i in range(3)], f"v_max3_f32 v{MX[j]}, v{T[2]}, v{T[3]}, v{T[4]}")
    k.e(f"v_max3_f32 v{MX[1]}, v{Sx[1]}, v{Sx[1]+1}, v{Sx[1]+2}", "s_nop 1", f"v_max3_f32 v{MX[0]}, v{Sx[0]}, v{Sx[0]+1}, v{Sx[0]+2}")
    k.label("setm")
    def setq(j): return [f"v_and_b32 v{T[3]}, s56, v{MX[j]}", f"v_sub_f32 v{T[4]}, v{T[3]}, v{MX[j]}", f"v_xor_b32 v{T[3]}, 0x80000000, v{T[3]}", f"v_perm_b32 v{Q2[j]}, v{T[4]}, v{T[3]}, s58"]
    k.e("s_waitcnt vmcnt(8)", qk1(0, 0, 0), "s_mov_b64 exec, s[26:27]", setq(0), "s_mov_b64 exec, -1", "s_nop 0", qk2(0, 0, 0),
        "s_mov_b64 exec, s[26:27]", setq(1), setq(2), setq(3), "s_mov_b64 exec, -1")
    k.e("STAMP0")
    vm = VM(k); vm.q = [("kv", 1)]*4 + [("kv", 2)]*4
    free = [1]
    class WS:
        def __init__(s, name, n, ld, tstep):
            s.name = name; s.n = n; s.ld = ld; s.tstep = tstep; s.ni = 0; s.nd = 0; s.where = {}
        def issue_raw(s, sl=None):
            j = s.ni; s.ni += 1
            if sl is None: sl = free.pop(0)
            else: free.remove(sl)
            s.where[j] = sl
            so = f"s{WR[j]}" if j < 4 else "s24"
            return [f"s_add_u32 m0, s15, {sl*16384}", "s_nop 0" if j < 4 else f"s_add_u32 s24, s{WR[j % 4]}, {(j >> 2)*16*32*s.ld}"] + \
                   [f"buffer_load_dwordx4 v{vW[i]}, s[44:47], {so} offen offset:{i*1024}{wfl} lds" for i in range(4)], (s.name, j)
        def issue_lines(s, sl=None): return vm.note(*s.issue_raw(sl))
        def drain_raw(s):
            j = s.nd; s.nd += 1
            assert j < s.ni
            free.append(s.where[j])
            return [f"ds_read_b64_tr_b16 {a(16*j+4*c+2*t,2)}, v{vR[c]} offset:{s.where[j]*16384+t*s.tstep}" for c in range(4) for t in range(2)], (s.name, j)
        def drain_lines(s):
            r, tg = s.drain_raw(); return vm.need(tg) + r
    W1 = WS("w1", 16, 3072, 512); W2 = WS("w2", 12, 4096, 2048)
    W1.ni = W1.nd = nE
    def signal(off, pitch, nrep, stile, sr):
        return vm.note([f"s_lshl_b32 s24, s{stile}, 7", f"s_add_u32 s24, s24, {off}", "s_cmp_eq_u32 s14, 0", f"s_cselect_b32 s24, s24, {OOB}", f"v_mul_u32_u24 v{T[0]}, {pitch}, v0", f"v_mov_b32 v{T[1]}, 1",
                        f"s_mov_b64 exec, {(1<<nrep)-1}", f"buffer_atomic_add v{T[1]}, v{T[0]}, s[{sr}:{sr+3}], s24 offen sc1", "s_mov_b64 exec, -1"], "sig")
    san = lambda r: f"v_min_u32 v{r}, -2, v{r}"
    stubs = []
    def check(name, regs, ld):
        c_ = []; rr_ = list(regs)
        while len(rr_) > 1:
            if len(rr_) >= 3: c_.append(f"v_max3_u32 v{T[5]}, v{rr_[0]}, v{rr_[1]}, v{rr_[2]}"); rr_ = [T[5]] + rr_[3:]
            else: c_.append(f"v_max_u32 v{T[5]}, v{rr_[0]}, v{rr_[1]}"); rr_ = [T[5]]
        c_.append(f"v_cmp_eq_u32 vcc, -1, v{rr_[0]}")
        stubs.append([k.L(name) + ":"] + [x.replace("s23", "s91") for x in ld] + ["s_sub_u32 s87, s87, 1", "s_cmp_lt_i32 s87, 0", "s_waitcnt vmcnt(0)", f"s_cbranch_scc1 {k.L(name+'r')}"] + c_ +
                     [f"s_cbranch_vccnz {k.L(name)}", f"s_branch {k.L(name+'r')}"])
        return c_, [f"s_cbranch_vccnz {k.L(name)}", k.L(name+'r') + ":"]
    ex = lambda sb, i: f"v_exp_f32 v{Sx[sb]+i}, v{Sx[sb]+i}"
    cv = lambda sb, i: f"v_cvt_pk_bf16_f32 v{P+i}, v{Sx[sb]+2*i}, v{Sx[sb]+2*i+1}"
    MK = "a[252:255]"
    cursrd = [None]
    def pfl_(m_, reg, off): return dict(pf=(m_, reg, off), t="pf")
    wol = []
    for f_ in range(25):
        wol.append(dict(l=([f"s_add_u32 m0, s67, {1024*f_}", "s_nop 0"] if f_ % 4 == 0 else []) + [f"buffer_load_dwordx4 v{vWO}, s[8:11], m0 offen offset:{1024*(f_ % 4)} sc1 lds"], t="wo"))
    marks = [[f"v_accvgpr_write_b32 a{252+i}, -1" for i in range(4)] + [f"buffer_store_dwordx4 {MK}, v{vO1}, s[8:11], s59 offen sc1"], [f"buffer_store_dwordx4 {MK}, v{vO1}, s[8:11], s59 offen offset:512 sc1"],
             [f"buffer_store_dwordx4 {MK}, v{vHN}, s[8:11], 0 offen sc1"], [f"buffer_store_dwordx4 {MK}, v{vHN}, s[8:11], 0 offen offset:512 sc1"],
             [f"buffer_store_dwordx4 {MK}, v{vUS}, s[48:51], 0 offen sc1"], [f"s_mov_b32 s23, {4*640*16}", f"buffer_store_dwordx4 {MK}, v{vUS}, s[48:51], s23 offen sc1"],
             ["s_mov_b32 exec_hi, 0", f"buffer_store_dwordx4 {MK}, v{vL}, s[8:11], s60 offen sc1", f"buffer_store_dwordx4 {MK}, v{vHN}, s[8:11], 0 offen offset:1024 sc1", "s_mov_b64 exec, -1"]]
    marks = [dict(l=m_, t="mark") for m_ in marks]
    plan = {}
    sp = (wlast - w0) / max(nA, 1)
    wi = [int(w0 + sp*j) for j in range(nA+1)] if nA else [wlast]
    for j in range(nA+1):
        for i in range(4): plan[wi[j]+i] = dict(w=(j, i))
    def put(n_, e_):
        while n_ in plan: n_ += 1
        plan[n_] = e_; return n_
    h1 = n1//2
    if per:
        plan.clear()
        for q in range(n1): plan[per*q + 3] = pfl_(1 + q//h1, T[1], (q % h1)*((6144 if chunk else 6291456)//h1))
        wi = [per*(n1 - nA + j) + 3 - 4 if j < nA else min(per*n1 - 1, 120) for j in range(nA+1)]
        for j in range(nA+1):
            for i in range(4): assert wi[j]+i not in plan; plan[wi[j]+i] = dict(w=(j, i))
        npr = nper or -(-(32 + 4*nA)//(n1-1))
        slots_ = [n_ for q in range(n1) for n_ in range(per*q + 3 - npr, per*q + 3) if n_ >= 0 and n_ not in plan]
        wog = [wol[i:i+4] for i in range(0, 25, 4)]
        mk_ = list(marks)
        for g_ in wog:
            while any(slots_[0] < x < slots_[len(g_)-1] for x in wi): plan[slots_.pop(0)] = mk_.pop(0)
            for e_ in g_: plan[slots_.pop(0)] = e_
        for e_ in mk_: plan[slots_.pop(0)] = e_
        s1w1 = s1w2 = l2w1 = l2w2 = None; wol = []; marks = []
    if s1w1:
        for q in range(h1): put(s1w1[0] + q*(s1w1[1]-s1w1[0])//h1, pfl_(1, T[1], q*((6144 if chunk else 6291456)//h1)))
    if s1w2:
        for q in range(h1): put(s1w2[0] + q*(s1w2[1]-s1w2[0])//h1, pfl_(2, T[1], q*((6144 if chunk else 6291456)//h1)))
    if l2w1:
        for q in range(l2w1[0]): put(l2w1[1] + q*(l2w1[2]-l2w1[1])//l2w1[0], pfl_(1, PF, q*(6291456//l2w1[0])))
    if l2w2:
        for q in range(l2w2[0]): put(l2w2[1] + q*(l2w2[2]-l2w2[1])//l2w2[0], pfl_(2, T[0], q*(6291456//l2w2[0])))
    n_ = 0
    for e_ in wol: n_ = put(n_, e_)
    assert per or n_ < wi[0]
    for i_, e_ in enumerate(marks): put(36 + 9*i_, e_)
    dplan = {}
    for j in range(nA):
        end = wi[j+1]
        assert end - 8//drate > wi[j] + 3
        for p_ in range(8//drate): dplan[end - 8//drate + p_] = (j, p_)
    wcur = {}
    def sidev(n):
        e_ = plan.get(n)
        if e_ is None: return
        if "w" in e_:
            j, i = e_["w"]
            if i == 0: wcur["i"] = W1.issue_raw()
            r, tg = wcur["i"]
            vm.emit(((["s_waitcnt lgkmcnt(0)"] if j >= 1 else []) + r[:3]) if i == 0 else [r[2+i]], tg)
        elif "pf" in e_:
            m_, reg, off = e_["pf"]
            vm.emit(([f"s_mov_b32 s23, {off}"] if off else []) + [f"buffer_load_dword v{T[6]}, v{reg}, {'s[52:55]' if m_ == 1 else 's[80:83]'}, {'s23' if off else '0'} offen"], "pf")
        else: vm.emit(e_["l"], e_["t"])
    def sided(n):
        if n not in dplan: return
        j, p_ = dplan[n]
        if p_ == 0:
            wcur["d"] = W1.drain_raw(); vm.wait(wcur["d"][1])
        k.e(wcur["d"][0][drate*p_:drate*(p_+1)])
    kvq = [(tile, i) for tile in range(3, 32) for i in range(4)]
    for n in range(128):
        kt, qt = n//4, n % 4
        sb = n % 2
        last = n == 127
        for tok in blk.split():
            if tok == "W":
                if qt == 3 and not last: vm.wait(("kv", kt+1))
            elif tok == "V":
                if qt == 2 and kt < 31: vm.wait(("kv", kt+1))
            elif tok == "D": sided(n)
            elif tok == "Q":
                if not last: k.e(qk1(1-sb, ((n+1)//4) % NBT, (n+1) % 4))
            elif tok == "R":
                if not last: k.e(qk2(1-sb, ((n+1)//4) % NBT, (n+1) % 4))
            elif tok == "B":
                if n: k.e(pv(1, ((n-1)//4) % NBT, (n-1) % 4))
            elif tok == "A": k.e(pv(0, kt % NBT, qt).rsplit(",", 1)[0] + ", 0" if kt == 0 else pv(0, kt % NBT, qt))
            elif tok == "S": sidev(n)
            elif tok == "L":
                hush = per and 0 < (n - 3) % per <= quiet and n > per
                for rep_ in range(0 if hush else 2):
                    if kvq and (4*kvq[0][0] + kvq[0][1] <= n + 4*(NBT-1)):
                        tile, i = kvq.pop(0)
                        assert tile - NBT < kt
                        if i == 0 and tile % 4 == 0: k.e(f"s_add_u32 s22, s22, {16*VP}", "s_add_u32 s21, s21, 2048")
                        vm.emit([burstx(tile)[i]], ("kv", tile))
                if "D" not in blk.split(): sided(n)
            elif tok[0] == "e": k.e(ex(sb, int(tok[1:])))
            else: k.e(cv(sb, int(tok[1:])))
    assert W1.nd == nE+nA and W1.ni == nE+nA+1 and W1.nd <= 11
    vm.wait("wo"); vm.wait("mark")
    exo = [32768, 33792, 34816, 35840, 49152, 50176]
    k.e("s_xor_b32 s23, s14, 2", "s_waitcnt lgkmcnt(0)", pv(1, 31 % NBT, 3), "STAMP0", "s_lshl_b32 s23, s23, 12", f"s_add_u32 s23, s23, {RING}", f"v_add_u32 v{T[2]}, s23, v{vL}")
    for q in range(3): k.e(f"ds_write_b128 v{T[2]}, {v(O[2]+4*q,4)} offset:{exo[q]}")
    k.e(f"v_add_u32 v{T[5]}, s15, v{vL}", f"s_mov_b32 s23, {hex(f2u(2.0**64))}", "s_lshl_b32 s24, s14, 2", f"s_add_u32 s24, s24, {FLG}", f"v_mov_b32 v{T[3]}, s24",
        f"v_add_f32 v{T[4]}, v{O[0]+8}, v{O[1]+8}", f"v_add_f32 v{T[4]}, v{T[4]}, v{O[2]+8}")
    for q in range(3): k.e(f"ds_write_b128 v{T[2]}, {v(O[3]+4*q,4)} offset:{exo[3+q]}")
    k.e(f"v_add_f32 v{T[4]}, v{T[4]}, v{O[3]+8}", f"v_cmp_nge_f32 vcc, s23, v{T[4]}", f"v_mov_b32 v{T[2]}, {FLG}", "s_nop 0", f"v_mov_b32 v{T[4]}, vcc_hi",
        f"ds_write_b32 v{T[3]}, v{T[4]}", "s_waitcnt lgkmcnt(0)", "s_barrier")
    FL = Sx[0]; OUT = Sx[1]
    k.e(f"ds_read_b128 {v(FL,4)}, v{T[2]}")
    for j in range(2):
        for q in range(3): k.e(f"ds_read_b128 {v(O[2+j]+4*q,4)}, v{T[5]} offset:{exo[3*j+q]}")
    k.e("s_waitcnt lgkmcnt(6)", f"v_or3_b32 v{FL}, v{FL}, v{FL+1}, v{FL+2}", f"v_or_b32 v{FL}, v{FL}, v{FL+3}",
        "s_nop 0", f"v_readfirstlane_b32 s23, v{FL}", "s_waitcnt lgkmcnt(3)")
    for j in range(2):
        if j: k.e("s_waitcnt lgkmcnt(0)")
        for i in (8, 0, 2, 4, 6, 10): k.e(f"v_pk_add_f32 {v(O[j]+i,2)}, {v(O[j]+i,2)}, {v(O[2+j]+i,2)}")
        if j == 0: k.e("s_andn2_b32 s23, s23, s25", f"s_cbranch_scc1 {k.L('redo')}")
        if j == g0: k.e(signal(CNT0, 1024, 4, 69, 8))
        L = FL + 4 + 4*j
        k.e(f"v_mov_b32 v{L}, v{O[j]+8}", f"v_mov_b32 v{L+2}, v{O[j]+8}", "s_nop 1", f"v_permlane32_swap_b32 v{L}, v{L+2}", "s_nop 0", f"v_rcp_f32 v{L+2}, v{L+2}", "s_nop 0")
        for i in range(0, 12, 2): k.e(f"v_pk_mul_f32 {v(O[j]+i,2)}, {v(O[j]+i,2)}, {v(L+2,2)} op_sel_hi:[1,0]")
        for i in range(4): k.e(f"v_cvt_pk_bf16_f32 v{OUT+4*j+i}, v{O[j]+2*i}, v{O[j]+2*i+1}")
        k.e(san(OUT+4*j+3))
        vm.emit([f"buffer_store_dwordx4 {v(OUT+4*j,4)}, v{vO1}, s[8:11], s59 offen offset:{512*j} sc1"], "o")
        for i in range(2): k.e(f"v_cvt_pk_bf16_f32 v{OUT+8+2*j+i}, v{O[j]+8+2*i}, v{O[j]+9+2*i}")
        k.e(san(OUT+9+2*j))
    vm.emit(["s_mov_b32 exec_hi, 0", f"buffer_store_dwordx4 {v(OUT+8,4)}, v{vL}, s[8:11], s60 offen sc1", "s_mov_b64 exec, -1"], "o")
    k.e("STAMP0")
    def allred(A):
        k.e("s_nop 1", f"v_permlane32_swap_b32 v{A}, v{A+1}", "s_nop 0", f"v_add_f32 v{A}, v{A}, v{A+1}", f"v_mov_b32 v{A+1}, v{A}", "s_nop 1", f"v_permlane16_swap_b32 v{A}, v{A+1}", "s_nop 0",
            f"v_add_f32 v{A}, v{A}, v{A+1}", f"v_mov_b32 v{A+1}, v{A}", "s_nop 1", f"v_permlane32_swap_b32 v{A}, v{A+1}", "s_nop 0")
    def ask(off, pitch, slo, shi, skip=None):
        k.e(f"s_sub_u32 s22, s{shi}, s{slo}", f"v_mul_u32_u24 v{T[4]}, s22, v0", f"v_add_lshl_u32 v{T[4]}, v{T[4]}, s{slo}, 7", f"s_mul_i32 s43, s16, {pitch}", f"s_add_u32 s43, s43, {off}",
            "s_cmp_eq_u32 s14, 1", f"s_cselect_b32 s43, s43, {OOB}", f"v_mov_b32 v{T[3]}, 0")
        if skip: k.e(skip, f"s_cselect_b32 s43, {OOB}, s43")
        vm.emit([f"s_mov_b64 exec, {1 if slo == shi else 3}", f"buffer_atomic_add v{T[3]}, v{T[4]}, s[8:11], s43 offen sc0 sc1", "s_mov_b64 exec, -1"], "ask")
    def await_(two, need, name):
        q_ = list(vm.q)
        k.e(f"s_cmp_eq_u32 s43, {OOB}", f"s_cbranch_scc1 {k.L(name+'x')}", "s_mov_b32 s23, 0x200000", f"s_mov_b64 exec, {3 if two else 1}")
        vm.wait("ask"); vm.q = q_
        k.label(name)
        k.e(f"v_cmp_gt_u32 vcc, {need}, v{T[3]}", f"s_cbranch_vccz {k.L(name+'y')}", "s_sub_u32 s23, s23, 1", f"s_cbranch_scc1 {k.L(name+'y')}",
            f"v_mov_b32 v{T[3]}, 0", f"buffer_atomic_add v{T[3]}, v{T[4]}, s[8:11], s43 offen sc0 sc1", "s_waitcnt vmcnt(0)", f"s_branch {k.L(name)}")
        k.label(name+'y'); k.e("s_mov_b64 exec, -1")
        k.label(name+'x'); k.e("s_barrier")
    TT = lambda ls: [x.replace(f"v{T[3]},", f"v{T[0]},").replace(f"v{T[4]},", f"v{T[1]},") for x in [y + "," for y in ls]]
    TT2 = lambda ls: [x[:-1] for x in TT(ls)]
    sw = {"w": False, "r": False}
    def nextissue(sl=None):
        if W1.ni < 16: return W1.issue_lines(sl)
        r = []
        if not sw["w"]: sw["w"] = True; r = srd(44, 32, 2048*1536*2) + TT2(waddr(4096, 20, True)) + wrot(18, 4096)
        return r + W2.issue_lines(sl)
    def stream(n):
        for _ in range(n):
            if W1.ni == 16 and W2.ni >= w2n: return
            if not free:
                if W1.nd == W1.ni: return
                k.e(W1.drain_lines(), "s_waitcnt lgkmcnt(0)")
            k.e(nextissue())
    left = lambda: 16 - W1.ni + max(0, w2n - W2.ni)
    def drain1():
        while W1.nd < W1.ni: k.e(W1.drain_lines())
        if W1.nd == 16 and not sw["r"]: sw["r"] = True; k.e(TT2(raddr(True)))
    if g0 == 2: k.e(signal(CNT0, 1024, 4, 69, 8))
    Bc = [BUF + 4*j for j in range(20)]
    Ac = [[ACC + 20 + 20*b + 4*i for i in range(5)] for b in range(3)]
    XR = BUF + 80
    def rdA(j): return [f"ds_read_b128 {v(Ac[j%3][i],4)}, v{vL if j < 10 else vL2} offset:{(j % 10)*5120 + i*1024}" for i in range(5)]
    def rawC(j):
        if j < 16: return [f"s_mov_b32 s23, {j*4*QP*16}", f"buffer_load_dwordx4 {v(Bc[j],4)}, v{vC0}, s[8:11], s23 offen sc1"]
        r = []
        for h_ in range(2): r += [f"s_mov_b32 s23, {((j-16)*8+h_)*16384}", f"buffer_load_dwordx2 {v(Bc[j]+2*h_,2)}, v{vC1}, s[8:11], s23 offen sc1"]
        return r
    def ldC(j): return vm.note(rawC(j), ("C", j))
    def chkC(j): return check(f"c{j}", [Bc[j]+3] if j < 16 else [Bc[j]+1, Bc[j]+3], rawC(j))
    k.e("s_and_b32 s71, s17, 3", "s_lshl_b32 s71, s71, 3", "s_add_u32 s71, s71, s16")
    ask(CNT0, 0, 71, 71)
    drain1()
    free[:0] = [2, 3]
    for _ in range(s0n):
        if len(free) == 1: k.e("s_waitcnt lgkmcnt(0)")
        k.e(nextissue())
    k.e(rdA(0), rdA(1))
    await_(False, 32, "p0")
    k.e("STAMP0")
    for j in range(DCC): k.e(ldC(j))
    drain1()
    vm.wait(("C", 0)); k.e(chkC(0), "s_waitcnt lgkmcnt(0)")
    for j in range(20):
        k.e(f"s_waitcnt lgkmcnt({5 if j < 19 else 0})")
        nx = (("C", j+1), chkC(j+1)) if j < 19 else None
        w_pre = vm.need(nx[0]) if nx else []
        m = [f"v_mfma_f32_16x16x32_bf16 {v(ACC+4*i,4)}, {v(Ac[j%3][i],4)}, {v(Bc[j],4)}, " + ("0" if j == 0 else v(ACC+4*i, 4)) for i in range(5)]
        f = rdA(j+2) if j + 2 < 20 else ([f"ds_read_b64 {v(XR+2*i,2)}, v{vI} offset:{32*i}" for i in range(5)] if j == 19 else [])
        if j + DCC < 20: f = f + ldC(j+DCC)
        if j in wc and free and left(): f = f + nextissue()
        if nx: k.e(m[0], f[:2], m[1], f[2:4], w_pre, nx[1][0], m[2], nx[1][1], f[4:5], interleave(m[3:], f[5:]))
        else: k.e(interleave(m, f))
    k.e("STAMP0")
    R = ACC; U = BUF
    k.e("s_waitcnt lgkmcnt(0)")
    for i in range(10): k.e(f"v_lshlrev_b32 v{U+2*i}, 16, v{XR+i}", f"v_and_b32 v{U+2*i+1}, s56, v{XR+i}")
    for i in range(0, 20, 2): k.e(f"v_pk_add_f32 {v(R+i,2)}, {v(R+i,2)}, {v(U+i,2)}")
    SS = R+20; QQ = R+22; ST = R+24; G = R+28
    k.e(f"v_pk_add_f32 {v(SS,2)}, {v(R,2)}, {v(R+2,2)}", f"v_pk_mul_f32 {v(QQ,2)}, {v(R,2)}, {v(R,2)}", f"v_pk_fma_f32 {v(QQ,2)}, {v(R+2,2)}, {v(R+2,2)}, {v(QQ,2)}")
    for i in range(4, 20, 2): k.e(f"v_pk_add_f32 {v(SS,2)}, {v(SS,2)}, {v(R+i,2)}", f"v_pk_fma_f32 {v(QQ,2)}, {v(R+i,2)}, {v(R+i,2)}, {v(QQ,2)}")
    k.e(f"v_add_f32 v{ST}, v{SS}, v{SS+1}", f"v_add_f32 v{ST+1}, v{QQ}, v{QQ+1}")
    allred(ST)
    vm.emit([f"v_and_b32 v{ST+1}, 0x7fffffff, v{ST+1}", "s_mov_b64 exec, 0xffff", f"buffer_store_dwordx{4 if st4 else 2} {v(ST,4 if st4 else 2)}, v{vSW}, s[8:11], 0 offen sc1", "s_mov_b64 exec, -1"], "st")
    k.e("STAMP0", "s_barrier")
    for i in range(10): k.e(f"v_cvt_pk_bf16_f32 v{HK+i}, v{R+2*i}, v{R+2*i+1}")
    free.append(0)
    stream(s1[0])
    pl = [f"buffer_load_dwordx2 {v(G,2)}, v{vSR}, s[8:11], 0 offen sc1", f"buffer_load_dwordx2 {v(G+2,2)}, v{vSR}, s[8:11], 0 offen offset:{1024 if st4 else 512} sc1"]
    vm.emit(pl, "poll")
    stream(s1[1])
    vm.wait("poll")
    k.e("s_mov_b32 s23, 0x200000")
    k.label("sp")
    k.e(f"v_or_b32 v{G+4}, v{G+1}, v{G+3}", f"v_cmp_gt_i32 vcc, 0, v{G+4}", f"s_cbranch_vccz {k.L('spx')}", "s_sub_u32 s23, s23, 1", f"s_cbranch_scc1 {k.L('spx')}",
        f"s_sleep {slp}" if slp else [], pl, "s_waitcnt vmcnt(0)", f"s_branch {k.L('sp')}")
    k.label("spx")
    k.e("STAMP0")
    if g1 == 0: k.e(signal(CNT1, 1024, 8, 12, 8))
    k.e(f"v_pk_add_f32 {v(G,2)}, {v(G,2)}, {v(G+2,2)}")
    allred(G)
    c = hex(f2u(1.0/640)); e = hex(f2u(1e-5))
    k.e(f"v_mul_f32 v{G}, {c}, v{G}", f"v_mul_f32 v{G+1}, {c}, v{G+1}", f"v_fma_f32 v{G+1}, -v{G}, v{G}, v{G+1}", f"v_max_f32 v{G+1}, 0, v{G+1}",
        f"v_add_f32 v{G+2}, {e}, v{G+1}", f"v_rsq_f32 v{G+2}, v{G+2}", "s_nop 0", f"v_mul_f32 v{G+1}, v{G+1}, v{G+2}", f"v_mul_f32 v{G+1}, v{G+1}, v{G+2}",
        f"v_add_f32 v{G+1}, {e}, v{G+1}", f"v_rsq_f32 v{G+1}, v{G+1}", "s_nop 0", f"v_mul_f32 v{G+2}, v{G+1}, v{G+2}", f"v_mul_f32 v{G+3}, v{G}, v{G+2}", f"v_sub_f32 v{G+3}, 0, v{G+3}")
    for i in range(5):
        for h_ in range(2): k.e(f"v_pk_fma_f32 {v(R+4*i+2*h_,2)}, {v(R+4*i+2*h_,2)}, {v(G+2,2)}, {v(G+2,2)} op_sel:[0,0,1] op_sel_hi:[1,0,1]")
        k.e(f"v_cvt_pk_bf16_f32 v{U+2*i}, v{R+4*i}, v{R+4*i+1}", f"v_cvt_pk_bf16_f32 v{U+2*i+1}, v{R+4*i+2}, v{R+4*i+3}", f"ds_write_b64 v{vI}, {v(U+2*i,2)} offset:{32*i}")
    if g1 == 1: k.e(signal(CNT1, 1024, 8, 12, 8))
    k.e("s_waitcnt lgkmcnt(0)")
    for r in range(3):
        for t in range(2): k.e(f"ds_read_b64_tr_b16 {v(R+4*r+2*t,2)}, v{vTR} offset:{64*r+4*t*160}")
    for r in range(3):
        k.e(f"s_waitcnt lgkmcnt({4-2*r})", san(R+4*r+3))
        if r == 2: k.e("s_mov_b32 exec_hi, 0")
        vm.emit([f"buffer_store_dwordx4 {v(R+4*r,4)}, v{vHN}, s[8:11], 0 offen offset:{512*r} sc1"], "hn")
    k.e("s_mov_b64 exec, -1", "STAMP0")
    if g1 == 2: k.e(signal(CNT1, 1024, 8, 12, 8))
    for q in range(4): k.e(([f"s_add_u32 s21, s66, {4*q}", "s_and_b32 s21, s21, 15"] if rot else [f"s_add_u32 s21, s14, {4*q}"]) + [f"s_mul_i32 s{80+q}, s21, {4*640*16}"])
    stream(max(0, left() - ask1))
    ask(CNT1, 1024, 72, 73, skip="s_cmp_ge_u32 s17, 30")
    stream(99)
    await_(True, 32, "p1")
    k.e("STAMP0")
    def rotoffs(srot):
        r = []
        for q in range(4):
            r += ([f"s_add_u32 s21, s{srot}, {4*q}", "s_and_b32 s21, s21, 15"] if rot else [f"s_add_u32 s21, s14, {4*q}"]) + [f"s_mul_i32 s{80+q}, s21, {4*640*16}"]
        return r
    def soff(j):
        if j < 4: return [], f"s{80+j}"
        return [f"s_add_u32 s23, s{80 + j % 4}, {(j >> 2)*16*4*640*16}"], "s23"
    class Fill:
        def __init__(s): s.q = []
        def add(s, ls): s.q += list(ls)
        def take(s, n):
            r = s.q[:n]; s.q = s.q[n:]; return r
    unitsD = [(c, j) for c in (1, 2, 3, 0) for j in range(16)]
    NSD = DD+1
    assert 4*NSD <= 84
    def ldD(u, raw=False):
        c, j = unitsD[u]; pre, so = soff(j)
        r = pre + [f"buffer_load_dwordx4 {v(BUF+4*(u % NSD),4)}, v{vB[c]}, s[48:51], {so} offen sc1"]
        return r if raw else vm.note(r, ("D", u))
    grpD = lambda u: [u] if u < cg else list(range(u, u+cg))
    headD = lambda u: u < 64 and (u < cg or u % cg == 0)
    chkD = lambda u: check(f"d{u}", [BUF+4*(x % NSD)+3 for x in grpD(u)], sum((ldD(x, True) for x in grpD(u)), []))
    for u in range(DD): k.e(ldD(u))
    drain1(); k.e("s_waitcnt lgkmcnt(0)")
    if not sw["w"]: sw["w"] = True; k.e(srd(44, 32, 2048*1536*2) + TT2(waddr(4096, 20, True)) + wrot(18, 4096))
    n2pre = W2.ni
    c1 = -2.0*math.sqrt(2.0/math.pi)*math.log2(math.e); c3 = c1*0.044715
    U = BUF + 84
    fl = Fill()
    fl.add([f"s_mov_b32 s58, {hex(f2u(c3))}", f"v_mov_b32 v{T[6]}, {hex(f2u(c1))}", f"s_mov_b32 s61, {4*640*16}"])
    for i in range(8): fl.add([f"v_lshlrev_b32 v{U+2*i}, 16, v{XB+i}", f"v_and_b32 v{U+2*i+1}, s56, v{XB+i}"])
    vm.wait(("D", 0)); k.e(chkD(0))
    for u, (c, j) in enumerate(unitsD):
        w_pre = vm.need(("D", grpD(u+1)[-1])) if headD(u+1) else []
        m = [f"v_mfma_f32_16x16x32_bf16 {v(acc(i,c),4)}, {a(16*j+4*i,4)}, {v(BUF+4*(u % NSD),4)}, " + ("0" if j == 0 else v(acc(i,c), 4)) for i in range(4)]
        f = ldD(u+DD) if u + DD < 64 else []
        if u >= 16 and 2 <= j < 6:
            pc = unitsD[u-16][0]; f = f + [f"ds_write_b128 v{vPW[pc-1]}, {v(acc(j-2,pc),4)} offset:{(j-2)*1024}"]
        if u == 48 + bD:
            k.e("s_waitcnt lgkmcnt(0)", "s_barrier")
            assert not fl.q
            for cc in range(1, 4):
                fl.add([f"ds_read_b128 {v(acc(i,cc),4)}, v{vPR} offset:{(cc-1)*5120+i*1024}" for i in range(4)])
            for cc in range(1, 4):
                fl.add([f"s_waitcnt lgkmcnt({(3-cc)*4})"] + [f"v_add_f32 v{U+i}, v{U+i}, v{ACC+20*cc+i}" for i in range(16)])
        f = f + fl.take(6 if u < 48 + bD else 9)
        if 49 <= u < 49 + n2pre: f = f + W2.drain_lines()
        if u >= 48 + bD and (u - 48 - bD) % dq == 0 and u + DD >= 64 and free and W2.ni < n2pre + wpre: f = f + W2.issue_lines()
        if headD(u+1):
            c_, b_ = chkD(u+1); k.e(m[0], w_pre, c_, m[1], b_, interleave(m[2:], f, lead=len(f)//3))
        else: k.e(interleave(m, f))
        if u == g2: k.e(signal(CNT2, 1280, 8, 70, 48))
    k.e("STAMP0", fl.take(999))
    k.e("s_nop 7")
    for p in range(2):
        R = ACC + 8*p; Z = ACC + 20 + 8*p
        for i in range(0, 8, 2): k.e(f"v_pk_add_f32 {v(R+i,2)}, {v(R+i,2)}, {v(U+8*p+i,2)}")
        for i in range(0, 8, 2): k.e(f"v_pk_mul_f32 {v(Z+i,2)}, {v(R+i,2)}, {v(R+i,2)}")
        for i in range(8): k.e(f"v_fma_f32 v{Z+i}, v{Z+i}, s58, v{T[6]}")
        for i in range(0, 8, 2): k.e(f"v_pk_mul_f32 {v(Z+i,2)}, {v(Z+i,2)}, {v(R+i,2)}")
        for i in range(8): k.e(f"v_exp_f32 v{Z+i}, v{Z+i}")
        for i in range(0, 8, 2): k.e(f"v_pk_add_f32 {v(Z+i,2)}, {v(Z+i,2)}, 1.0 op_sel_hi:[1,0]")
        for i in range(8): k.e(f"v_rcp_f32 v{Z+i}, v{Z+i}")
        k.e("s_nop 0")
        for i in range(0, 8, 2): k.e(f"v_pk_mul_f32 {v(R+i,2)}, {v(R+i,2)}, {v(Z+i,2)}")
        for i in range(4): k.e(f"v_cvt_pk_bf16_f32 v{ACC+40+4*p+i}, v{R+2*i}, v{R+2*i+1}")
        k.e(san(ACC+43+4*p))
        vm.emit([f"buffer_store_dwordx4 {v(ACC+40+4*p,4)}, v{vUS}, s[48:51], {'s61' if p else '0'} offen sc1"], "u")
        if g2 == 64 + p: k.e(signal(CNT2, 1280, 8, 70, 48))
    k.e("STAMP0")
    k.e(rotoffs(18))
    while free: k.e(W2.issue_lines())
    asked = False
    while W2.ni < 12:
        if W2.ni == 12 - pp[2]: ask(CNT2, 1280, 74, 75); asked = True
        k.e(W2.drain_lines(), "s_waitcnt lgkmcnt(0)", W2.issue_lines())
    if not asked: ask(CNT2, 1280, 74, 75)
    while W2.nd < 12 - late2: k.e(W2.drain_lines())
    await_(True, 24, "p2")
    k.e("STAMP0")
    unitsE = [(i, j) for i in range(5) for j in range(12)]
    NSE = DE+1
    assert 4*NSE <= 80
    U = BUF + 80
    def ldE(u, raw=False):
        i, j = unitsE[u]; pre, so = soff(j)
        r = pre + [f"buffer_load_dwordx4 {v(BUF+4*(u % NSE),4)}, v{vA}, s[8:11], {so} offen offset:{i*256} sc1"]
        return r if raw else vm.note(r, ("E", u))
    grpE = lambda u: [u] if u < cg else list(range(u, u+cg))
    headE = lambda u: u < 60 and (u < cg or u % cg == 0)
    chkE = lambda u: check(f"e{u}", [BUF+4*(x % NSE)+3 for x in grpE(u)], sum((ldE(x, True) for x in grpE(u)), []))
    for u in range(DE): k.e(ldE(u))
    while W2.nd < W2.n: k.e(W2.drain_lines())
    k.e("s_waitcnt lgkmcnt(0)")
    fl = Fill()
    fl.add(srd(52, 36, 2048*640*2) + [f"v_lshlrev_b32 v{XB2}, 16, v{XB2}", f"v_add_u32 v{T[2]}, s42, v{vL}"])
    for i in range(10): fl.add([f"v_lshlrev_b32 v{U+2*i}, 16, v{HK+i}", f"v_and_b32 v{U+2*i+1}, s56, v{HK+i}", f"v_add_f32 v{U+2*i}, v{U+2*i}, v{XB2}", f"v_add_f32 v{U+2*i+1}, v{U+2*i+1}, v{XB2}"])
    def fin(i): return [f"v_cvt_pk_bf16_f32 v{HK+2*i}, v{U+4*i}, v{U+4*i+1}", f"v_cvt_pk_bf16_f32 v{HK+2*i+1}, v{U+4*i+2}, v{U+4*i+3}", f"ds_write_b64 v{vI}, {v(HK+2*i,2)} offset:{32*i}"]
    vm.wait(("E", 0)); k.e(chkE(0))
    for u, (i, j) in enumerate(unitsE):
        w_pre = vm.need(("E", grpE(u+1)[-1])) if headE(u+1) else []
        m = [f"v_mfma_f32_16x16x32_bf16 {v(acc(i,c),4)}, {v(BUF+4*(u % NSE),4)}, {a(16*j+4*c,4)}, " + ("0" if j == 0 else v(acc(i,c), 4)) for c in (1, 2, 3, 0)]
        f = ldE(u+DE) if u + DE < 60 else []
        if i >= 1 and j == 2:
            f = f + [f"ds_write_b128 v{vPW[c-1]}, {v(acc(i-1,c),4)} offset:{(i-1)*1024}" for c in (1, 2, 3)]
            fl.add([f"v_add_f32 v{U+4*(i-1)+e}, v{U+4*(i-1)+e}, v{acc(i-1,0)+e}" for e in range(4)])
        if u == 48 + bE:
            k.e("s_waitcnt lgkmcnt(0)", "s_barrier")
            for ii in range(4): fl.add([f"ds_read_b128 {v(acc(ii,cc),4)}, v{vPR} offset:{(cc-1)*5120+ii*1024}" for cc in (1, 2, 3)])
            for ii in range(4): fl.add([f"s_waitcnt lgkmcnt({9-3*ii})"] + [f"v_add_f32 v{U+4*ii+e}, v{U+4*ii+e}, v{acc(ii,cc)+e}" for cc in (1, 2, 3) for e in range(4)])
            for ii in range(4): fl.add(fin(ii))
        f = f + fl.take(6 if u < 48 + bE else 10)
        if headE(u+1):
            c_, b_ = chkE(u+1); k.e(m[0], w_pre, c_, m[1], b_, interleave(m[2:], f, lead=len(f)//3))
        else: k.e(interleave(m, f))
    k.e("STAMP0", fl.take(999), "s_nop 4")
    k.e([f"ds_write_b128 v{vPW[c-1]}, {v(acc(4,c),4)} offset:4096" for c in (1, 2, 3)])
    k.e([f"v_pk_add_f32 {v(U+16+e,2)}, {v(U+16+e,2)}, {v(acc(4,0)+e,2)}" for e in (0, 2)], "s_waitcnt lgkmcnt(0)", "s_barrier")
    k.e([f"ds_read_b128 {v(acc(4,cc),4)}, v{vPR} offset:{(cc-1)*5120+4096}" for cc in (1, 2, 3)])
    for cc in (1, 2, 3): k.e(f"s_waitcnt lgkmcnt({3-cc})", [f"v_pk_add_f32 {v(U+16+e,2)}, {v(U+16+e,2)}, {v(acc(4,cc)+e,2)}" for e in (0, 2)])
    k.e(fin(4), "s_waitcnt lgkmcnt(0)")
    for r in range(3): k.e(f"ds_read_b128 {v(ACC+4*r,4)}, v{T[2]} offset:{1024*r}")
    for r in range(3):
        k.e(f"s_waitcnt lgkmcnt({2-r})")
        if r == 2: k.e("s_mov_b32 exec_hi, 0")
        k.e(f"buffer_store_dwordx4 {v(ACC+4*r,4)}, v{GO[r]}, s[52:55], s57 offen{OSC}")
    k.label("end"); k.e("s_endpgm")
    k.label("redo")
    k.e("s_waitcnt vmcnt(0) lgkmcnt(0)", "s_barrier", "s_mov_b32 s25, -1", "s_mov_b64 exec, s[26:27]")
    for j in range(4): k.e(f"v_mov_b32 v{Q2[j]}, 0")
    k.e("s_mov_b64 exec, -1")
    for j in range(4): k.e(f"v_mov_b32 v{MX[j]}, 0xff800000")
    k.e("s_mov_b32 s21, 0")
    k.label("mx")
    k.e(f"buffer_load_dwordx4 {v(K1[NB-1],4)}, v{vK1}, s[8:11], s21 offen{KS}", f"buffer_load_dwordx2 {v(K2[NB-1],2)}, v{vK2}, s[8:11], s21 offen{KS}", "s_waitcnt vmcnt(0)")
    for j in range(4):
        k.e(qk1(j % 2, NB-1, j), qk2(j % 2, NB-1, j), "s_nop 15")
        for i in range(0, 16, 2): k.e(f"v_max3_f32 v{MX[j]}, v{MX[j]}, v{Sx[j%2]+i}, v{Sx[j%2]+i+1}")
    k.e("s_add_u32 s21, s21, 512", f"s_cmp_lt_u32 s21, {64*512}", f"s_cbranch_scc1 {k.L('mx')}")
    for j in range(4):
        k.e(f"v_mov_b32 v{T[2]}, v{MX[j]}", "s_nop 1", f"v_permlane32_swap_b32 v{MX[j]}, v{T[2]}", "s_nop 1", f"v_max_f32 v{MX[j]}, v{MX[j]}, v{T[2]}")
    k.e(kvstart())
    for b in range(NB-1): k.e(burst(b))
    k.e(f"s_branch {k.L('setm')}")
    k.label("side1")
    XD = 8; SA = 100
    k.e("s_mov_b32 s3, 1", "s_load_dwordx2 s[84:85], s[0:1], 16", "s_lshl_b32 s81, s78, 2", "s_add_u32 s81, s81, s14",
        f"v_lshrrev_b32 v{T[0]}, 3, v0", f"v_mul_u32_u24 v{T[0]}, 1280, v{T[0]}", f"v_and_b32 v{T[1]}, 7, v0", f"v_lshl_add_u32 v120, v{T[1]}, 4, v{T[0]}",
        "v_bfe_u32 v9, v0, 3, 2", "v_lshrrev_b32 v10, 5, v0", "v_mul_u32_u24 v10, 20, v10", "v_add3_u32 v9, v9, v10, 16", "v_mul_u32_u24 v9, 1280, v9", f"v_lshl_add_u32 v9, v{T[1]}, 4, v9",
        "s_lshl_b32 s90, s14, 14", "s_waitcnt lgkmcnt(0)", srd(44, 6, 2048*640*2), srd(8, 4, WS_BYTES), f"s_mov_b32 s86, {640*640*2}", "s_mov_b32 s87, 0x00020000")
    k.e(f"v_lshlrev_b32 v121, 4, v0", "s_mov_b32 s24, 0x3f803f80")
    k.e([f"v_mov_b32 v{SA+i}, -1" for i in range(4)], [f"v_mov_b32 v{SA+4+i}, 0" for i in range(4)],
        f"v_mov_b32 v{SA+8}, s24", f"v_mov_b32 v{SA+9}, 0", f"v_mov_b32 v{SA+10}, s24", f"v_mov_b32 v{SA+11}, 0", [f"v_mov_b32 v{SA+12+i}, s24" for i in range(4)])
    k.e("s_lshl_b32 s21, s81, 11", f"s_add_u32 s22, s21, {XST}", [f"buffer_store_dwordx4 {v(SA,4)}, v121, s[8:11], s22 offen offset:{1024*i} sc1" for i in range(2)],
        f"s_add_u32 s22, s21, {CSP}", [f"buffer_store_dwordx4 {v(SA,4)}, v121, s[8:11], s22 offen offset:{1024*i} sc1" for i in range(2)],
        f"s_lshl_b32 s21, s81, {11+st4}", f"s_add_u32 s21, s21, {STATS}", [f"buffer_store_dwordx4 {v(SA,4)}, v121, s[8:11], s21 offen offset:{1024*i} sc1" for i in range(2+2*st4)],
        "s_lshl_b32 s21, s81, 10", f"s_add_u32 s21, s21, {CNT1}", f"buffer_store_dwordx4 {v(SA+4,4)}, v121, s[8:11], s21 offen sc1",
        "s_lshl_b32 s21, s81, 9", f"s_add_u32 s21, s21, {QK8+160*QP*16}", "s_mov_b32 exec_hi, 0", f"buffer_store_dwordx4 {v(SA+8,4)}, v121, s[8:11], s21 offen sc1",
        f"v_lshrrev_b32 v{T[0]}, 3, v0", f"v_mul_u32_u24 v{T[0]}, {VP-128}, v{T[0]}", f"v_add_u32 v{T[0]}, v{T[0]}, v121", f"s_mul_i32 s21, s81, {4*VP}", f"s_add_u32 s21, s21, {VT8+640*16}", f"buffer_store_dwordx4 {v(SA+12,4)}, v{T[0]}, s[8:11], s21 offen sc1", "s_mov_b64 exec, -1",
        "s_mov_b32 s54, 256", "s_mov_b32 s55, 0x00020000")
    k.e(statld, "s_cmp_lg_u32 s14, 0", "s_waitcnt vmcnt(3)", "s_barrier", f"s_cbranch_scc1 {k.L('par')}",
        f"v_mov_b32 v{FV}, 1", "s_mov_b64 exec, 1", f"buffer_atomic_add v{FV}, off, s[52:55], 0 sc1", "s_mov_b64 exec, -1", f"s_branch {k.L('par')}")
    k.label("side2")
    k.e("STAMP0", "v_bfe_u32 v13, v0, 2, 2", "v_lshlrev_b32 v13, 7, v13", f"v_lshl_add_u32 v13, v{g4}, 5, v13", "v_and_b32 v14, 3, v0", "v_lshl_add_u32 v13, v14, 3, v13", "v_add_u32 v13, s90, v13",
        "s_waitcnt vmcnt(0)", f"s_call_b64 s[92:93], {k.L('sub')}", statst)
    k.e("STAMP0")
    for rd in range(2):
        k.e(f"s_add_u32 s80, s81, {64*rd}", f"s_mul_hi_u32 s82, s80, {magic(10)}", "s_mul_i32 s83, s82, 10", "s_sub_u32 s83, s80, s83",
            f"s_mul_i32 s21, s82, {80*1280}", "s_sub_u32 s22, s82, 8", f"s_mul_i32 s22, s22, {320*1280}", "s_cmp_ge_u32 s82, 8", "s_cselect_b32 s21, s22, s21",
            f"s_mov_b32 s23, {8*1280}", f"s_mov_b32 s24, {12*1280}", f"s_cselect_b32 s23, {40*1280}, s23", f"s_cselect_b32 s24, {40*1280}, s24", "s_cselect_b64 vcc, -1, 0", "v_cndmask_b32 v8, v120, v9, vcc",
            "s_lshl_b32 s22, s83, 7", "s_add_u32 s21, s21, s22")
        for u in range(8):
            k.e(f"s_add_u32 m0, s90, {rd*8192+u*1024}", "s_nop 0", "buffer_load_dwordx4 v8, s[84:87], s21 offen lds", f"s_add_u32 s21, s21, s{23 + u % 2}")
        k.e("s_lshl_b32 s22, s83, 2", "v_lshrrev_b32 v12, 4, v0", "v_add_u32 v12, s22, v12", "v_mul_u32_u24 v10, 52, v12", "v_lshrrev_b32 v10, 8, v10", f"s_mov_b32 s22, {102400-5120}", "v_mul_lo_u32 v10, v10, s22",
            "v_lshl_add_u32 v10, v12, 10, v10", "v_and_b32 v12, 15, v0", f"v_lshl_add_u32 v{122+rd}, v12, 4, v10", f"s_mul_i32 s22, s82, {2*5120}", f"s_add_u32 s22, s22, {WO8}",
            "s_cmp_lt_u32 s80, 100", f"s_cselect_b32 s22, s22, {OOB}", f"v_add_u32 v{122+rd}, s22, v{122+rd}")
    k.e(f"s_call_b64 s[92:93], {k.L('spin')}")
    for u in range(16):
        for t in range(2): k.e(f"ds_read_b64_tr_b16 {v(20+4*u+2*t,2)}, v13 offset:{u*1024+t*512}")
    k.e(biasld, "s_mov_b32 s21, 5120", "s_waitcnt lgkmcnt(0)")
    for u in range(16): k.e(f"buffer_store_dwordx4 {v(20+4*u,4)}, v{122+u//8}, s[8:11], {'s21' if (u % 8) >= 4 else '0'} offen offset:{(u % 4)*256} sc1")
    k.e("STAMP0", "s_mov_b32 s21, 0", "s_mov_b32 s22, 32", "s_mov_b32 s23, 3", f"s_branch {k.L('asig')}")
    k.label("codeend")
    for s_ in stubs: k.e(s_)
    return k

KNAME = "sequential_preLN__mha_block__mixer_token_mlp__prompt_kernel"
G4 = [[0,4,1,2,8,3,5,6,7,9],[1,5,2,3,9,0,6,7,4,8],[2,6,3,0,1,7,4,5,8,9],[3,7,0,1,2,4,5,6,9,8]]
H4 = [[0,2,6,1,3,4,5,7,8,9],[1,3,7,0,2,4,5,6,8,9],[0,4,8,1,2,3,5,6,7,9],[1,5,9,0,2,3,4,6,7,8]]
def build(out=None, diag=None, **o):
    o.setdefault("order", H4); o.setdefault("s0", (2,0))
    ks = [kf(**o)]
    if out: open(out, "w").write(assemble_file(ks))
    if diag:
        ks[0].trace_v = 255; ks[0].stamp_trace = True
        open(diag, "w").write(assemble_file(ks, diag=True))
    return ks
if __name__ == "__main__":
    ks = build("v27.s", "diag.s", s0=(2,0))
    for k in ks: print(k.name, "vgpr", k.nv, "lds", k.lds, "lines", len(k.lines))
```

```python
import k_v27
from dsl import *
def empty(n, big):
    k = Kernel(f"e{n}_kernel", 256, 256, 163840 if big else 0); k.nv = 512 if big else 8; k.acc = 256 if big else None; k.e("s_endpgm"); return k
m = lambda: k_v27.build()[0]
W = lambda n, ks: open(f"cdna_kernels/{n}.s","w").write(assemble_file(ks))
W("l0", [m()]); W("l1", [empty(0, False), m()]); W("l2", [empty(0, True), m()]); W("l3", [m(), empty(0, False)]); W("l4", [m(), empty(0, True)])
k1 = empty(0, False); k1.grid = 1; k1.block = 64
W("l5", [k1, m()])
```

```python
from dsl import *
import math, struct
S=2048; D=640; F=1536
import os
VP=648*16
QP=int(os.environ.get('QP','2096'))
QK8=0; VT8=QK8+161*QP*16; O8=VT8+272*VP; HN8=O8+80*QP*16; U8=HN8+256*640*16
WO8=U8+192*640*16; STATS=WO8+80*640*16; XST=STATS+256*1024; CSP=XST+2048*64; CNT1=CSP+256*512; CNT2=CNT1+8*1024; CNT0=CNT1+20480; TK2=CNT1+20480; TK3=CNT1+24576; CNTH=CNT1+32768; WS_END=CNT1+65536; O5=O8+64*QP*16
WS_BYTES=268435456
def f2u(x): return struct.unpack("<I", struct.pack("<f", x))[0]
QSCALE = math.log2(math.e)/math.sqrt(20.0)
def magic(d): return (2**32 + d - 1)//d
def waveid(k, sdst, vtmp):
    k.e(f"v_lshrrev_b32 v{vtmp}, 6, v0", "s_nop 0", f"v_readfirstlane_b32 s{sdst}, v{vtmp}")


def ticket(k, sbase, off, stride_log2, swave, lds_addr, vt):
    k.e(f"s_cmp_lg_u32 s{swave}, 0", f"s_cbranch_scc1 {k.L('tkw')}",
        "s_getreg_b32 s90, hwreg(HW_REG_XCC_ID)", "s_and_b32 s90, s90, 7", "s_lshl_b32 s90, s90, 2", "s_lshr_b32 s91, s2, 6", "s_add_u32 s90, s90, s91",
        "s_mov_b64 exec, 1", f"v_mov_b32 v{vt[1]}, 1", "s_mov_b32 s92, 32")
    k.label("tkl")
    k.e(f"s_lshl_b32 s91, s90, {stride_log2}", f"s_add_u32 s91, s91, {off}", f"v_mov_b32 v{vt[0]}, s91",
        f"global_atomic_add v{vt[2]}, v{vt[0]}, v{vt[1]}, s[{sbase}:{sbase+1}] sc0 sc1", "s_waitcnt vmcnt(0)", f"v_readfirstlane_b32 s91, v{vt[2]}", "s_nop 3",
        "s_cmp_lt_u32 s91, 8", f"s_cbranch_scc1 {k.L('tkd')}", "s_add_u32 s90, s90, 1", "s_and_b32 s90, s90, 31", "s_sub_u32 s92, s92, 1", "s_cmp_lg_u32 s92, 0", f"s_cbranch_scc1 {k.L('tkl')}")
    k.label("tkd")
    k.e("s_and_b32 s91, s91, 7", "s_lshl_b32 s91, s91, 3", "s_and_b32 s92, s90, 3", "s_lshl_b32 s92, s92, 6", "s_or_b32 s91, s91, s92", "s_lshr_b32 s90, s90, 2", "s_or_b32 s91, s91, s90",
        f"v_mov_b32 v{vt[0]}, {lds_addr}", f"v_mov_b32 v{vt[1]}, s91", f"ds_write_b32 v{vt[0]}, v{vt[1]}", "s_mov_b64 exec, -1", "s_waitcnt lgkmcnt(0)")
    k.label("tkw")
    k.e("s_barrier", f"v_mov_b32 v{vt[0]}, {lds_addr}", f"ds_read_b32 v{vt[1]}, v{vt[0]}", "s_waitcnt lgkmcnt(0)", f"v_readfirstlane_b32 s2, v{vt[1]}", "s_nop 3")

class VM:
    def __init__(self, k): self.k = k; self.q = []
    def note(self, lines, tag):
        for l in lines:
            if l.startswith("buffer_"): self.q.append(tag)
        return lines
    def emit(self, lines, tag): self.k.e(self.note(lines, tag))
    def need(self, tag):
        idx = [i for i, t in enumerate(self.q) if t == tag]
        if not idx: return []
        n = len(self.q) - 1 - idx[-1]
        self.q = self.q[idx[-1]+1:]
        assert n <= 63
        return [f"s_waitcnt vmcnt({n})"]
    def wait(self, tag): self.k.e(self.need(tag))

def kf(order=None, wfl='', g0=0, g1=0, g2=63, blk='W Q e0 e1 e2 e3 B L c0 c1 e4 e5 e6 e7 R c2 c3 e8 e9 e10 e11 A S c4 c5 e12 e13 e14 e15 c6 c7', per=16, quiet=0, nper=None, NBX=0, chunk=False, pfpar=None, xoff=None, late1st=0, n1=8, s1w1=(0,50), s1w2=(50,100), l2w1=None, l2w2=None, cg=4, nE=0, nA=4, w0=70, wlast=110, s0n=2, mlast=108, drate=8, pp=(0,0,4), dq=2, cpf=16, pe=2, nofill=False, dpos=1, stp=0, tapD=0, tapE=0, cge=4, dlp=0, dl0=512, npfS=0, qmark=None, qlanes=64, qwaves=4, qn=8, base=0, btouch=True, nF=0, npfA=0, pfp=8, dcs=True, stc=0, ip=1, fp=6, vper=12, st4=False, pre0=2, kvsc=False, osc='', spread=True, tokmap=False, DD=14, DE=14, bD=7, bE=4, DCC=8, rot=True, s0=(2,2), wc=(12,15,18), s1=(3,1), w2n=2, ask1=2, s2=(3,), wpre=4, late1=2, late2=2, slp=0, pfl=16, krot=False):
    NB = 4; NG = 8
    PART = 0; RING = 86016; IMG = 151552; FLG = IMG + 2560
    k = Kernel(KNAME, 256, 256, 163840)
    KS = " sc1" if kvsc else ""; OSC = osc
    k.nv = 512; k.acc = 256
    OOB = 0x40000000
    R1 = 16//l2w1[0] if l2w1 else 1; R2 = 12//l2w2[0] if l2w2 else 1
    pa = Alloc(210, 255)
    XB = pa(8, 2); XB2 = pa(2)
    vW = [pa() for _ in range(4)]; vR = [pa() for _ in range(4)]; vPW = [pa() for _ in range(3)]
    vPR, vI, vL, vL2, vA, vC0, vC1, vSW, vSR, vTR, vHN, vUS = [pa() for _ in range(12)]
    vB = [pa() for _ in range(4)]; GO = [pa() for _ in range(3)]
    l16, g4 = pa(), pa()
    al = Alloc(1, 210)
    T = [al() for _ in range(7)]
    O = [al(16) for _ in range(4)]
    Sx = [al(16) for _ in range(2)]
    P = al(8)
    Q1 = [al(4) for _ in range(4)]; Q2 = [al(2) for _ in range(4)]
    K1 = [al(4) for _ in range(NB)]; K2 = [al(2) for _ in range(NB)]
    V = [al(8) for _ in range(NB)]
    vK1, vK2, vQ1, vQ2, PF, vWO = [al() for _ in range(6)]
    vV = [[al(), al()] for _ in range(NB)]
    MX = [al() for _ in range(4)]
    ACC = 8; BUF = 88; HK = BUF + 100
    acc = lambda i, c: ACC + 4*(5*c+i)

    def x8addr(vv, R, sb, off):
        return [f"v_mul_u32_u24 v{T[2]}, {R}, v{g4}", f"v_add3_u32 v{T[2]}, v{T[2]}, v{l16}, s{sb}", f"v_lshlrev_b32 v{vv}, 4, v{T[2]}", f"v_add_u32 v{vv}, {off}, v{vv}"]
    def stepcode(j, n, srot):
        if not rot or j >= (n & ~3): return [f"s_add_u32 s21, s14, {4*j}"]
        return [f"s_add_u32 s21, s{srot}, {4*j}", "s_and_b32 s21, s21, 15", f"s_add_u32 s21, s21, {4*(j & ~3)}"]
    def waddr(ld, sb, perm):
        r = [f"v_lshrrev_b32 v{T[2]}, 3, v0", f"v_mul_u32_u24 v{T[2]}, {ld}, v{T[2]}", f"s_lshl_b32 s22, s{sb}, 1", f"v_add_u32 v{T[2]}, s22, v{T[2]}", f"v_and_b32 v{T[3]}, 7, v0"]
        if perm:
            r += [f"v_lshlrev_b32 v{T[4]}, 1, v{g4}", f"v_xor_b32 v{T[3]}, v{T[3]}, v{T[4]}", f"v_lshl_add_u32 v{vW[0]}, v{T[3]}, 4, v{T[2]}"]
            r += [f"v_add_u32 v{vW[i]}, {i*(8*ld-1024)}, v{vW[0]}" for i in range(1, 4)]
        else:
            r += [f"v_bfe_u32 v{T[4]}, v0, 4, 1", f"v_lshlrev_b32 v{T[4]}, 1, v{T[4]}", f"v_xor_b32 v{T[3]}, v{T[3]}, v{T[4]}",
                  f"v_lshl_add_u32 v{vW[0]}, v{T[3]}, 4, v{T[2]}", f"v_xor_b32 v{vW[1]}, 64, v{vW[0]}",
                  f"v_add_u32 v{vW[2]}, {2*(8*ld-1024)}, v{vW[0]}", f"v_add_u32 v{vW[3]}, {3*(8*ld-1024)}, v{vW[1]}", f"v_add_u32 v{vW[1]}, {8*ld-1024}, v{vW[1]}"]
        return r
    def raddr(perm):
        if perm:
            r = [f"v_lshrrev_b32 v{T[2]}, 2, v0", f"v_lshlrev_b32 v{T[3]}, 7, v{T[2]}", f"v_bfe_u32 v{T[2]}, v0, 3, 2", f"v_lshl_add_u32 v{T[3]}, v{T[2]}, 5, v{T[3]}"]
        else:
            r = [f"v_bfe_u32 v{T[2]}, v0, 2, 2", f"v_lshl_add_u32 v{T[3]}, v{g4}, 3, v{T[2]}", f"v_lshlrev_b32 v{T[3]}, 7, v{T[3]}",
                 f"v_bfe_u32 v{T[2]}, v0, 3, 2", f"v_lshl_add_u32 v{T[3]}, v{T[2]}, 5, v{T[3]}"]
        r += [f"v_and_b32 v{T[2]}, 3, v0", f"v_lshl_add_u32 v{T[3]}, v{T[2]}, 3, v{T[3]}"]
        for c in range(4):
            if perm: r += [f"s_lshl_b32 s22, s{38+c}, 5", f"v_xor_b32 v{vR[c]}, s22, v{T[3]}", f"v_add_u32 v{vR[c]}, s15, v{vR[c]}"]
            else: r += [f"v_xor_b32 v{vR[c]}, {32*c}, v{T[3]}", f"v_add_u32 v{vR[c]}, s15, v{vR[c]}"]
        return r

    EX = IMG
    aa = Alloc(8, 168)
    accA = [[aa(16) for _ in range(2)] for _ in range(2)]
    cs = aa(16)
    xf = [[aa(4) for _ in range(2)] for _ in range(4)]
    wf0 = [aa(4) for _ in range(4)]; wf1 = [aa(4) for _ in range(4)]
    ones = aa(2)
    xa = [aa() for _ in range(4)]; wa = [aa() for _ in range(2)]
    vx = [aa() for _ in range(4)]; vw = [aa() for _ in range(4)]
    ep = xf[0][0]
    SV = 168; FV = 170; RS_ = 176
    statld = [f"buffer_load_dwordx4 {v(RS_+4*i,4)}, v{RS_+12+i//2}, s[44:47], s43 offen offset:{512*i}" for i in range(3)]
    assert vK1 >= 192
    k.label("code0")
    k.e("s_load_dwordx2 s[6:7], s[0:1], 0", "s_load_dwordx2 s[48:49], s[0:1], 8", "s_load_dwordx2 s[4:5], s[0:1], 80", "s_load_dwordx8 s[28:35], s[0:1], 32", "s_load_dwordx2 s[36:37], s[0:1], 64", "s_load_dwordx2 s[52:53], s[0:1], 72",
        "s_cmp_ge_u32 s2, 256", f"s_cbranch_scc1 {k.L('end')}")
    if cpf:
        k.e("s_getpc_b64 s[92:93]")
        k.label("pc")
        k.e("s_lshr_b32 s17, s2, 3", f"v_lshlrev_b32 v{T[1]}, 5, v0", f"v_add_lshl_u32 v{T[1]}, v{T[1]}, s17, 7", f"v_min_u32 v{T[1]}, {k.L('codeend')}-{k.L('pc')}-4, v{T[1]}",
            f"v_cmp_gt_u32 vcc, {cpf}, v0", "s_and_saveexec_b64 s[22:23], vcc", f"s_cbranch_execz {k.L('ncp')}", f"global_load_dword v191, v{T[1]}, s[92:93]")
        k.label("ncp"); k.e("s_mov_b64 exec, s[22:23]")
    waveid(k, 14, T[0])
    k.e("s_and_b32 s16, s2, 7", "s_lshr_b32 s17, s2, 3",
        "s_and_b32 s21, s17, 3", "s_and_b32 s22, s16, 1", "s_lshl_b32 s79, s22, 3", "s_lshr_b32 s23, s17, 2", "s_add_u32 s79, s79, s23",
        "s_lshl_b32 s22, s22, 1", "s_and_b32 s24, s17, 1", "s_add_u32 s22, s22, s24", "s_cmp_ge_u32 s17, 28", "s_cselect_b32 s21, s22, s21", "s_cselect_b32 s79, 7, s79",
        "s_lshr_b32 s78, s16, 1", "s_lshl_b32 s78, s78, 2", "s_add_u32 s78, s78, s21", "v_and_b32 v0, 63, v0",
        "s_cmp_ge_u32 s17, 30", "s_cselect_b32 s24, 15, s79", "s_lshl_b32 s91, s78, 4", "s_add_u32 s91, s91, s24", "s_lshl_b32 s91, s91, 2", "s_add_u32 s91, s91, s14",
        "s_mul_i32 s43, s91, 2560", f"v_lshrrev_b32 v{T[0]}, 5, v0", f"v_mul_u32_u24 v{T[0]}, {1280-512}, v{T[0]}", f"v_lshl_add_u32 v{RS_+12}, v0, 4, v{T[0]}",
        f"v_bfe_u32 v{T[0]}, v0, 4, 1", f"v_lshl_add_u32 v{RS_+13}, v{T[0]}, 30, v{RS_+12}",
        "s_cmp_ge_u32 s17, 30", f"s_cbranch_scc1 {k.L('side1')}")
    k.e("s_mov_b32 s3, 0", "s_add_u32 s21, s21, s23", f"s_and_b32 s21, s21, {len(order)-1}", "s_mov_b32 s81, s21")
    if xoff:
        order = [[(x + of) % 10 for x in o_] for of in xoff[1] for o_ in order]
        k.e(xoff[0], "s_lshl_b32 s22, s22, 2", "s_add_u32 s21, s21, s22")
    for g, o_ in enumerate(order):
        val = sum(x << (4*i) for i, x in enumerate(list(o_) + [15, 15, 15]))
        if g == 0: k.e(f"s_mov_b32 s82, {hex(val & 0xffffffff)}", f"s_mov_b32 s83, {hex(val >> 32)}")
        else: k.e(f"s_cmp_eq_u32 s21, {g}", f"s_cselect_b32 s82, {hex(val & 0xffffffff)}, s82", f"s_cselect_b32 s83, {hex(val >> 32)}, s83")
    k.e(f"v_lshrrev_b32 v{T[0]}, 3, v0", f"v_lshrrev_b32 v{T[1]}, 4, v0", f"v_and_b32 v{T[2]}, 7, v0",
        "s_lshl_b32 s21, s78, 7", "s_lshl_b32 s22, s14, 5", "s_add_u32 s21, s21, s22",
        f"v_add_u32 v{T[0]}, s21, v{T[0]}", f"v_mul_u32_u24 v{T[0]}, 1280, v{T[0]}",
        f"v_xor_b32 v{T[3]}, v{T[2]}, v{T[1]}", f"v_lshl_add_u32 v{vx[0]}, v{T[3]}, 4, v{T[0]}",
        f"v_xor_b32 v{T[3]}, 4, v{T[3]}", f"v_lshl_add_u32 v{vx[1]}, v{T[3]}, 4, v{T[0]}",
        f"v_add_u32 v{vx[2]}, {2*(8*1280-1024)}, v{vx[0]}", f"v_add_u32 v{vx[3]}, {3*(8*1280-1024)}, v{vx[1]}", f"v_add_u32 v{vx[1]}, {8*1280-1024}, v{vx[1]}")
    k.e("s_lshl_b32 s21, s14, 4", f"v_add_u32 v{T[0]}, s21, v{T[1]}", f"v_mul_u32_u24 v{T[0]}, 3840, v{T[0]}",
        f"v_bfe_u32 v{T[2]}, v0, 2, 2", f"v_xor_b32 v{T[2]}, v{T[2]}, v{T[1]}", f"v_lshl_add_u32 v{T[0]}, v{T[2]}, 6, v{T[0]}",
        f"v_and_b32 v{T[2]}, 3, v0", f"v_lshl_add_u32 v{T[0]}, v{T[2]}, 4, v{T[0]}", "s_lshl_b32 s21, s79, 8", f"v_add_u32 v{vw[0]}, s21, v{T[0]}")
    for i in range(1, 4): k.e(f"v_add_u32 v{vw[i]}, {i*(4*3840-1024)}, v{vw[0]}")
    va = VM(k)
    def dmax(p):
        return [f"s_bfe_u32 s21, s{82 + p//8}, {hex(0x40000 + 4*(p % 8))}", f"s_add_u32 m0, s86, {(p % 4)*16384}", "s_lshl_b32 s84, s21, 7", "s_mul_i32 s85, s21, 245760"], \
               [f"buffer_load_dwordx4 v{vx[i]}, s[44:47], s84 offen offset:{i*1024} lds" for i in range(4)]
    def dmaw(p):
        return [f"s_add_u32 m0, s86, {65536 + (p % 4)*16384}"], [f"buffer_load_dwordx4 v{vw[i]}, s[48:51], s85 offen offset:{i*1024} lds" for i in range(4)]
    def whole(f, p):
        a_, b_ = f(p); va.emit(a_ + ["s_nop 0"] + b_, p)
    shiftws = [f"s_add_u32 s4, s4, {base}", "s_addc_u32 s5, s5, 0"] if base else []
    k.e("s_lshl_b32 s86, s14, 12", "s_waitcnt lgkmcnt(0)", shiftws, srd(44, 6, 2048*640*2), f"s_mov_b32 s50, {640*1920*2}", "s_mov_b32 s51, 0x00020000")
    whole(dmax, 0); whole(dmaw, 0)
    if stp == 0: va.emit(statld, "stat")
    k.label("par")
    k.e(srd(8, 4, WS_END), "s_mov_b32 s54, 256", "s_mov_b32 s55, 0x00020000")
    k.e(f"v_and_b32 v{l16}, 15, v0", f"v_lshrrev_b32 v{g4}, 4, v0", f"v_lshlrev_b32 v{vL}, 4, v0", "s_lshr_b32 s12, s17, 2",
        "s_lshl_b32 s13, s16, 2", "s_and_b32 s18, s17, 3", "s_add_u32 s13, s13, s18", "s_add_u32 s18, s18, s12", "s_lshl_b32 s18, s18, 2", "s_add_u32 s18, s18, s14",
        "s_mul_i32 s19, s12, 80", "s_lshl_b32 s20, s13, 6", "s_lshl_b32 s63, s14, 4", "s_add_u32 s63, s63, s20",
        "s_mul_i32 s57, s63, 1280", "s_lshl_b32 s74, s19, 1", "s_add_u32 s57, s57, s74",
        f"s_mul_hi_u32 s74, s17, {magic(5)}", "s_mul_i32 s75, s74, 5", "s_sub_u32 s75, s17, s75",
        "s_and_b32 s70, s16, 1", "s_mul_i32 s70, s70, 5", "s_add_u32 s70, s70, s75", "s_lshl_b32 s65, s70, 6",
        "s_lshr_b32 s64, s16, 1", "s_mul_i32 s64, s64, 6", "s_add_u32 s64, s64, s74", "s_lshl_b32 s64, s64, 6",
        "s_add_u32 s66, s74, s75", "s_lshl_b32 s66, s66, 2", "s_add_u32 s66, s66, s14",
        "s_lshl_b32 s15, s14, 12", f"s_add_u32 s15, s15, {RING}", "s_mul_i32 s42, s14, 3072", f"s_add_u32 s42, s42, {IMG}")
    biasld = srd(24, 30, 3072) + ["s_lshl_b32 s23, s64, 1", f"v_lshlrev_b32 v{T[2]}, 3, v{g4}"] + \
        [f"buffer_load_dwordx2 {v(XB+2*i,2)}, v{T[2]}, s[24:27], s23 offen offset:{32*i}" for i in range(4)] + \
        srd(24, 34, 4096) + [f"v_lshlrev_b32 v{T[2]}, 1, v{l16}", "s_lshl_b32 s23, s63, 1", f"buffer_load_ushort v{XB2}, v{T[2]}, s[24:27], s23 offen"]
    l32, hf = T[0], T[1]
    vO1 = pa()
    k.e("s_and_b32 s61, s14, 1", "s_lshr_b32 s62, s14, 1", f"v_and_b32 v{l32}, 31, v0", f"v_lshrrev_b32 v{hf}, 5, v0")
    k.e("EARLY")
    k.e("s_cmp_eq_u32 s3, 1", f"s_cbranch_scc1 {k.L('side2')}")
    k.e(f"v_bfe_u32 v{T[2]}, v0, 1, 3", f"v_xor_b32 v{T[2]}, v{T[2]}, v{hf}",
        "s_lshl_b32 s21, s62, 6", f"v_add_u32 v{T[3]}, s21, v{l32}", f"v_lshlrev_b32 v{T[3]}, 7, v{T[3]}", f"v_lshl_add_u32 v{xa[0]}, v{T[2]}, 4, v{T[3]}")
    for ks in range(1, 4): k.e(f"v_xor_b32 v{xa[ks]}, {ks*32}, v{xa[0]}")
    k.e(f"v_bfe_u32 v{T[2]}, v0, 2, 2", f"v_lshl_add_u32 v{T[5]}, v{hf}, 3, v{T[2]}", f"v_lshlrev_b32 v{T[5]}, 8, v{T[5]}",
        "s_lshl_b32 s21, s61, 1", "s_add_u32 s21, s21, s62", f"v_xor_b32 v{T[2]}, s21, v{T[2]}", f"v_lshl_add_u32 v{T[5]}, v{T[2]}, 6, v{T[5]}",
        f"v_bfe_u32 v{T[2]}, v0, 4, 1", f"v_lshl_add_u32 v{T[5]}, v{T[2]}, 5, v{T[5]}", f"v_add_u32 v{T[5]}, 65536, v{T[5]}",
        f"v_and_b32 v{T[2]}, 3, v0",
        f"v_and_b32 v{T[3]}, 1, v0", f"v_lshlrev_b32 v{T[3]}, 1, v{T[3]}", f"v_bfe_u32 v{T[4]}, v0, 1, 1", f"v_or_b32 v{T[3]}, v{T[3]}, v{T[4]}",
        "s_cmp_ge_u32 s79, 10", "s_cselect_b64 vcc, -1, 0", f"v_cndmask_b32 v{T[2]}, v{T[3]}, v{T[2]}, vcc",
        f"v_lshl_add_u32 v{wa[0]}, v{T[2]}, 3, v{T[5]}", f"v_xor_b32 v{wa[1]}, 64, v{wa[0]}")
    z4 = xf[3][0]
    k.e([f"v_mov_b32 v{z4+i}, 0" for i in range(4)], "s_cmp_lt_u32 s81, 2" if dcs else "s_cmp_eq_u32 s81, s81", "s_cselect_b32 s21, 0x3f803f80, 0", f"v_mov_b32 v{ones}, s21", f"v_mov_b32 v{ones+1}, s21")
    if dcs:
        assert sorted(order[0][:3] + order[1][:3] + order[2][1:3] + order[3][1:3]) == list(range(10)) and not xoff
        k.e("s_lshr_b32 s21, s78, 2", "s_lshl_b32 s21, s21, 4", "s_add_u32 s21, s21, s79", "s_lshl_b32 s21, s21, 11", f"s_add_u32 s87, s21, {CSP}", "s_and_b32 s21, s78, 3", "s_lshl_b32 s21, s21, 9", "s_add_u32 s90, s87, s21",
            "s_lshl_b32 s21, s61, 6", "s_lshl_b32 s22, s62, 5", "s_add_u32 s21, s21, s22", f"v_add_lshl_u32 v{FV+1}, v{l32}, s21, 2", f"v_lshl_add_u32 v{FV+1}, v{hf}, 9, v{FV+1}")
    for r_ in (accA[0][0], accA[0][1], accA[1][0], accA[1][1], cs): k.e(f"v_mfma_f32_32x32x16_bf16 {v(r_,16)}, {v(z4,4)}, {v(z4,4)}, 0")
    k.e("s_lshl_b32 s21, s14, 5", f"v_add_u32 v{T[2]}, s21, v{l32}", f"v_lshlrev_b32 v{FV+2}, 6, v{T[2]}", f"v_lshlrev_b32 v{FV+3}, 2, v{T[2]}", f"v_add_u32 v{FV+3}, {EX}, v{FV+3}",
        "s_lshl_b32 s80, s78, 13", f"s_add_u32 s80, s80, {XST+8}")
    def reads(p, ks):
        sl = (p % 4)*16384
        r = [f"ds_read_b128 {v(xf[ks][0],4)}, v{xa[ks]} offset:{sl}"]
        for t in range(2): r.append(f"ds_read_b64_tr_b16 {v(wf0[ks]+2*t,2)}, v{wa[0]} offset:{sl+(16*ks+4*t)*256}")
        for t in range(2): r.append(f"ds_read_b64_tr_b16 {v(wf1[ks]+2*t,2)}, v{wa[1]} offset:{sl+(16*ks+4*t)*256}")
        r.append(f"ds_read_b128 {v(xf[ks][1],4)}, v{xa[ks]} offset:{sl+4096}")
        return r
    def mf(ks, isv):
        r = []
        for xs in range(2):
            for ws in range(2):
                W = wf0[ks] if ws == 0 else wf1[ks]
                A, B = (xf[ks][xs], W) if isv else (W, xf[ks][xs])
                r.append(f"v_mfma_f32_32x32x16_bf16 {v(accA[xs][ws],16)}, {v(A,4)}, {v(B,4)}, {v(accA[xs][ws],16)}")
        return r
    def m4(kss, p=0):
        if dcs and p > 2: return []
        return [f"v_mfma_f32_4x4x4_16b_bf16 {v(cs+4*(2*n_+t),4)}, {v(ones,2)}, {v(wf0[ks]+2*t,2)}, {v(cs+4*(2*n_+t),4)}" for n_, ks in enumerate(kss) for t in range(2)]
    WR = [84, 85, 86, 90]
    def wrot(srot, ld):
        r = []
        for q in range(4): r += ([f"s_add_u32 s23, s{srot}, {4*q}", "s_and_b32 s23, s23, 15"] if rot else [f"s_add_u32 s23, s14, {4*q}"]) + [f"s_mul_i32 s{WR[q]}, s23, {32*ld}"]
        return r
    def early(j):
        if j >= nE: return [], []
        return [f"s_add_u32 m0, s15, {[1, 2, 3, 0][j]*16384}"], [f"buffer_load_dwordx4 v{vW[i]}, s[48:51], s{WR[j]} offen offset:{i*1024} lds" for i in range(4)]
    pfA = ["s_mov_b32 s48, s28", "s_mov_b32 s49, s29", f"s_mov_b32 s50, {2048*1536*2}", "s_mov_b32 s51, 0x00020000"] if npfA or nF else []
    for q in range(npfA): pfA += [f"s_mov_b32 s22, {q*(2*6291456//n1)}", f"buffer_load_dword v191, v{PF}, s[48:51], s22 offen"]
    flagld = f"buffer_load_dword v{FV}, off, s[52:55], 0 sc1"
    statst = ["s_mov_b32 exec_lo, 15", "s_mov_b32 exec_hi, 15", f"buffer_store_dwordx4 {v(RS_,4)}, v{RS_+4}, s[8:11], s91 offen sc1", "s_mov_b64 exec, -1"]
    svld = [f"buffer_load_dwordx2 {v(SV,2)}, v{FV+2}, s[8:11], s80 offen sc1"]
    svbad = [f"v_cmp_eq_u32 vcc, -1, v{SV}"]
    if dcs:
        svld += [f"buffer_load_dword v{cs+4}, v{FV+1}, s[8:11], s87 offen sc1", f"buffer_load_dword v{cs+5}, v{FV+1}, s[8:11], s87 offen offset:1024 sc1"]
        svbad = [f"v_max3_u32 v{cs+6}, v{SV}, v{cs+4}, v{cs+5}", f"v_cmp_eq_u32 vcc, -1, v{cs+6}"]
    k.e("STAMP0")
    if late1st < 2: whole(dmax, 1)
    if late1st < 1: whole(dmaw, 1)
    if stp == 1: va.emit(statld, "stat")
    q0 = list(va.q)
    k.e("s_cmp_ge_u32 s79, 10", f"s_cbranch_scc1 {k.L('loopv')}")
    def loopA(isv):
        nm = "loopv" if isv else "loopq"
        k.label(nm)
        va.q = list(q0)
        qm = []
        if qmark:
            if not isv:
                k.e("s_lshl_b32 s21, s79, 4", "s_lshl_b32 s22, s61, 3", "s_add_u32 s21, s21, s22", f"v_add_u32 v190, s21, v{hf}", f"v_mul_u32_u24 v190, {QP}, v190",
                    "s_lshl_b32 s21, s78, 7", "s_lshl_b32 s22, s62, 6", "s_add_u32 s21, s21, s22", f"v_add3_u32 v190, v190, s21, v{l32}", "v_lshlrev_b32 v190, 4, v190")
                qm = [[f"s_mov_b32 s22, {QK8 + g_*32*QP}", f"buffer_store_dwordx4 a[0:3], v190, s[8:11], s22 offen offset:{xs*512} sc1"] for g_ in range(4) for xs in range(2)]
            else:
                k.e("s_lshl_b32 s21, s78, 4", "s_lshl_b32 s22, s62, 3", "s_add_u32 s21, s21, s22", f"v_add_u32 v190, s21, v{hf}", "v_mul_u32_u24 v190, 648, v190",
                    "s_sub_u32 s21, s79, 10", "s_lshl_b32 s21, s21, 7", "s_lshl_b32 s22, s61, 6", "s_add_u32 s21, s21, s22", f"v_add3_u32 v190, v190, s21, v{l32}", "v_lshlrev_b32 v190, 4, v190")
                qm = [[f"s_mov_b32 s22, {VT8 + g_*2*VP}", f"buffer_store_dwordx4 a[0:3], v190, s[8:11], s22 offen offset:{b_*512} sc1"] for g_ in range(4) for b_ in range(2)]
            k.e([f"v_accvgpr_write_b32 a{i}, -1" for i in range(4)])
        if qmark:
            k.e(f"s_cmp_lt_u32 s14, {qwaves}", f"s_cselect_b32 s21, {qlanes}, 0", "v_cmp_gt_u32 vcc, s21, v0", f"v_mov_b32 v{T[2]}, {OOB}", "s_nop 0", f"v_cndmask_b32 v190, v{T[2]}, v190, vcc")
            qm = qm[:qn]
        va.wait(0)
        k.e("s_barrier", "STAMP0", reads(0, 0), reads(0, 1))
        if late1st >= 2: whole(dmax, 1)
        if late1st >= 1: whole(dmaw, 1)
        if stp == 2: va.emit(statld, "stat")
        whole(dmax, 2)
        def kstep(ks, rd, pre, dm, tag, mid=(), w=6, mtag=None):
            m = mf(ks, isv)
            d0, d1 = (dm[:1], dm[1:]) if dpos else ([], dm)
            va.note(pre, tag); va.note(d0, tag); va.note(list(mid), mtag); va.note(d1, tag)
            k.e(f"s_waitcnt lgkmcnt({w})", m[0], rd[0:2], pre[:2], m[1], rd[2:4], pre[2:], d0, m[2], rd[4:6], list(mid), m[3], d1)
        assert dcs and nE == 0 and fp <= 7
        QF = [72, 76, 80, 84, 176, 180, 184, 188]; OQ = [160, 164]
        qr = lambda Q, r: Q[r//4] + r % 4
        for p in range(9):
            pw, dw = dmaw(p+2) if p+2 < 10 else ([], [])
            px, dx = dmax(p+3) if p+3 < 10 else ([], [])
            x0 = [f"v_mov_b32 v{ones}, 0x3f803f80", f"v_mov_b32 v{ones+1}, 0x3f803f80"] if p == 1 else []
            x1 = []
            if p == 3:
                x0 = [f"v_add_f32 v{cs}, v{cs}, v{cs+4}", f"v_add_f32 v{cs+8}, v{cs+8}, v{cs+12}", f"v_add_f32 v{cs}, v{cs}, v{cs+8}", f"v_mov_b32 v{cs+1}, v{cs}"]
                x1 = [f"v_permlane32_swap_b32 v{cs}, v{cs+1}", "s_nop 0", f"v_add_f32 v{cs}, v{cs}, v{cs+1}", f"v_min_u32 v{cs}, -2, v{cs}"]
            if p == 8:
                m = mf(0, isv); rd = reads(p, 2)
                k.e("s_waitcnt lgkmcnt(6)", m[0], rd[0:3], "s_cmp_lt_u32 s79, 5", f"s_cselect_b32 s21, {hex(f2u(QSCALE))}, 1.0", m[1], rd[3:6], va.need("sv"), svbad, m[2],
                    f"s_cbranch_vccz {k.L(nm+'j')}", f"s_call_b64 s[92:93], {k.L('spin2')}", k.L(nm+'j') + ":",
                    f"v_add_f32 v{cs}, v{cs+4}, v{cs+5}", f"v_mul_f32 v{SV}, s21, v{SV}", f"v_mov_b32 v{T[3]}, v{cs}", f"v_mul_f32 v{SV+1}, s21, v{SV+1}", m[3],
                    f"ds_write_b32 v{FV+3}, v{SV}", f"v_permlane32_swap_b32 v{cs}, v{T[3]}", f"ds_write_b32 v{FV+3}, v{SV+1} offset:512", f"v_and_b32 v{T[2]}, 0x1ff, v{FV+1}")
                m = mf(1, isv); rd = reads(p, 3)
                k.e("s_waitcnt lgkmcnt(8)", m[0], f"v_add_f32 v{cs}, v{cs}, v{T[3]}", f"v_add_u32 v{T[2]}, {EX}, v{T[2]}", f"ds_write_b32 v{T[2]}, v{cs} offset:1024", "s_lshl_b32 s23, s62, 6")
                if not isv:
                    ad = [f"v_add_lshl_u32 v{T[3]}, v{l32}, s23, 2", f"v_add_u32 v{T[3]}, {EX}, v{T[3]}", f"v_add_u32 v{T[4]}, 128, v{T[3]}",
                          "s_lshl_b32 s21, s61, 8", "s_lshl_b32 s22, s62, 7", "s_add_u32 s21, s21, s22", f"s_add_u32 s21, s21, {EX}", f"v_lshl_add_u32 v{T[5]}, v{hf}, 4, s21", f"v_xor_b32 v{T[6]}, 128, v{T[5]}"]
                else:
                    ad = [f"v_xor_b32 v{T[4]}, 128, v{T[2]}", "s_lshl_b32 s21, s23, 2", f"s_add_u32 s21, s21, {EX}", f"v_lshl_add_u32 v{T[5]}, v{hf}, 4, s21"]
                k.e(m[1], rd[0:3], ad[:3], m[2], rd[3:6], ad[3:6], m[3], ad[6:], "s_waitcnt lgkmcnt(6)")
            else:
                kstep(0, reads(p, 2), pw, dw[:2], p+2, mid=x0)
                kstep(1, reads(p, 3), x1, dw[2:], p+2, mid=m4((0, 1), p))
                if p == 3: va.emit(["s_mov_b32 exec_hi, 0", f"buffer_store_dword v{cs}, v{FV+1}, s[8:11], s90 offen sc1", "s_mov_b64 exec, -1"], "cs")
            if p == stc:
                va.wait("stat"); k.e(f"s_call_b64 s[92:93], {k.L('sub')}")
            if p == ip+1: va.wait("flag")
            va.wait(p+1)
            k.e("s_barrier")
            if p == 8: break
            ex, et = ([flagld], "flag") if p == ip else ((svld, "sv") if p == fp else ([], None))
            kstep(2, reads(p+1, 0), px if p < 7 else biasld[:6], dx[:2], p+3, mid=ex, mtag=et)
            if qmark and p >= qmark[0]:
                for _ in range(qmark[1]):
                    if qm: va.emit(qm.pop(0), "qm")
            if p == ip+1:
                va.emit([f"v_cmp_gt_u32 vcc, 16, v{FV}", f"s_cbranch_vccz {k.L(nm+'i')}", f"s_call_b64 s[92:93], {k.L('spin')}", k.L(nm+'i') + ":"] + statst, "st")
            if p == 7: kstep(3, reads(p+1, 1), biasld[6:10], biasld[14:], "bias", mid=biasld[10:14], mtag="bias")
            else: kstep(3, reads(p+1, 1), [], dx[2:], p+3, mid=m4((2, 3), p))
        if not isv:
            RM = [174, 152]; C = [QF[:4], QF[4:]]
            co = [f"ds_read2st64_b32 {v(RM[0],2)}, v{T[3]} offset0:0 offset1:2", f"ds_read2st64_b32 {v(RM[1],2)}, v{T[4]} offset0:0 offset1:2"] + \
                 [f"ds_read_b128 {v(C[ws][q],4)}, v{T[5+ws]} offset:{1024+q*32}" for ws in range(2) for q in range(4)]
            sa = ["s_lshl_b32 s21, s79, 4", "s_lshl_b32 s22, s61, 3", "s_add_u32 s21, s21, s22", f"v_add_u32 v{T[2]}, s21, v{hf}", f"v_mul_u32_u24 v{T[2]}, {QP}, v{T[2]}",
                  "s_lshl_b32 s21, s78, 7", "s_add_u32 s21, s21, s23", f"v_add3_u32 v{T[2]}, v{T[2]}, s21, v{l32}", f"v_lshlrev_b32 v{T[2]}, 4, v{T[2]}", f"s_mul_i32 s43, s62, {64*QP}", f"s_sub_u32 s22, {64*QP}, s43"]
            tiles = [(0, 0), (1, 0), (0, 1), (1, 1)]
        else:
            Cn = 174; RR = [QF[:4], [xf[q][0] for q in range(4)]]; MM = [QF[4:], [wf0[q] for q in range(4)]]
            co = [f"ds_read_b32 v{Cn}, v{T[2]} offset:1024", f"ds_read_b32 v{Cn+1}, v{T[4]} offset:1024"] + \
                 [f"ds_read_b128 {v(RR[0][q],4)}, v{T[5]} offset:{q*32}" for q in range(4)] + [f"ds_read_b128 {v(MM[0][q],4)}, v{T[5]} offset:{512+q*32}" for q in range(4)]
            sa = ["s_lshl_b32 s21, s78, 4", "s_lshl_b32 s22, s62, 3", "s_add_u32 s21, s21, s22", f"v_add_u32 v{T[3]}, s21, v{hf}", f"v_mul_u32_u24 v{T[3]}, 648, v{T[3]}",
                  "s_sub_u32 s21, s79, 10", "s_lshl_b32 s21, s21, 7", "s_lshl_b32 s22, s61, 6", "s_add_u32 s21, s21, s22", f"v_add3_u32 v{T[3]}, v{T[3]}, s21, v{l32}", f"v_lshlrev_b32 v{T[3]}, 4, v{T[3]}",
                  "s_lshl_b32 s43, s62, 9", "s_xor_b32 s22, s43, 512"]
            tiles = [(0, 0), (0, 1), (1, 0), (1, 1)]
        def epi(xs, ws, pk, OQ_):
            A = accA[xs][ws]; r_ = []
            for p in range(2):
                o = OQ_[p]
                for j in range(0, 8, 2):
                    r = 8*p+j
                    if not isv:
                        if pk: r_ += [f"v_pk_mul_f32 {v(A+r,2)}, {v(A+r,2)}, {v(RM[xs],2)} op_sel_hi:[1,0]", f"v_pk_fma_f32 {v(A+r,2)}, {v(qr(C[ws],r),2)}, {v(RM[xs],2)}, {v(A+r,2)} op_sel:[0,1,0] op_sel_hi:[1,1,1]"]
                        else:
                            for e in (r, r+1): r_ += [f"v_mul_f32 v{A+e}, v{A+e}, v{RM[xs]}", f"v_fmac_f32 v{A+e}, v{qr(C[ws],e)}, v{RM[xs]+1}"]
                    else:
                        if pk: r_ += [f"v_pk_mul_f32 {v(A+r,2)}, {v(A+r,2)}, {v(qr(RR[xs],r),2)}", f"v_pk_fma_f32 {v(A+r,2)}, {v(qr(MM[xs],r),2)}, {v(Cn,2)}, {v(A+r,2)} op_sel:[0,{ws},0] op_sel_hi:[1,{ws},1]"]
                        else:
                            for e in (r, r+1): r_ += [f"v_mul_f32 v{A+e}, v{A+e}, v{qr(RR[xs],e)}", f"v_fmac_f32 v{A+e}, v{qr(MM[xs],e)}, v{Cn+ws}"]
                    r_.append(f"v_cvt_pk_bf16_f32 v{o+j//2}, v{A+r}, v{A+r+1}")
                if not isv: r_ += [f"s_add_u32 s21, s{22 if ws else 43}, {QK8 + p*32*QP}", f"buffer_store_dwordx4 {v(o,4)}, v{T[2]}, s[8:11], s21 offen offset:{xs*512} sc1"]
                else: r_ += [f"s_add_u32 s21, s{22 if ws else 43}, {VT8 + p*2*VP + xs*4*VP}", f"buffer_store_dwordx4 {v(o,4)}, v{T[3]}, s[8:11], s21 offen sc1"]
            return r_
        m = mf(2, isv); rd = reads(9, 0)
        k.e(m[0], rd[0:3], m[1], rd[3:6], m[2], "s_waitcnt lgkmcnt(6)", co[0:3], m[3], co[3:5])
        m = mf(3, isv); rd = reads(9, 1)
        k.e(m[0], rd[0:3], sa[:2], m[1], "s_waitcnt lgkmcnt(8)", rd[3:6], sa[2:4], m[2], co[5:8], sa[4:6], m[3], "s_waitcnt lgkmcnt(9)", co[8:], sa[6:8])
        mt = lambda t_, ks: mf(ks, isv)[2*tiles[t_][0] + tiles[t_][1]]
        r2 = reads(9, 2); r3 = reads(9, 3)
        k.e(mt(0, 0), r2[:4], sa[8:10], "s_waitcnt lgkmcnt(9)", mt(0, 1), r2[4:], r3[:2], sa[10:], mt(1, 0), "s_waitcnt lgkmcnt(8)", r3[2:], mt(1, 1),
            "s_waitcnt lgkmcnt(6)", mt(0, 2), "s_waitcnt lgkmcnt(0)", mt(0, 3), mt(1, 2), mt(1, 3))
        e01 = ["s_nop 7"] + epi(*tiles[0], False, OQ) + epi(*tiles[1], False, OQ)
        late = [[], []]
        if isv: late = [[f"ds_read_b128 {v(RR[1][q],4)}, v{T[5]} offset:{128+q*32}" for q in range(4)], [f"ds_read_b128 {v(MM[1][q],4)}, v{T[5]} offset:{640+q*32}" for q in range(4)]]
        for n_ in range(8):
            k.e(mt(2 + n_//4, n_ % 4))
            if n_ == 0: k.e(late[0] or ["s_nop 1"])
            if n_ == 3: k.e(late[1])
            k.e(e01[:vper]); e01 = e01[vper:]
        k.e("STAMP0", e01, "s_waitcnt lgkmcnt(0)", epi(*tiles[2], True, OQ), epi(*tiles[3], True, OQ))
        if not isv: k.e(f"s_branch {k.L('adone')}")
    loopA(False)
    k.label("sub")
    c = hex(f2u(1.0/640)); e = hex(f2u(1e-5))
    k.e("s_mov_b32 s24, 0x3f803f80", [f"v_mov_b32 v{T[2+i]}, 0" for i in range(4)])
    for d in range(12): k.e(f"v_dot2c_f32_bf16 v{T[2+2*(d%2)]}, s24, v{RS_+d}", f"v_dot2c_f32_bf16 v{T[3+2*(d%2)]}, v{RS_+d}, v{RS_+d}")
    k.e("s_nop 2", f"v_add_f32 v{RS_}, v{T[2]}, v{T[4]}", f"v_add_f32 v{RS_+1}, v{T[3]}, v{T[5]}", "s_nop 0")
    for ctl in ("quad_perm:[1,0,3,2]", "quad_perm:[2,3,0,1]", "row_half_mirror", "row_mirror"):
        k.e(f"v_add_f32_dpp v{RS_}, v{RS_}, v{RS_} {ctl} row_mask:0xf bank_mask:0xf", f"v_add_f32_dpp v{RS_+1}, v{RS_+1}, v{RS_+1} {ctl} row_mask:0xf bank_mask:0xf", "s_nop 0")
    k.e(f"v_mov_b32 v{RS_+2}, v{RS_}", f"v_mov_b32 v{RS_+3}, v{RS_+1}", "s_nop 0", f"v_permlane16_swap_b32 v{RS_}, v{RS_+2}", f"v_permlane16_swap_b32 v{RS_+1}, v{RS_+3}", "s_nop 0",
        f"v_add_f32 v{RS_}, v{RS_}, v{RS_+2}", f"v_add_f32 v{RS_+1}, v{RS_+1}, v{RS_+3}",
        f"v_mul_f32 v{RS_}, {c}, v{RS_}", f"v_mul_f32 v{RS_+1}, {c}, v{RS_+1}", f"v_fma_f32 v{RS_+1}, -v{RS_}, v{RS_}, v{RS_+1}", f"v_max_f32 v{RS_+1}, 0, v{RS_+1}", f"v_add_f32 v{RS_+1}, {e}, v{RS_+1}",
        f"v_rsq_f32 v{RS_+2}, v{RS_+1}", f"v_and_b32 v{T[2]}, 3, v0", f"v_mul_f32 v{RS_+3}, v{RS_}, v{RS_+2}", f"v_sub_f32 v{RS_+3}, 0, v{RS_+3}",
        f"v_lshlrev_b32 v{T[2]}, 4, v{T[2]}", f"v_lshl_add_u32 v{RS_+4}, v{hf}, 6, v{T[2]}", f"v_min_u32 v{RS_+2}, -2, v{RS_+2}",
        "s_lshl_b32 s91, s91, 7", f"s_add_u32 s91, s91, {XST}")
    k.e("s_setpc_b64 s[92:93]")
    for nm_, ld_, bad_ in (("spin", flagld, f"v_cmp_gt_u32 vcc, 16, v{FV}"), ("spin2", svld, svbad)):
        k.label(nm_)
        k.e("s_mov_b32 s23, 0x200000")
        k.label(nm_+"h")
        k.e("s_sleep 8" if nm_ == "spin" else [], ld_, "s_sub_u32 s23, s23, 1", "s_waitcnt vmcnt(0)", f"s_cbranch_scc1 {k.L(nm_+'i')}", bad_, f"s_cbranch_vccnz {k.L(nm_+'h')}")
        k.label(nm_+"i")
        k.e("s_setpc_b64 s[92:93]")
    loopA(True)
    k.label("adone")
    k.e(early(3)[0], "s_nop 0", early(3)[1])
    k.e(f"s_mul_hi_u32 s23, s79, {magic(5)}", "s_mul_i32 s21, s23, 5", "s_sub_u32 s21, s79, s21", "s_lshl_b32 s21, s21, 7", "s_add_u32 s22, s21, 127",
        f"s_mul_hi_u32 s21, s21, {magic(20)}", f"s_mul_hi_u32 s22, s22, {magic(20)}", "s_sub_u32 s22, s22, s21", "s_add_u32 s22, s22, 1")
    k.label("asig")
    k.e("s_mov_b32 s3, 0")
    def kvstart(): return ["s_lshl_b32 s21, s62, 14", f"s_mul_i32 s22, s62, {128*VP}"]
    def zeroO():
        return [f"v_mov_b32 v{P+i}, 0" for i in range(4, 8)] + [f"v_mov_b32 v{V[NB-1]+i}, 0" for i in range(4, 8)] + \
               [f"v_mfma_f32_32x32x16_bf16 {v(O[j],16)}, {v(P+4,4)}, {v(P+4,4)}, 0" for j in range(4)]
    NBT = NB + NBX
    def rK1(b): return v(K1[b], 4) if b < NB else a(176 + 16*(b-NB), 4)
    def rK2(b): return v(K2[b], 2) if b < NB else a(180 + 16*(b-NB), 2)
    def rV(b, h_): return v(V[b]+4*h_, 4) if b < NB else a(184 + 16*(b-NB) + 4*h_, 4)
    def burstx(tile):
        b = tile % NBT; g_ = tile % 4
        return [f"buffer_load_dwordx4 {rK1(b)}, v{vK1}, s[8:11], s21 offen offset:{512*g_}{KS}", f"buffer_load_dwordx2 {rK2(b)}, v{vK2}, s[8:11], s21 offen offset:{512*g_}{KS}",
                f"buffer_load_dwordx4 {rV(b,0)}, v{vV[g_][0]}, s[8:11], s22 offen{KS}", f"buffer_load_dwordx4 {rV(b,1)}, v{vV[g_][1]}, s[8:11], s22 offen{KS}"]
    def burst(b):
        return [f"buffer_load_dwordx4 {v(K1[b],4)}, v{vK1}, s[8:11], s21 offen offset:{512*b}{KS}", f"buffer_load_dwordx2 {v(K2[b],2)}, v{vK2}, s[8:11], s21 offen offset:{512*b}{KS}",
                f"buffer_load_dwordx4 {v(V[b],4)}, v{vV[b][0]}, s[8:11], s22 offen{KS}", f"buffer_load_dwordx4 {v(V[b]+4,4)}, v{vV[b][1]}, s[8:11], s22 offen{KS}"]
    k.e("STAMP0", "s_lshl_b32 s21, s21, 9", "s_lshl_b32 s23, s23, 7", "s_add_u32 s21, s21, s23", f"s_add_u32 s80, s21, {CNTH}", "s_bfm_b64 s[82:83], s22, 0")
    n_l0 = len(k.lines)
    if tokmap: k.e("s_mov_b32 s68, s17", "s_mov_b32 s69, s16")
    else: k.e("s_lshl_b32 s68, s16, 2", "s_and_b32 s69, s17, 3", "s_add_u32 s68, s68, s69", "s_lshr_b32 s69, s2, 5")
    k.e("s_and_b32 s21, s68, 1", "s_lshr_b32 s71, s68, 1", "s_mul_i32 s71, s71, 5", "s_mul_i32 s72, s21, 3", "s_add_u32 s72, s72, s71",
        f"v_and_b32 v{l32}, 31, v0", f"v_lshrrev_b32 v{hf}, 5, v0", "v_cmp_gt_u32 vcc, 32, v0",
        "s_lshl_b32 s73, s69, 8", "s_lshl_b32 s74, s61, 7", "s_add_u32 s73, s73, s74",
        f"v_add_u32 v{T[2]}, s72, v{hf}", f"v_mul_u32_u24 v{T[2]}, {QP}, v{T[2]}", f"v_add_u32 v{T[2]}, v{T[2]}, v{l32}",
        f"v_add_lshl_u32 v{vQ1}, v{T[2]}, s73, 4", f"s_mov_b32 s74, {80*QP}", f"v_add_lshl_u32 v{vK1}, v{T[2]}, s74, 4",
        "s_add_u32 s74, s71, 2", f"s_mul_i32 s74, s74, {16*QP}", "s_lshl_b32 s75, s21, 3", "s_add_u32 s74, s74, s75",
        f"v_lshlrev_b32 v{T[3]}, 4, v{l32}",
        "s_lshl_b32 s75, s73, 4", "s_add_u32 s75, s75, s74", f"v_add_u32 v{T[4]}, s75, v{T[3]}", f"v_mov_b32 v{T[5]}, {OOB}", f"v_cndmask_b32 v{vQ2}, v{T[5]}, v{T[4]}, vcc",
        f"s_add_u32 s74, s74, {80*QP*16}", f"v_mov_b32 v{T[4]}, s74", f"v_mov_b32 v{T[6]}, {160*QP*16}", f"v_cndmask_b32 v{T[4]}, v{T[6]}, v{T[4]}, vcc", f"v_add_u32 v{vK2}, v{T[4]}, v{T[3]}",
        "s_lshl_b32 s59, s62, 10")
    k.e(f"v_bfe_u32 v{T[2]}, v0, 2, 1", f"v_lshlrev_b32 v{T[2]}, 3, v{T[2]}", f"v_bfe_u32 v{T[3]}, v0, 3, 1", f"v_lshl_add_u32 v{T[2]}, v{T[3]}, 2, v{T[2]}",
        f"v_and_b32 v{T[3]}, 3, v0", f"v_add_u32 v{T[2]}, v{T[2]}, v{T[3]}",
        f"v_cmp_gt_u32 vcc, 16, v{l32}", f"v_cmp_eq_u32 s[92:93], 20, v{l32}", f"v_cmp_lt_u32 s[22:23], 20, v{l32}", "s_mul_i32 s74, s68, 20", f"v_cndmask_b32 v{T[2]}, v{l32}, v{T[2]}, vcc",
        f"v_add_u32 v{T[2]}, s74, v{T[2]}", f"v_mov_b32 v{T[3]}, 640", f"v_cndmask_b32 v{T[2]}, v{T[2]}, v{T[3]}, s[92:93]",
        f"v_mul_u32_u24 v{T[4]}, 648, v{hf}", f"v_add_lshl_u32 v{T[2]}, v{T[2]}, v{T[4]}, 4", f"v_cndmask_b32 v{T[2]}, v{T[2]}, v{T[5]}, s[22:23]")
    for b in range(NB): k.e(f"v_add_u32 v{vV[b][0]}, {VT8 + 4*b*VP}, v{T[2]}", f"v_add_u32 v{vV[b][1]}, {VT8 + (4*b+2)*VP}, v{T[2]}")
    k.e("s_mul_i32 s74, s12, 102400", f"s_add_u32 s74, s74, {WO8}", f"v_add_u32 v{vWO}, s74, v{vL}", "s_mul_i32 s67, s14, 25600",
        "s_lshl_b32 s74, s68, 1", f"v_add_u32 v{T[2]}, s74, v{hf}", f"v_mul_u32_u24 v{T[2]}, {QP}, v{T[2]}", f"v_add_u32 v{T[2]}, v{T[2]}, v{l32}", f"v_add_lshl_u32 v{vO1}, v{T[2]}, s73, 4", f"v_add_u32 v{vO1}, {O8}, v{vO1}",
        "s_lshr_b32 s74, s73, 6", "s_add_u32 s74, s74, s62", "s_lshl_b32 s60, s68, 5", "s_add_u32 s60, s60, s74", "s_lshl_b32 s60, s60, 9", f"s_add_u32 s60, s60, {O5}",
        "s_lshl_b32 s74, s2, 2", "s_add_u32 s74, s74, s14", f"s_mul_i32 s74, s74, {96//n1*128}", f"v_lshlrev_b32 v{T[3]}, 7, v0", f"v_add_u32 v{T[3]}, s74, v{T[3]}", f"v_cmp_gt_u32 vcc, {96//n1}, v0",
        "s_mov_b32 s56, 0xffff0000", "s_mov_b32 s58, 0x07060302", f"v_cndmask_b32 v{PF}, v{T[5]}, v{T[3]}, vcc")
    k.e("CUT")
    for c in range(4): k.e(f"s_add_u32 s{38+c}, s14, {c}", f"s_and_b32 s{38+c}, s{38+c}, 3")
    k.e(f"s_mul_hi_u32 s72, s65, {magic(80)}", "s_add_u32 s73, s65, 63", f"s_mul_hi_u32 s73, s73, {magic(80)}", "s_lshr_b32 s74, s19, 6", "s_add_u32 s75, s74, 1")
    k.e(waddr(3072, 64, False), raddr(False))
    for c in range(1, 4): k.e(f"s_mul_i32 s23, s{38+c}, 15360", f"s_add_u32 s23, s23, {PART+(c-1)*5120}", f"v_add_u32 v{vPW[c-1]}, s23, v{vL}")
    k.e("s_mul_i32 s23, s14, 15360", f"v_add_u32 v{vPR}, s23, v{vL}", f"v_add_u32 v{vL2}, 51200, v{vL}",
        f"v_mul_u32_u24 v{T[2]}, 160, v{l16}", f"v_lshl_add_u32 v{T[2]}, v{g4}, 3, v{T[2]}", f"v_add_u32 v{vI}, s42, v{T[2]}")
    k.e("CUT")
    k.e(x8addr(vC0, QP, 63, O8), x8addr(vA, 640, 19, U8), x8addr(T[3], 640, 65, HN8))
    for c in range(4): k.e(f"s_lshl_b32 s23, s{38+c}, 8", f"v_add_u32 v{vB[c]}, s23, v{T[3]}")
    k.e("s_lshl_b32 s23, s13, 5", "s_lshl_b32 s24, s61, 4", "s_add_u32 s23, s23, s24", "s_lshl_b32 s23, s23, 4", "s_lshl_b32 s24, s62, 3", "s_add_u32 s23, s23, s24",
        f"s_add_u32 s23, s23, {O5}", f"v_lshlrev_b32 v{T[2]}, 15, v{g4}", f"v_lshl_add_u32 v{T[2]}, v{l16}, 4, v{T[2]}", f"v_add_u32 v{vC1}, s23, v{T[2]}")
    k.e(f"s_lshl_b32 s23, s13, {12+st4}", f"s_lshl_b32 s24, s14, {7+st4}", "s_add_u32 s23, s23, s24", f"s_add_u32 s23, s23, {STATS}", f"v_lshl_add_u32 v{T[2]}, v{l16}, {3+st4}, s23",
        f"v_lshl_add_u32 v{vSR}, v{g4}, {10+st4}, v{T[2]}", f"s_lshl_b32 s24, s12, {9+st4}", f"v_add_u32 v{vSW}, s24, v{T[2]}",
        f"v_bfe_u32 v{T[2]}, v0, 4, 1", f"v_bfe_u32 v{T[3]}, v0, 2, 2", f"v_lshl_add_u32 v{T[3]}, v{T[2]}, 3, v{T[3]}", f"v_mul_u32_u24 v{T[3]}, 160, v{T[3]}",
        f"v_lshl_add_u32 v{T[3]}, v{hf}, 5, v{T[3]}", f"v_and_b32 v{T[4]}, 3, v0", f"v_lshl_add_u32 v{T[3]}, v{T[4]}, 3, v{T[3]}", f"v_add_u32 v{vTR}, s42, v{T[3]}",
        "s_lshr_b32 s23, s63, 3", "s_mul_i32 s23, s23, 640", "s_add_u32 s23, s23, s19", "s_lshl_b32 s23, s23, 4", f"s_add_u32 s23, s23, {HN8}",
        f"v_mul_u32_u24 v{T[2]}, 640, v{T[2]}", f"v_lshl_add_u32 v{T[2]}, v{hf}, 4, v{T[2]}", f"v_add_lshl_u32 v{T[2]}, v{T[2]}, v{l16}, 4", f"v_add_u32 v{vHN}, s23, v{T[2]}",
        "s_lshr_b32 s23, s64, 3", "s_mul_i32 s23, s23, 640", "s_add_u32 s23, s23, s65", "s_lshl_b32 s24, s14, 4", "s_add_u32 s23, s23, s24", x8addr(vUS, 640, 23, U8))
    for rr in range(3):
        k.e(f"v_add_u32 v{T[2]}, {64*rr}, v0", f"v_mul_u32_u24 v{T[3]}, 205, v{T[2]}", f"v_lshrrev_b32 v{T[3]}, 11, v{T[3]}", f"v_mul_u32_u24 v{T[3]}, {1280-160}, v{T[3]}", f"v_lshl_add_u32 v{GO[rr]}, v{T[2]}, 4, v{T[3]}")
    latel = k.lines[n_l0:]; del k.lines[n_l0:]
    cuts = [i for i, l in enumerate(latel) if l == "CUT"]
    cutp = ([0] + cuts + [len(latel)])[pe]
    ie = k.lines.index("EARLY")
    k.lines[ie:ie+1] = [l for l in latel[:cutp] if l != "CUT"]
    k.e([l for l in latel[cutp:] if l != "CUT"])
    k.e(wrot(66, 3072))
    for j in range(nF): k.e(f"s_add_u32 m0, s15, {[1, 2, 3, 0][j]*16384}", "s_nop 0", [f"buffer_load_dwordx4 v{vW[i]}, s[48:51], s{WR[j]} offen offset:{i*1024} lds" for i in range(4)])
    k.e(f"v_lshlrev_b32 v{T[2]}, 9, v0", f"v_mov_b32 v{T[3]}, 1", "s_cmp_lg_u32 s14, 0", f"s_waitcnt vmcnt({4*nF})", "s_barrier", f"s_cbranch_scc1 {k.L('asg')}",
        "s_mov_b64 exec, s[82:83]", f"buffer_atomic_add v{T[3]}, v{T[2]}, s[8:11], s80 offen sc1", "s_mov_b64 exec, -1")
    k.label("asg")
    k.e("STAMP0")
    k.e("s_mov_b32 m0, s42", "s_nop 0", f"buffer_load_dwordx4 v{GO[0]}, s[44:47], s57 offen lds", "s_add_u32 m0, s42, 1024", "s_nop 0", f"buffer_load_dwordx4 v{GO[1]}, s[44:47], s57 offen lds",
        "s_add_u32 m0, s42, 2048", "s_mov_b32 exec_hi, 0", f"buffer_load_dwordx4 v{GO[2]}, s[44:47], s57 offen lds", "s_mov_b64 exec, -1")
    k.e(srd(44, 28, 2048*1536*2), srd(48, 4, WS_END), "s_cmp_ge_u32 s17, 30", "s_cselect_b32 s46, 0, s46", "s_cselect_b32 s50, 0, s50",
        "s_mov_b32 s52, s28", "s_mov_b32 s53, s29", f"s_mov_b32 s54, {hex(2048*1536*2)}", "s_mov_b32 s55, 0x00020000",
        "s_mov_b32 s26, 0", "s_mov_b32 s27, -1", "s_mov_b32 s25, 0", "s_mov_b32 m0, s67", "s_xor_b32 s71, s59, 1024")
    k.e("s_mov_b32 s87, 0x400000", srd(80, 32, 2048*1536*2))
    for j in range(nF): k.e(f"s_waitcnt vmcnt({3 + 4*(nF-1-j)})", [f"ds_read_b64_tr_b16 {a(16*j+4*c+2*t,2)}, v{vR[c]} offset:{[1, 2, 3, 0][j]*16384+t*512}" for c in range(4) for t in range(2)])
    k.e("s_cmp_lg_u32 s14, 1", f"s_cbranch_scc1 {k.L('pax')}",
        "s_mul_i32 s21, s68, 20", "s_add_u32 s22, s21, 19", "s_lshr_b32 s21, s21, 7", "s_lshr_b32 s22, s22, 7", "s_sub_u32 s22, s22, s21", "s_lshl_b32 s22, s22, 4", "s_add_u32 s22, s22, 16",
        f"v_mov_b32 v{T[4]}, s22", "v_cmp_eq_u32 vcc, 3, v0", f"v_lshlrev_b32 v{T[5]}, 7, v0", "s_lshl_b32 s43, s68, 9", f"v_cndmask_b32 v{T[4]}, v{T[4]}, 16, vcc".replace(", 16, vcc", ", 16, vcc"),
        f"s_add_u32 s43, s43, {CNTH}", "s_mov_b32 s23, 0x200000", "s_mov_b64 exec, 15")
    k.label("pa")
    k.e(f"v_mov_b32 v{T[6]}, 0", f"buffer_atomic_add v{T[6]}, v{T[5]}, s[8:11], s43 offen sc0 sc1", "s_sub_u32 s23, s23, 1", f"s_cbranch_scc1 {k.L('pay')}", "s_waitcnt vmcnt(0)",
        f"v_cmp_gt_u32 vcc, v{T[4]}, v{T[6]}", f"s_cbranch_vccnz {k.L('pa')}")
    k.label("pay"); k.e("s_waitcnt vmcnt(0)", "s_mov_b64 exec, -1")
    k.label("pax")
    k.e(kvstart(), "s_waitcnt lgkmcnt(0)", "s_barrier", "STAMP0")
    k.e(f"buffer_load_dwordx4 {v(K1[NB-1],4)}, v{vK1}, s[8:11], 0 offen{KS}", f"buffer_load_dwordx2 {v(K2[NB-1],2)}, v{vK2}, s[8:11], 0 offen{KS}")
    for j in (3, 2, 1, 0): k.e(f"buffer_load_dwordx4 {v(Q1[j],4)}, v{vQ1}, s[8:11], s{59 if j < 2 else 71} offen offset:{512*(j%2)}{KS}", f"buffer_load_dwordx2 {v(Q2[j],2)}, v{vQ2}, s[8:11], s{59 if j < 2 else 71} offen offset:{512*(j%2)}{KS}")
    k.e(burst(0))
    SD = lambda j: v(Sx[j], 16) if j < 2 else a(208+16*(j-2), 16)
    qk1 = lambda sb, kb, qt: f"v_mfma_f32_32x32x16_bf16 {SD(sb)}, {rK1(kb)}, {v(Q1[qt],4)}, 0"
    qk2 = lambda sb, kb, qt: f"v_mfma_f32_32x32x8_bf16 {SD(sb)}, {rK2(kb)}, {v(Q2[qt],2)}, {SD(sb)}"
    pv = lambda half, kb, qt: f"v_mfma_f32_32x32x16_bf16 {v(O[qt],16)}, {rV(kb,half)}, {v(P+4*half,4)}, {v(O[qt],16)}"
    k.e("s_waitcnt vmcnt(4)")
    mm = []
    for sb, j in ((2, 3), (3, 2), (1, 1), (0, 0)): mm += [qk1(sb, NB-1, j), qk2(sb, NB-1, j)]
    k.e(interleave(mm, burst(1) + burst(2)))
    for n_, j in enumerate((3, 2)):
        k.e([f"v_accvgpr_read_b32 v{T[2+i]}, a{208+16*n_+i}" for i in range(3)], f"v_max3_f32 v{MX[j]}, v{T[2]}, v{T[3]}, v{T[4]}")
    k.e(f"v_max3_f32 v{MX[1]}, v{Sx[1]}, v{Sx[1]+1}, v{Sx[1]+2}", "s_nop 1", f"v_max3_f32 v{MX[0]}, v{Sx[0]}, v{Sx[0]+1}, v{Sx[0]+2}")
    k.label("setm")
    def setq(j): return [f"v_and_b32 v{T[3]}, s56, v{MX[j]}", f"v_sub_f32 v{T[4]}, v{T[3]}, v{MX[j]}", f"v_xor_b32 v{T[3]}, 0x80000000, v{T[3]}", f"v_perm_b32 v{Q2[j]}, v{T[4]}, v{T[3]}, s58"]
    k.e("s_waitcnt vmcnt(8)", qk1(0, 0, 0), "s_mov_b64 exec, s[26:27]", setq(0), "s_mov_b64 exec, -1", "s_nop 0", qk2(0, 0, 0),
        "s_mov_b64 exec, s[26:27]", setq(1), setq(2), setq(3), "s_mov_b64 exec, -1")
    k.e("STAMP0")
    vm = VM(k); vm.q = [("kv", 1)]*4 + [("kv", 2)]*4
    free = [1]
    class WS:
        def __init__(s, name, n, ld, tstep):
            s.name = name; s.n = n; s.ld = ld; s.tstep = tstep; s.ni = 0; s.nd = 0; s.where = {}
        def issue_raw(s, sl=None):
            j = s.ni; s.ni += 1
            if sl is None: sl = free.pop(0)
            else: free.remove(sl)
            s.where[j] = sl
            so = f"s{WR[j]}" if j < 4 else "s24"
            return [f"s_add_u32 m0, s15, {sl*16384}", "s_nop 0" if j < 4 else f"s_add_u32 s24, s{WR[j % 4]}, {(j >> 2)*16*32*s.ld}"] + \
                   [f"buffer_load_dwordx4 v{vW[i]}, s[44:47], {so} offen offset:{i*1024}{wfl} lds" for i in range(4)], (s.name, j)
        def issue_lines(s, sl=None): return vm.note(*s.issue_raw(sl))
        def drain_raw(s):
            j = s.nd; s.nd += 1
            assert j < s.ni
            free.append(s.where[j])
            return [f"ds_read_b64_tr_b16 {a(16*j+4*c+2*t,2)}, v{vR[c]} offset:{s.where[j]*16384+t*s.tstep}" for c in range(4) for t in range(2)], (s.name, j)
        def drain_lines(s):
            r, tg = s.drain_raw(); return vm.need(tg) + r
    W1 = WS("w1", 16, 3072, 512); W2 = WS("w2", 12, 4096, 2048)
    W1.ni = W1.nd = nE = nF
    def signal(off, pitch, nrep, stile, sr):
        return vm.note([f"s_lshl_b32 s24, s{stile}, 7", f"s_add_u32 s24, s24, {off}", "s_cmp_eq_u32 s14, 0", f"s_cselect_b32 s24, s24, {OOB}", f"v_mul_u32_u24 v{T[0]}, {pitch}, v0", f"v_mov_b32 v{T[1]}, 1",
                        f"s_mov_b64 exec, {(1<<nrep)-1}", f"buffer_atomic_add v{T[1]}, v{T[0]}, s[{sr}:{sr+3}], s24 offen sc1", "s_mov_b64 exec, -1"], "sig")
    san = lambda r: f"v_min_u32 v{r}, -2, v{r}"
    stubs = []
    def check(name, regs, ld):
        c_ = []; rr_ = list(regs)
        while len(rr_) > 1:
            if len(rr_) >= 3: c_.append(f"v_max3_u32 v{T[5]}, v{rr_[0]}, v{rr_[1]}, v{rr_[2]}"); rr_ = [T[5]] + rr_[3:]
            else: c_.append(f"v_max_u32 v{T[5]}, v{rr_[0]}, v{rr_[1]}"); rr_ = [T[5]]
        c_.append(f"v_cmp_eq_u32 vcc, -1, v{rr_[0]}")
        stubs.append([k.L(name) + ":"] + [x.replace("s23", "s91") for x in ld] + ["s_sub_u32 s87, s87, 1", "s_cmp_lt_i32 s87, 0", "s_waitcnt vmcnt(0)", f"s_cbranch_scc1 {k.L(name+'r')}"] + c_ +
                     [f"s_cbranch_vccnz {k.L(name)}", f"s_branch {k.L(name+'r')}"])
        return c_, [f"s_cbranch_vccnz {k.L(name)}", k.L(name+'r') + ":"]
    ex = lambda sb, i: f"v_exp_f32 v{Sx[sb]+i}, v{Sx[sb]+i}"
    cv = lambda sb, i: f"v_cvt_pk_bf16_f32 v{P+i}, v{Sx[sb]+2*i}, v{Sx[sb]+2*i+1}"
    MK = "a[252:255]"
    cursrd = [None]
    def pfl_(m_, reg, off): return dict(pf=(m_, reg, off), t="pf")
    wol = []
    for f_ in range(25):
        wol.append(dict(l=([f"s_add_u32 m0, s67, {1024*f_}", "s_nop 0"] if f_ % 4 == 0 else []) + [f"buffer_load_dwordx4 v{vWO}, s[8:11], m0 offen offset:{1024*(f_ % 4)} sc1 lds"], t="wo"))
    marks = [[f"v_accvgpr_write_b32 a{252+i}, -1" for i in range(4)] + [f"buffer_store_dwordx4 {MK}, v{vO1}, s[8:11], s59 offen sc1"], [f"buffer_store_dwordx4 {MK}, v{vO1}, s[8:11], s59 offen offset:512 sc1"],
             [f"buffer_store_dwordx4 {MK}, v{vHN}, s[8:11], 0 offen sc1"], [f"buffer_store_dwordx4 {MK}, v{vHN}, s[8:11], 0 offen offset:512 sc1"],
             [f"buffer_store_dwordx4 {MK}, v{vUS}, s[48:51], 0 offen sc1"], [f"s_mov_b32 s23, {4*640*16}", f"buffer_store_dwordx4 {MK}, v{vUS}, s[48:51], s23 offen sc1"],
             ["s_mov_b32 exec_hi, 0", f"buffer_store_dwordx4 {MK}, v{vL}, s[8:11], s60 offen sc1", f"buffer_store_dwordx4 {MK}, v{vHN}, s[8:11], 0 offen offset:1024 sc1", "s_mov_b64 exec, -1"]]
    marks = [dict(l=m_, t="mark") for m_ in marks]
    plan = {}
    sp = (wlast - w0) / max(nA, 1)
    wi = [int(w0 + sp*j) for j in range(nA+1)] if nA else [wlast]
    for j in range(nA+1):
        for i in range(4): plan[wi[j]+i] = dict(w=(j, i))
    def put(n_, e_):
        while n_ in plan: n_ += 1
        plan[n_] = e_; return n_
    h1 = n1//2
    if per:
        plan.clear()
        npfA = max(npfA, npfS//3)
        for q in range(npfA, n1): plan[per*(q-npfA) + 3] = pfl_(1 + q//h1, PF, (q % h1)*(6291456//h1))
        wi = [per*(n1 - nA + j) + 3 - 4 if j < nA else min(per*n1 - 1, 120) for j in range(nA+1)]
        for j in range(nA+1):
            for i in range(4): assert wi[j]+i not in plan; plan[wi[j]+i] = dict(w=(j, i))
        npr = nper or -(-(32 + 4*nA)//(n1-1))
        slots_ = [n_ for q in range(n1) for n_ in range(per*q + 3 - npr, per*q + 3) if n_ >= 0 and n_ not in plan]
        wog = [wol[i:i+4] for i in range(0, 25, 4)]
        mk_ = list(marks)
        for g_ in wog:
            while any(slots_[0] < x < slots_[len(g_)-1] for x in wi): plan[slots_.pop(0)] = mk_.pop(0)
            for e_ in g_: plan[slots_.pop(0)] = e_
        for e_ in mk_: plan[slots_.pop(0)] = e_
        s1w1 = s1w2 = l2w1 = l2w2 = None; wol = []; marks = []
    if s1w1:
        for q in range(h1): put(s1w1[0] + q*(s1w1[1]-s1w1[0])//h1, pfl_(1, T[1], q*((6144 if chunk else 6291456)//h1)))
    if s1w2:
        for q in range(h1): put(s1w2[0] + q*(s1w2[1]-s1w2[0])//h1, pfl_(2, T[1], q*((6144 if chunk else 6291456)//h1)))
    if l2w1:
        for q in range(l2w1[0]): put(l2w1[1] + q*(l2w1[2]-l2w1[1])//l2w1[0], pfl_(1, PF, q*(6291456//l2w1[0])))
    if l2w2:
        for q in range(l2w2[0]): put(l2w2[1] + q*(l2w2[2]-l2w2[1])//l2w2[0], pfl_(2, T[0], q*(6291456//l2w2[0])))
    n_ = 0
    for e_ in wol: n_ = put(n_, e_)
    assert per or n_ < wi[0]
    for i_, e_ in enumerate(marks): put(36 + 9*i_, e_)
    dplan = {}
    for j in range(nA):
        end = wi[j+1]
        assert end - 8//drate > wi[j] + 3
        for p_ in range(8//drate): dplan[end - 8//drate + p_] = (j, p_)
    wcur = {}
    def sidev(n):
        e_ = plan.get(n)
        if e_ is None: return
        if "w" in e_:
            j, i = e_["w"]
            if i == 0: wcur["i"] = W1.issue_raw()
            r, tg = wcur["i"]
            vm.emit((["s_waitcnt lgkmcnt(0)"] + r[:3]) if i == 0 else [r[2+i]], tg)
        elif "pf" in e_:
            m_, reg, off = e_["pf"]
            vm.emit(([f"s_mov_b32 s23, {off}"] if off else []) + [f"buffer_load_dword v{T[6]}, v{reg}, {'s[52:55]' if m_ == 1 else 's[80:83]'}, {'s23' if off else '0'} offen"], "pf")
        else: vm.emit(e_["l"], e_["t"])
    def sided(n):
        if n not in dplan: return
        j, p_ = dplan[n]
        if p_ == 0:
            wcur["d"] = W1.drain_raw(); vm.wait(wcur["d"][1])
        k.e(wcur["d"][0][drate*p_:drate*(p_+1)])
    kvq = [(tile, i) for tile in range(3, 32) for i in range(4)]
    for n in range(128):
        kt, qt = n//4, n % 4
        sb = n % 2
        last = n == 127
        for tok in blk.split():
            if tok == "W":
                if qt == 3 and not last: vm.wait(("kv", kt+1))
            elif tok == "V":
                if qt == 2 and kt < 31: vm.wait(("kv", kt+1))
            elif tok == "D": sided(n)
            elif tok == "Q":
                if not last: k.e(qk1(1-sb, ((n+1)//4) % NBT, (n+1) % 4))
            elif tok == "R":
                if not last: k.e(qk2(1-sb, ((n+1)//4) % NBT, (n+1) % 4))
            elif tok == "B":
                if n: k.e(pv(1, ((n-1)//4) % NBT, (n-1) % 4))
            elif tok == "A": k.e(pv(0, kt % NBT, qt).rsplit(",", 1)[0] + ", 0" if kt == 0 else pv(0, kt % NBT, qt))
            elif tok == "S": sidev(n)
            elif tok == "L":
                hush = per and 0 < (n - 3) % per <= quiet and n > per
                for rep_ in range(0 if hush else 2):
                    if kvq and (4*kvq[0][0] + kvq[0][1] <= n + 4*(NBT-1)):
                        tile, i = kvq.pop(0)
                        assert tile - NBT < kt
                        if i == 0 and tile % 4 == 0: k.e(f"s_add_u32 s22, s22, {16*VP}", "s_add_u32 s21, s21, 2048")
                        vm.emit([burstx(tile)[i]], ("kv", tile))
                if "D" not in blk.split(): sided(n)
            elif tok[0] == "e": k.e(ex(sb, int(tok[1:])))
            else: k.e(cv(sb, int(tok[1:])))
    assert W1.nd == nE+nA and W1.ni == nE+nA+1 and W1.nd <= 11
    vm.wait("wo"); vm.wait("mark")
    exo = [32768, 33792, 34816, 35840, 49152, 50176]
    k.e("s_xor_b32 s23, s14, 2", "s_waitcnt lgkmcnt(0)", pv(1, 31 % NBT, 3), "STAMP0", "s_lshl_b32 s23, s23, 12", f"s_add_u32 s23, s23, {RING}", f"v_add_u32 v{T[2]}, s23, v{vL}")
    for q in range(3): k.e(f"ds_write_b128 v{T[2]}, {v(O[2]+4*q,4)} offset:{exo[q]}")
    k.e(f"v_add_u32 v{T[5]}, s15, v{vL}", f"s_mov_b32 s23, {hex(f2u(2.0**64))}", "s_lshl_b32 s24, s14, 2", f"s_add_u32 s24, s24, {FLG}", f"v_mov_b32 v{T[3]}, s24",
        f"v_add_f32 v{T[4]}, v{O[0]+8}, v{O[1]+8}", f"v_add_f32 v{T[4]}, v{T[4]}, v{O[2]+8}")
    for q in range(3): k.e(f"ds_write_b128 v{T[2]}, {v(O[3]+4*q,4)} offset:{exo[3+q]}")
    k.e(f"v_add_f32 v{T[4]}, v{T[4]}, v{O[3]+8}", f"v_cmp_nge_f32 vcc, s23, v{T[4]}", f"v_mov_b32 v{T[2]}, {FLG}", "s_nop 0", f"v_mov_b32 v{T[4]}, vcc_hi",
        f"ds_write_b32 v{T[3]}, v{T[4]}", "s_waitcnt lgkmcnt(0)", "s_barrier")
    FL = Sx[0]; OUT = Sx[1]
    k.e(f"ds_read_b128 {v(FL,4)}, v{T[2]}")
    for j in range(2):
        for q in range(3): k.e(f"ds_read_b128 {v(O[2+j]+4*q,4)}, v{T[5]} offset:{exo[3*j+q]}")
    k.e("s_waitcnt lgkmcnt(6)", f"v_or3_b32 v{FL}, v{FL}, v{FL+1}, v{FL+2}", f"v_or_b32 v{FL}, v{FL}, v{FL+3}",
        "s_nop 0", f"v_readfirstlane_b32 s23, v{FL}", "s_waitcnt lgkmcnt(3)")
    for j in range(2):
        if j: k.e("s_waitcnt lgkmcnt(0)")
        for i in (8, 0, 2, 4, 6, 10): k.e(f"v_pk_add_f32 {v(O[j]+i,2)}, {v(O[j]+i,2)}, {v(O[2+j]+i,2)}")
        if j == 0: k.e("s_andn2_b32 s23, s23, s25", f"s_cbranch_scc1 {k.L('redo')}")
        if j == g0: k.e(signal(CNT0, 1024, 4, 69, 8))
        L = FL + 4 + 4*j
        k.e(f"v_mov_b32 v{L}, v{O[j]+8}", f"v_mov_b32 v{L+2}, v{O[j]+8}", "s_nop 1", f"v_permlane32_swap_b32 v{L}, v{L+2}", "s_nop 0", f"v_rcp_f32 v{L+2}, v{L+2}", "s_nop 0")
        for i in range(0, 12, 2): k.e(f"v_pk_mul_f32 {v(O[j]+i,2)}, {v(O[j]+i,2)}, {v(L+2,2)} op_sel_hi:[1,0]")
        for i in range(4): k.e(f"v_cvt_pk_bf16_f32 v{OUT+4*j+i}, v{O[j]+2*i}, v{O[j]+2*i+1}")
        k.e(san(OUT+4*j+3))
        vm.emit([f"buffer_store_dwordx4 {v(OUT+4*j,4)}, v{vO1}, s[8:11], s59 offen offset:{512*j} sc1"], "o")
        for i in range(2): k.e(f"v_cvt_pk_bf16_f32 v{OUT+8+2*j+i}, v{O[j]+8+2*i}, v{O[j]+9+2*i}")
        k.e(san(OUT+9+2*j))
    vm.emit(["s_mov_b32 exec_hi, 0", f"buffer_store_dwordx4 {v(OUT+8,4)}, v{vL}, s[8:11], s60 offen sc1", "s_mov_b64 exec, -1"], "o")
    k.e("STAMP0")
    def allred(A):
        k.e("s_nop 1", f"v_permlane32_swap_b32 v{A}, v{A+1}", "s_nop 0", f"v_add_f32 v{A}, v{A}, v{A+1}", f"v_mov_b32 v{A+1}, v{A}", "s_nop 1", f"v_permlane16_swap_b32 v{A}, v{A+1}", "s_nop 0",
            f"v_add_f32 v{A}, v{A}, v{A+1}", f"v_mov_b32 v{A+1}, v{A}", "s_nop 1", f"v_permlane32_swap_b32 v{A}, v{A+1}", "s_nop 0")
    def ask(off, pitch, slo, shi, skip=None):
        k.e(f"s_sub_u32 s22, s{shi}, s{slo}", f"v_mul_u32_u24 v{T[4]}, s22, v0", f"v_add_lshl_u32 v{T[4]}, v{T[4]}, s{slo}, 7", f"s_mul_i32 s43, s16, {pitch}", f"s_add_u32 s43, s43, {off}",
            "s_cmp_eq_u32 s14, 1", f"s_cselect_b32 s43, s43, {OOB}", f"v_mov_b32 v{T[3]}, 0")
        if skip: k.e(skip, f"s_cselect_b32 s43, {OOB}, s43")
        vm.emit([f"s_mov_b64 exec, {1 if slo == shi else 3}", f"buffer_atomic_add v{T[3]}, v{T[4]}, s[8:11], s43 offen sc0 sc1", "s_mov_b64 exec, -1"], "ask")
    def await_(two, need, name):
        q_ = list(vm.q)
        k.e(f"s_cmp_eq_u32 s43, {OOB}", f"s_cbranch_scc1 {k.L(name+'x')}", "s_mov_b32 s23, 0x200000", f"s_mov_b64 exec, {3 if two else 1}")
        vm.wait("ask"); vm.q = q_
        k.label(name)
        k.e(f"v_cmp_gt_u32 vcc, {need}, v{T[3]}", f"s_cbranch_vccz {k.L(name+'y')}", "s_sub_u32 s23, s23, 1", f"s_cbranch_scc1 {k.L(name+'y')}",
            f"v_mov_b32 v{T[3]}, 0", f"buffer_atomic_add v{T[3]}, v{T[4]}, s[8:11], s43 offen sc0 sc1", "s_waitcnt vmcnt(0)", f"s_branch {k.L(name)}")
        k.label(name+'y'); k.e("s_mov_b64 exec, -1")
        k.label(name+'x'); k.e("s_barrier")
    TT = lambda ls: [x.replace(f"v{T[3]},", f"v{T[0]},").replace(f"v{T[4]},", f"v{T[1]},") for x in [y + "," for y in ls]]
    TT2 = lambda ls: [x[:-1] for x in TT(ls)]
    sw = {"w": False, "r": False}
    def nextissue(sl=None):
        if W1.ni < 16: return W1.issue_lines(sl)
        r = []
        if not sw["w"]: sw["w"] = True; r = srd(44, 32, 2048*1536*2) + TT2(waddr(4096, 20, True)) + wrot(18, 4096)
        return r + W2.issue_lines(sl)
    def stream(n):
        for _ in range(n):
            if W1.ni == 16 and W2.ni >= w2n: return
            if not free:
                if W1.nd == W1.ni: return
                k.e(W1.drain_lines(), "s_waitcnt lgkmcnt(0)")
            k.e(nextissue())
    left = lambda: 16 - W1.ni + max(0, w2n - W2.ni)
    def drain1():
        while W1.nd < W1.ni: k.e(W1.drain_lines())
        if W1.nd == 16 and not sw["r"]: sw["r"] = True; k.e(TT2(raddr(True)))
    if g0 == 2: k.e(signal(CNT0, 1024, 4, 69, 8))
    Bc = [BUF + 4*j for j in range(20)]
    Ac = [[ACC + 20 + 20*b + 4*i for i in range(5)] for b in range(3)]
    XR = BUF + 80
    def rdA(j): return [f"ds_read_b128 {v(Ac[j%3][i],4)}, v{vL if j < 10 else vL2} offset:{(j % 10)*5120 + i*1024}" for i in range(5)]
    def rawC(j):
        if j < 16: return [f"s_mov_b32 s23, {j*4*QP*16}", f"buffer_load_dwordx4 {v(Bc[j],4)}, v{vC0}, s[8:11], s23 offen sc1"]
        r = []
        for h_ in range(2): r += [f"s_mov_b32 s23, {((j-16)*8+h_)*16384}", f"buffer_load_dwordx2 {v(Bc[j]+2*h_,2)}, v{vC1}, s[8:11], s23 offen sc1"]
        return r
    def ldC(j): return vm.note(rawC(j), ("C", j))
    def chkC(j): return check(f"c{j}", [Bc[j]+3] if j < 16 else [Bc[j]+1, Bc[j]+3], rawC(j))
    k.e("s_and_b32 s71, s17, 3", "s_lshl_b32 s71, s71, 3", "s_add_u32 s71, s71, s16")
    ask(CNT0, 0, 71, 71)
    drain1()
    free[:0] = [2, 3]
    for _ in range(s0n):
        if len(free) == 1: k.e("s_waitcnt lgkmcnt(0)")
        k.e(nextissue())
    k.e(rdA(0), rdA(1))
    await_(False, 32, "p0")
    k.e("STAMP0")
    for j in range(DCC): k.e(ldC(j))
    drain1()
    vm.wait(("C", 0)); k.e(chkC(0), "s_waitcnt lgkmcnt(0)")
    for j in range(20):
        k.e(f"s_waitcnt lgkmcnt({5 if j < 19 else 0})")
        nx = (("C", j+1), chkC(j+1)) if j < 19 else None
        w_pre = vm.need(nx[0]) if nx else []
        m = [f"v_mfma_f32_16x16x32_bf16 {v(ACC+4*i,4)}, {v(Ac[j%3][i],4)}, {v(Bc[j],4)}, " + ("0" if j == 0 else v(ACC+4*i, 4)) for i in range(5)]
        f = rdA(j+2) if j + 2 < 20 else ([f"ds_read_b64 {v(XR+2*i,2)}, v{vI} offset:{32*i}" for i in range(5)] if j == 19 else [])
        if j + DCC < 20: f = f + ldC(j+DCC)
        if j in wc and free and left(): f = f + nextissue()
        if nx: k.e(m[0], f[:2], m[1], f[2:4], w_pre, nx[1][0], m[2], nx[1][1], f[4:5], interleave(m[3:], f[5:]))
        else: k.e(interleave(m, f))
    k.e("STAMP0")
    R = ACC; U = BUF
    k.e("s_waitcnt lgkmcnt(0)")
    for i in range(10): k.e(f"v_lshlrev_b32 v{U+2*i}, 16, v{XR+i}", f"v_and_b32 v{U+2*i+1}, s56, v{XR+i}")
    for i in range(0, 20, 2): k.e(f"v_pk_add_f32 {v(R+i,2)}, {v(R+i,2)}, {v(U+i,2)}")
    SS = R+20; QQ = R+22; ST = R+24; G = R+28
    k.e(f"v_pk_add_f32 {v(SS,2)}, {v(R,2)}, {v(R+2,2)}", f"v_pk_mul_f32 {v(QQ,2)}, {v(R,2)}, {v(R,2)}", f"v_pk_fma_f32 {v(QQ,2)}, {v(R+2,2)}, {v(R+2,2)}, {v(QQ,2)}")
    for i in range(4, 20, 2): k.e(f"v_pk_add_f32 {v(SS,2)}, {v(SS,2)}, {v(R+i,2)}", f"v_pk_fma_f32 {v(QQ,2)}, {v(R+i,2)}, {v(R+i,2)}, {v(QQ,2)}")
    k.e(f"v_add_f32 v{ST}, v{SS}, v{SS+1}", f"v_add_f32 v{ST+1}, v{QQ}, v{QQ+1}")
    allred(ST)
    vm.emit([f"v_and_b32 v{ST+1}, 0x7fffffff, v{ST+1}", "s_mov_b64 exec, 0xffff", f"buffer_store_dwordx{4 if st4 else 2} {v(ST,4 if st4 else 2)}, v{vSW}, s[8:11], 0 offen sc1", "s_mov_b64 exec, -1"], "st")
    k.e("STAMP0", "s_barrier")
    for i in range(10): k.e(f"v_cvt_pk_bf16_f32 v{HK+i}, v{R+2*i}, v{R+2*i+1}")
    free.append(0)
    stream(s1[0])
    pl = [f"buffer_load_dwordx2 {v(G,2)}, v{vSR}, s[8:11], 0 offen sc1", f"buffer_load_dwordx2 {v(G+2,2)}, v{vSR}, s[8:11], 0 offen offset:{1024 if st4 else 512} sc1"]
    vm.emit(pl, "poll")
    stream(s1[1])
    vm.wait("poll")
    k.e("s_mov_b32 s23, 0x200000")
    k.label("sp")
    k.e(f"v_or_b32 v{G+4}, v{G+1}, v{G+3}", f"v_cmp_gt_i32 vcc, 0, v{G+4}", f"s_cbranch_vccz {k.L('spx')}", "s_sub_u32 s23, s23, 1", f"s_cbranch_scc1 {k.L('spx')}",
        f"s_sleep {slp}" if slp else [], pl, "s_waitcnt vmcnt(0)", f"s_branch {k.L('sp')}")
    k.label("spx")
    k.e("STAMP0")
    if g1 == 0: k.e(signal(CNT1, 1024, 8, 12, 8))
    k.e(f"v_pk_add_f32 {v(G,2)}, {v(G,2)}, {v(G+2,2)}")
    allred(G)
    c = hex(f2u(1.0/640)); e = hex(f2u(1e-5))
    k.e(f"v_mul_f32 v{G}, {c}, v{G}", f"v_mul_f32 v{G+1}, {c}, v{G+1}", f"v_fma_f32 v{G+1}, -v{G}, v{G}, v{G+1}", f"v_max_f32 v{G+1}, 0, v{G+1}",
        f"v_add_f32 v{G+2}, {e}, v{G+1}", f"v_rsq_f32 v{G+2}, v{G+2}", "s_nop 0", f"v_mul_f32 v{G+1}, v{G+1}, v{G+2}", f"v_mul_f32 v{G+1}, v{G+1}, v{G+2}",
        f"v_add_f32 v{G+1}, {e}, v{G+1}", f"v_rsq_f32 v{G+1}, v{G+1}", "s_nop 0", f"v_mul_f32 v{G+2}, v{G+1}, v{G+2}", f"v_mul_f32 v{G+3}, v{G}, v{G+2}", f"v_sub_f32 v{G+3}, 0, v{G+3}")
    for i in range(5):
        for h_ in range(2): k.e(f"v_pk_fma_f32 {v(R+4*i+2*h_,2)}, {v(R+4*i+2*h_,2)}, {v(G+2,2)}, {v(G+2,2)} op_sel:[0,0,1] op_sel_hi:[1,0,1]")
        k.e(f"v_cvt_pk_bf16_f32 v{U+2*i}, v{R+4*i}, v{R+4*i+1}", f"v_cvt_pk_bf16_f32 v{U+2*i+1}, v{R+4*i+2}, v{R+4*i+3}", f"ds_write_b64 v{vI}, {v(U+2*i,2)} offset:{32*i}")
    if g1 == 1: k.e(signal(CNT1, 1024, 8, 12, 8))
    k.e("s_waitcnt lgkmcnt(0)")
    for r in range(3):
        for t in range(2): k.e(f"ds_read_b64_tr_b16 {v(R+4*r+2*t,2)}, v{vTR} offset:{64*r+4*t*160}")
    for r in range(3):
        k.e(f"s_waitcnt lgkmcnt({4-2*r})", san(R+4*r+3))
        if r == 2: k.e("s_mov_b32 exec_hi, 0")
        vm.emit([f"buffer_store_dwordx4 {v(R+4*r,4)}, v{vHN}, s[8:11], 0 offen offset:{512*r} sc1"], "hn")
    k.e("s_mov_b64 exec, -1", "STAMP0")
    if g1 == 2: k.e(signal(CNT1, 1024, 8, 12, 8))
    for q in range(4): k.e(([f"s_add_u32 s21, s66, {4*q}", "s_and_b32 s21, s21, 15"] if rot else [f"s_add_u32 s21, s14, {4*q}"]) + [f"s_mul_i32 s{80+q}, s21, {4*640*16}"])
    stream(max(0, left() - ask1))
    ask(CNT1, 1024, 72, 73, skip="s_cmp_ge_u32 s17, 30")
    stream(99)
    if dlp:
        k.e("s_cmp_lt_u32 s17, 30", f"s_cbranch_scc1 {k.L('dlx')}", srd(24, 32, 2048*1536*2),
            "s_and_b32 s21, s17, 1", "s_lshl_b32 s21, s21, 2", "s_add_u32 s21, s21, s14", "s_lshl_b32 s21, s21, 16", "s_lshl_b32 s22, s16, 9", "s_add_u32 s21, s21, s22", f"s_add_u32 s21, s21, {dl0*4096}",
            f"v_lshrrev_b32 v{T[0]}, 2, v0", f"v_mul_u32_u24 v{T[0]}, {4096-512}, v{T[0]}", f"v_lshl_add_u32 v{T[0]}, v0, 7, v{T[0]}")
        for q in range(dlp): k.e(f"buffer_load_dword v{T[1]}, v{T[0]}, s[24:27], s21 offen", f"s_add_u32 s21, s21, {128*4096}")
        k.label("dlx")
    await_(True, 32, "p1")
    k.e("STAMP0")
    def rotoffs(srot):
        r = []
        for q in range(4):
            r += ([f"s_add_u32 s21, s{srot}, {4*q}", "s_and_b32 s21, s21, 15"] if rot else [f"s_add_u32 s21, s14, {4*q}"]) + [f"s_mul_i32 s{80+q}, s21, {4*640*16}"]
        return r
    def soff(j):
        if j < 4: return [], f"s{80+j}"
        return [f"s_add_u32 s23, s{80 + j % 4}, {(j >> 2)*16*4*640*16}"], "s23"
    class Fill:
        def __init__(s): s.q = []
        def add(s, ls): s.q += list(ls)
        def take(s, n):
            r = s.q[:n]; s.q = s.q[n:]; return r
    def groups(N):
        g = {}; u = 0
        while u < N:
            n_ = 1 if u < cg else (cg if u < N - 16 else cge)
            g[u] = list(range(u, min(N, u+n_))); u += n_
        return g
    def loadpos(N, D_, tap):
        pos = {}; p_ = 2
        for k_ in range(D_, N):
            pos.setdefault(p_, []).append(k_); p_ += 5 if k_ >= N - 1 - 4*tap else 4
        return pos, p_
    def unit(u, m, X, grp, raw, NS, pos, f):
        n3 = -(-len(f)//3)
        for g_ in range(4):
            k.e(m[g_])
            if u+1 in grp:
                if g_ == 0:
                    assert all((X, x) in issued for x in grp[u+1])
                    c_, b_ = check(f"{X.lower()}{u+1}", [BUF+4*(x % NS)+3 for x in grp[u+1]], sum((raw(x) for x in grp[u+1]), []))
                    vm.wait((X, grp[u+1][-1])); k.e(c_)
                if g_ == 1: k.e(b_)
            for k_ in pos.get(4*u+g_, []):
                assert k_ - NS < u
                vm.emit(raw(k_), (X, k_)); issued.add((X, k_))
            if g_ >= 1:
                for x in f[(g_-1)*n3:g_*n3]: k.e(x() if callable(x) else x)
    issued = set()
    unitsD = [(c, j) for c in (1, 2, 3, 0) for j in range(16)]
    NSD = DD+1
    assert 4*NSD <= 84
    def rawD(u):
        c, j = unitsD[u]; pre, so = soff(j)
        return pre + [f"buffer_load_dwordx4 {v(BUF+4*(u % NSD),4)}, v{vB[c]}, s[48:51], {so} offen sc1"]
    grpD = groups(64); posD, endD = loadpos(64, DD, tapD)
    for u in range(DD): vm.emit(rawD(u), ("D", u)); issued.add(("D", u))
    drain1(); k.e("s_waitcnt lgkmcnt(0)")
    if not sw["w"]: sw["w"] = True; k.e(srd(44, 32, 2048*1536*2) + TT2(waddr(4096, 20, True)) + wrot(18, 4096))
    n2pre = W2.ni
    c1 = -2.0*math.sqrt(2.0/math.pi)*math.log2(math.e); c3 = c1*0.044715
    U = BUF + 84
    fl = Fill()
    fl.add([f"s_mov_b32 s58, {hex(f2u(c3))}", f"v_mov_b32 v{T[6]}, {hex(f2u(c1))}", f"s_mov_b32 s61, {4*640*16}"])
    for i in range(8): fl.add([f"v_lshlrev_b32 v{U+2*i}, 16, v{XB+i}", f"v_and_b32 v{U+2*i+1}, s56, v{XB+i}"])
    vm.wait(("D", 0)); k.e(check("d0", [BUF+3], rawD(0)))
    def lazy_issue():
        r, tg = W2.issue_raw()
        return [(lambda x=x: vm.note([x], tg)) for x in r]
    nw2 = 0
    for u, (c, j) in enumerate(unitsD):
        m = [f"v_mfma_f32_16x16x32_bf16 {v(acc(i,c),4)}, {a(16*j+4*i,4)}, {v(BUF+4*(u % NSD),4)}, " + (v(acc(i,c), 4) if j else (v(U+4*i, 4) if c == 0 else "0")) for i in range(4)]
        f = []
        if u >= 16 and 2 <= j < 6:
            pc = unitsD[u-16][0]; f = f + [f"ds_write_b128 v{vPW[pc-1]}, {v(acc(j-2,pc),4)} offset:{(j-2)*1024}"]
        if u == 39:
            k.e("s_waitcnt lgkmcnt(0)", "s_barrier")
            assert not fl.q
            for cc in (1, 2): fl.add([f"ds_read_b128 {v(acc(i,cc),4)}, v{vPR} offset:{(cc-1)*5120+i*1024}" for i in range(4)])
            for cc in (1, 2): fl.add([f"s_waitcnt lgkmcnt({(2-cc)*4})"] + [f"v_add_f32 v{U+i}, v{U+i}, v{ACC+20*cc+i}" for i in range(16)])
        if u == 47: assert not fl.q
        if u == 48 + bD:
            k.e("s_waitcnt lgkmcnt(0)", "s_barrier")
            fl.add([f"ds_read_b128 {v(acc(i,3),4)}, v{vPR} offset:{2*5120+i*1024}" for i in range(4)])
        f = f + fl.take(6)
        if 49 <= u < 49 + n2pre: f = f + W2.drain_lines()
        if u >= 48 + bD and (u - 48 - bD) % dq == 0 and 4*u + 2 >= endD and free and W2.ni < n2pre + wpre: f = f + lazy_issue()
        unit(u, m, "D", grpD, rawD, NSD, posD, f)
        if u == g2: k.e(signal(CNT2, 1280, 8, 70, 48))
    k.e("STAMP0", fl.take(999))
    k.e("s_nop 6", "s_waitcnt lgkmcnt(0)")
    U = ACC + 60
    for p in range(2):
        R = ACC + 8*p; Z = ACC + 20 + 8*p
        for i in range(0, 8, 2): k.e(f"v_pk_add_f32 {v(R+i,2)}, {v(R+i,2)}, {v(U+8*p+i,2)}")
        for i in range(0, 8, 2): k.e(f"v_pk_mul_f32 {v(Z+i,2)}, {v(R+i,2)}, {v(R+i,2)}")
        for i in range(8): k.e(f"v_fma_f32 v{Z+i}, v{Z+i}, s58, v{T[6]}")
        for i in range(0, 8, 2): k.e(f"v_pk_mul_f32 {v(Z+i,2)}, {v(Z+i,2)}, {v(R+i,2)}")
        for i in range(8): k.e(f"v_exp_f32 v{Z+i}, v{Z+i}")
        for i in range(0, 8, 2): k.e(f"v_pk_add_f32 {v(Z+i,2)}, {v(Z+i,2)}, 1.0 op_sel_hi:[1,0]")
        for i in range(8): k.e(f"v_rcp_f32 v{Z+i}, v{Z+i}")
        k.e("s_nop 0")
        for i in range(0, 8, 2): k.e(f"v_pk_mul_f32 {v(R+i,2)}, {v(R+i,2)}, {v(Z+i,2)}")
        for i in range(4): k.e(f"v_cvt_pk_bf16_f32 v{ACC+40+4*p+i}, v{R+2*i}, v{R+2*i+1}")
        k.e(san(ACC+43+4*p))
        vm.emit([f"buffer_store_dwordx4 {v(ACC+40+4*p,4)}, v{vUS}, s[48:51], {'s61' if p else '0'} offen sc1"], "u")
        if g2 == 64 + p: k.e(signal(CNT2, 1280, 8, 70, 48))
    k.e("STAMP0")
    k.e(rotoffs(18))
    while free: k.e(W2.issue_lines())
    asked = False
    while W2.ni < 12:
        if W2.ni == 12 - pp[2]: ask(CNT2, 1280, 74, 75); asked = True
        k.e(W2.drain_lines(), "s_waitcnt lgkmcnt(0)", W2.issue_lines())
    if not asked: ask(CNT2, 1280, 74, 75)
    while W2.nd < 12 - late2: k.e(W2.drain_lines())
    U = BUF + 80
    k.e(srd(52, 36, 2048*640*2), f"v_lshlrev_b32 v{XB2}, 16, v{XB2}", f"v_add_u32 v{T[2]}, s42, v{vL}")
    for i in range(10): k.e(f"v_lshlrev_b32 v{U+2*i}, 16, v{HK+i}", f"v_and_b32 v{U+2*i+1}, s56, v{HK+i}", f"v_pk_add_f32 {v(U+2*i,2)}, {v(U+2*i,2)}, {v(XB2,2)} op_sel_hi:[1,0]")
    await_(True, 24, "p2")
    k.e("STAMP0")
    unitsE = [(i, j) for i in range(5) for j in range(12)]
    NSE = DE+1
    assert 4*NSE <= 80
    def rawE(u):
        i, j = unitsE[u]; pre, so = soff(j)
        return pre + [f"buffer_load_dwordx4 {v(BUF+4*(u % NSE),4)}, v{vA}, s[8:11], {so} offen offset:{i*256} sc1"]
    grpE = groups(60); posE, endE = loadpos(60, DE, tapE)
    for u in range(DE): vm.emit(rawE(u), ("E", u)); issued.add(("E", u))
    while W2.nd < W2.n: k.e(W2.drain_lines())
    k.e("s_waitcnt lgkmcnt(0)")
    fl = Fill()
    def fin(i): return [f"v_cvt_pk_bf16_f32 v{HK+2*i}, v{acc(i,0)}, v{acc(i,0)+1}", f"v_cvt_pk_bf16_f32 v{HK+2*i+1}, v{acc(i,0)+2}, v{acc(i,0)+3}", f"ds_write_b64 v{vI}, {v(HK+2*i,2)} offset:{32*i}"]
    def gatherE(iis):
        k.e("s_waitcnt lgkmcnt(0)", "s_barrier")
        assert not fl.q
        for ii in iis: fl.add([f"ds_read_b128 {v(acc(ii,cc),4)}, v{vPR} offset:{(cc-1)*5120+ii*1024}" for cc in (1, 2, 3)])
        for n_, ii in enumerate(iis): fl.add([f"s_waitcnt lgkmcnt({3*(len(iis)-1-n_)})"] + [f"v_add_f32 v{acc(ii,0)+e}, v{acc(ii,0)+e}, v{acc(ii,cc)+e}" for cc in (1, 2, 3) for e in range(4)])
        for ii in iis: fl.add(fin(ii))
    vm.wait(("E", 0)); k.e(check("e0", [BUF+3], rawE(0)))
    for u, (i, j) in enumerate(unitsE):
        m = [f"v_mfma_f32_16x16x32_bf16 {v(acc(i,c),4)}, {v(BUF+4*(u % NSE),4)}, {a(16*j+4*c,4)}, " + (v(acc(i,c), 4) if j else (v(U+4*i, 4) if c == 0 else "0")) for c in (1, 2, 3, 0)]
        f = []
        if i >= 1 and j == 2:
            assert not fl.q
            f = f + [f"ds_write_b128 v{vPW[c-1]}, {v(acc(i-1,c),4)} offset:{(i-1)*1024}" for c in (1, 2, 3)]
        if u == 28: gatherE([0, 1])
        if u == 40: gatherE([2])
        if u == 48 + bE: gatherE([3])
        f = f + fl.take(6)
        unit(u, m, "E", grpE, rawE, NSE, posE, f)
    k.e("STAMP0", fl.take(999), "s_nop 4")
    k.e([f"ds_write_b128 v{vPW[c-1]}, {v(acc(4,c),4)} offset:4096" for c in (1, 2, 3)], "s_waitcnt lgkmcnt(0)", "s_barrier")
    k.e([f"ds_read_b128 {v(acc(4,cc),4)}, v{vPR} offset:{(cc-1)*5120+4096}" for cc in (1, 2, 3)])
    for cc in (1, 2, 3): k.e(f"s_waitcnt lgkmcnt({3-cc})", [f"v_pk_add_f32 {v(acc(4,0)+e,2)}, {v(acc(4,0)+e,2)}, {v(acc(4,cc)+e,2)}" for e in (0, 2)])
    k.e(fin(4), "s_waitcnt lgkmcnt(0)")
    for r in range(3): k.e(f"ds_read_b128 {v(ACC+4*r,4)}, v{T[2]} offset:{1024*r}")
    for r in range(3):
        k.e(f"s_waitcnt lgkmcnt({2-r})")
        if r == 2: k.e("s_mov_b32 exec_hi, 0")
        k.e(f"buffer_store_dwordx4 {v(ACC+4*r,4)}, v{GO[r]}, s[52:55], s57 offen{OSC}")
    k.label("end"); k.e("s_endpgm")
    k.label("redo")
    k.e("s_waitcnt vmcnt(0) lgkmcnt(0)", "s_barrier", "s_mov_b32 s25, -1", "s_mov_b64 exec, s[26:27]")
    for j in range(4): k.e(f"v_mov_b32 v{Q2[j]}, 0")
    k.e("s_mov_b64 exec, -1")
    for j in range(4): k.e(f"v_mov_b32 v{MX[j]}, 0xff800000")
    k.e("s_mov_b32 s21, 0")
    k.label("mx")
    k.e(f"buffer_load_dwordx4 {v(K1[NB-1],4)}, v{vK1}, s[8:11], s21 offen{KS}", f"buffer_load_dwordx2 {v(K2[NB-1],2)}, v{vK2}, s[8:11], s21 offen{KS}", "s_waitcnt vmcnt(0)")
    for j in range(4):
        k.e(qk1(j % 2, NB-1, j), qk2(j % 2, NB-1, j), "s_nop 15")
        for i in range(0, 16, 2): k.e(f"v_max3_f32 v{MX[j]}, v{MX[j]}, v{Sx[j%2]+i}, v{Sx[j%2]+i+1}")
    k.e("s_add_u32 s21, s21, 512", f"s_cmp_lt_u32 s21, {64*512}", f"s_cbranch_scc1 {k.L('mx')}")
    for j in range(4):
        k.e(f"v_mov_b32 v{T[2]}, v{MX[j]}", "s_nop 1", f"v_permlane32_swap_b32 v{MX[j]}, v{T[2]}", "s_nop 1", f"v_max_f32 v{MX[j]}, v{MX[j]}, v{T[2]}")
    k.e(kvstart())
    for b in range(NB-1): k.e(burst(b))
    k.e(f"s_branch {k.L('setm')}")
    k.label("side1")
    XD = 8; SA = 100
    k.e("s_mov_b32 s3, 1", "s_load_dwordx2 s[84:85], s[0:1], 16", "s_lshl_b32 s81, s78, 2", "s_add_u32 s81, s81, s14",
        f"v_lshrrev_b32 v{T[0]}, 3, v0", f"v_mul_u32_u24 v{T[0]}, 1280, v{T[0]}", f"v_and_b32 v{T[1]}, 7, v0", f"v_lshl_add_u32 v120, v{T[1]}, 4, v{T[0]}",
        "v_bfe_u32 v9, v0, 3, 2", "v_lshrrev_b32 v10, 5, v0", "v_mul_u32_u24 v10, 20, v10", "v_add3_u32 v9, v9, v10, 16", "v_mul_u32_u24 v9, 1280, v9", f"v_lshl_add_u32 v9, v{T[1]}, 4, v9",
        "s_lshl_b32 s90, s14, 14", "s_waitcnt lgkmcnt(0)", shiftws, srd(44, 6, 2048*640*2), srd(8, 4, WS_END), f"s_mov_b32 s86, {640*640*2}", "s_mov_b32 s87, 0x00020000")
    k.e(f"v_lshlrev_b32 v121, 4, v0", "s_mov_b32 s24, 0x3f803f80")
    k.e([f"v_mov_b32 v{SA+i}, -1" for i in range(4)], [f"v_mov_b32 v{SA+4+i}, 0" for i in range(4)],
        f"v_mov_b32 v{SA+8}, s24", f"v_mov_b32 v{SA+9}, 0", f"v_mov_b32 v{SA+10}, s24", f"v_mov_b32 v{SA+11}, 0", [f"v_mov_b32 v{SA+12+i}, s24" for i in range(4)])
    k.e("s_lshl_b32 s21, s81, 11", f"s_add_u32 s22, s21, {XST}", [f"buffer_store_dwordx4 {v(SA,4)}, v121, s[8:11], s22 offen offset:{1024*i} sc1" for i in range(2)],
        f"s_add_u32 s22, s21, {CSP}", [f"buffer_store_dwordx4 {v(SA,4)}, v121, s[8:11], s22 offen offset:{1024*i} sc1" for i in range(2)],
        f"s_lshl_b32 s21, s81, {11+st4}", f"s_add_u32 s21, s21, {STATS}", [f"buffer_store_dwordx4 {v(SA,4)}, v121, s[8:11], s21 offen offset:{1024*i} sc1" for i in range(2+2*st4)],
        "s_lshl_b32 s21, s81, 10", f"s_add_u32 s21, s21, {CNT1}", f"buffer_store_dwordx4 {v(SA+4,4)}, v121, s[8:11], s21 offen sc1",
        "s_lshl_b32 s21, s81, 9", f"s_add_u32 s21, s21, {QK8+160*QP*16}", "s_mov_b32 exec_hi, 0", f"buffer_store_dwordx4 {v(SA+8,4)}, v121, s[8:11], s21 offen sc1",
        f"v_lshrrev_b32 v{T[0]}, 3, v0", f"v_mul_u32_u24 v{T[0]}, {VP-128}, v{T[0]}", f"v_add_u32 v{T[0]}, v{T[0]}, v121", f"s_mul_i32 s21, s81, {4*VP}", f"s_add_u32 s21, s21, {VT8+640*16}", f"buffer_store_dwordx4 {v(SA+12,4)}, v{T[0]}, s[8:11], s21 offen sc1", "s_mov_b64 exec, -1",
        "s_mov_b32 s54, 256", "s_mov_b32 s55, 0x00020000")
    k.e(statld, "s_cmp_lg_u32 s14, 0", "s_waitcnt vmcnt(3)", "s_barrier", f"s_cbranch_scc1 {k.L('par')}",
        f"v_mov_b32 v{FV}, 1", "s_mov_b64 exec, 1", f"buffer_atomic_add v{FV}, off, s[52:55], 0 sc1", "s_mov_b64 exec, -1", f"s_branch {k.L('par')}")
    k.label("side2")
    k.e("STAMP0", "v_bfe_u32 v13, v0, 2, 2", "v_lshlrev_b32 v13, 7, v13", f"v_lshl_add_u32 v13, v{g4}, 5, v13", "v_and_b32 v14, 3, v0", "v_lshl_add_u32 v13, v14, 3, v13", "v_add_u32 v13, s90, v13",
        "s_waitcnt vmcnt(0)", f"s_call_b64 s[92:93], {k.L('sub')}", statst)
    k.e("STAMP0")
    if btouch: k.e("v_lshlrev_b32 v8, 7, v0", srd(24, 30, 3072), "buffer_load_dword v191, v8, s[24:27], 0 offen", srd(24, 34, 4096), "buffer_load_dword v191, v8, s[24:27], 0 offen")
    for rd in range(2):
        k.e(f"s_add_u32 s80, s81, {64*rd}", f"s_mul_hi_u32 s82, s80, {magic(10)}", "s_mul_i32 s83, s82, 10", "s_sub_u32 s83, s80, s83",
            f"s_mul_i32 s21, s82, {80*1280}", "s_sub_u32 s22, s82, 8", f"s_mul_i32 s22, s22, {320*1280}", "s_cmp_ge_u32 s82, 8", "s_cselect_b32 s21, s22, s21",
            f"s_mov_b32 s23, {8*1280}", f"s_mov_b32 s24, {12*1280}", f"s_cselect_b32 s23, {40*1280}, s23", f"s_cselect_b32 s24, {40*1280}, s24", "s_cselect_b64 vcc, -1, 0", "v_cndmask_b32 v8, v120, v9, vcc",
            "s_lshl_b32 s22, s83, 7", "s_add_u32 s21, s21, s22")
        for u in range(8):
            k.e(f"s_add_u32 m0, s90, {rd*8192+u*1024}", "s_nop 0", "buffer_load_dwordx4 v8, s[84:87], s21 offen lds", f"s_add_u32 s21, s21, s{23 + u % 2}")
        k.e("s_lshl_b32 s22, s83, 2", "v_lshrrev_b32 v12, 4, v0", "v_add_u32 v12, s22, v12", "v_mul_u32_u24 v10, 52, v12", "v_lshrrev_b32 v10, 8, v10", f"s_mov_b32 s22, {102400-5120}", "v_mul_lo_u32 v10, v10, s22",
            "v_lshl_add_u32 v10, v12, 10, v10", "v_and_b32 v12, 15, v0", f"v_lshl_add_u32 v{122+rd}, v12, 4, v10", f"s_mul_i32 s22, s82, {2*5120}", f"s_add_u32 s22, s22, {WO8}",
            "s_cmp_lt_u32 s80, 100", f"s_cselect_b32 s22, s22, {OOB}", f"v_add_u32 v{122+rd}, s22, v{122+rd}")
    k.e(f"s_call_b64 s[92:93], {k.L('spin')}")
    for u in range(16):
        for t in range(2): k.e(f"ds_read_b64_tr_b16 {v(20+4*u+2*t,2)}, v13 offset:{u*1024+t*512}")
    k.e(pfA, "s_mov_b32 s50, 0" if pfA else [], biasld, "s_mov_b32 s21, 5120", "s_waitcnt lgkmcnt(0)")
    for u in range(16): k.e(f"buffer_store_dwordx4 {v(20+4*u,4)}, v{122+u//8}, s[8:11], {'s21' if (u % 8) >= 4 else '0'} offen offset:{(u % 4)*256} sc1")
    if npfS:
        k.e(srd(24, 28, 2048*1536*2), "s_lshl_b32 s21, s81, 13", "v_lshlrev_b32 v8, 7, v0")
        for q in range(npfS): k.e("buffer_load_dword v191, v8, s[24:27], s21 offen", "s_add_u32 s21, s21, 524288")
    k.e("STAMP0", "s_mov_b32 s21, 0", "s_mov_b32 s22, 32", "s_mov_b32 s23, 3", f"s_branch {k.L('asig')}")
    k.label("codeend")
    for s_ in stubs: k.e(s_)
    return k

KNAME = "sequential_preLN__mha_block__mixer_token_mlp__prompt_kernel"
G4 = [[0,4,1,2,8,3,5,6,7,9],[1,5,2,3,9,0,6,7,4,8],[2,6,3,0,1,7,4,5,8,9],[3,7,0,1,2,4,5,6,9,8]]
H4 = [[0,2,6,1,4,8,3,5,7,9],[1,3,7,0,5,9,2,4,6,8],[0,4,8,1,2,6,3,5,7,9],[1,5,9,0,3,7,2,4,6,8]]
def build(out=None, diag=None, **o):
    o.setdefault("order", H4); o.setdefault("s0", (2,0))
    ks = [kf(**o)]
    if out: open(out, "w").write(assemble_file(ks))
    if diag:
        ks[0].trace_v = 255; ks[0].stamp_trace = True
        open(diag, "w").write(assemble_file(ks, diag=True))
    return ks
if __name__ == "__main__":
    ks = build("v33.s", "diag.s", s0=(2,0))
    for k in ks: print(k.name, "vgpr", k.nv, "lds", k.lds, "lines", len(k.lines))
```

```python
from k_v33 import *
V = dict(A=dict(), B=dict(qmark=(1,1)), C=dict(qmark=(1,1), qwaves=1), D=dict(qmark=(1,1), qlanes=8), E=dict(qmark=(1,1), qlanes=8, qwaves=1), F=dict(qmark=(3,1)), G=dict(qmark=(1,1), qn=3), H=dict(qmark=(1,1), qwaves=0), I=dict(qmark=(2,1), qn=4, qwaves=2))
for n,o in V.items(): build(f"r{n}.s", None, **o)
```
